```python
import torch

def _softmax(x, axis=-1):
    return torch.softmax(x, dim=axis)
def _gelu(x):
    return torch.nn.functional.gelu(x, approximate="tanh")
def _silu(x):
    return torch.nn.functional.silu(x)
def _sigmoid(x):
    return torch.sigmoid(x)
def _layernorm(x, axis=-1, eps=1e-5):
    m = x.mean(dim=axis, keepdim=True)
    v = x.var(dim=axis, keepdim=True, unbiased=False)
    return (x - m) / torch.sqrt(v + eps)
def _scatter_add(tgt, idx, src, axis=0):
    return tgt.clone().index_add_(axis, idx, src)
def _segment_sum(src, seg, n):
    out = torch.zeros((n,) + src.shape[1:], dtype=src.dtype)
    return out.index_add_(0, seg, src)
def _pad(x, pw):
    flat = tuple(v for pair in reversed(pw) for v in pair)
    return torch.nn.functional.pad(x, flat)

kernel_name = 'gated_mix__mha_block__ssm_conv_s4d__prompt'

def setup_inputs():

    _w = (lambda a: (lambda t: t.to(torch.bfloat16) if t.is_floating_point() else t)(torch.as_tensor(a)))
    def _A_setup():
        B, S, D, H = 1, 2048, 576, 32
        return {
            "x": _w((lambda *s: torch.randn(*s, dtype=torch.bfloat16) * 0.05)(B, S, D)),
            "wqkv": _w((lambda *s: torch.randn(*s, dtype=torch.bfloat16) * 0.8)(D, 3 * D)),
            "wo": _w((lambda *s: torch.randn(*s, dtype=torch.bfloat16) * 0.05)(D, D)),
        }
    _A_in = _A_setup()

    def _B_setup():
        Bsz, L, D, N = 1, 2048, 576, 128
        return {
            "u": _w((lambda *s: torch.randn(*s, dtype=torch.bfloat16) * 0.05)(Bsz, L, D)),
            "log_A_real": _w((lambda *s: torch.randn(*s, dtype=torch.bfloat16) * 6.4)(D, N) * 0.5),
            "A_imag": _w((lambda *s: torch.randn(*s, dtype=torch.bfloat16) * 0.1)(D, N) * 3.14),
            "C_real": _w((lambda *s: torch.randn(*s, dtype=torch.bfloat16) * 0.4)(D, N) / N ** 0.5),
            "C_imag": _w((lambda *s: torch.randn(*s, dtype=torch.bfloat16) * 0.4)(D, N) / N ** 0.5),
            "log_dt": _w((lambda *s: torch.randn(*s, dtype=torch.bfloat16) * 0.1)(D) * 0.5 - 4.0),
            "D_skip": _w((lambda *s: torch.randn(*s, dtype=torch.bfloat16) * 0.1)(D)),
        }
    _B_in = _B_setup()

    return {
        "A_x": _A_in["x"],
        "A_wqkv": _A_in["wqkv"],
        "A_wo": _A_in["wo"],
        "B_u": _B_in["u"],
        "B_log_A_real": _B_in["log_A_real"],
        "B_A_imag": _B_in["A_imag"],
        "B_C_real": _B_in["C_real"],
        "B_C_imag": _B_in["C_imag"],
        "B_log_dt": _B_in["log_dt"],
        "B_D_skip": _B_in["D_skip"],
        "gate_w": _w((lambda *s: torch.randn(*s, dtype=torch.bfloat16) * 0.05)(576) * 16.0),
    }

def reference(A_x, A_wqkv, A_wo, B_u, B_log_A_real, B_A_imag, B_C_real, B_C_imag, B_log_dt, B_D_skip, gate_w):
    def _A_ref(x, wqkv, wo):
        B, S, D = x.shape
        H = 32
        Dh = D // H
        qkv = (lambda x, *d: x.permute(*d))((x @ wqkv).reshape(B, S, 3, H, Dh), 2, 0, 3, 1, 4)
        q, k, v = qkv[0], qkv[1], qkv[2]
        scores = torch.einsum("bhqd,bhkd->bhqk", q, k) * (Dh ** -0.5)
        p = _softmax(scores, axis=-1)
        o = torch.einsum("bhqk,bhkd->bhqd", p, v)
        return (lambda x, *d: x.permute(*d))(o, 0, 2, 1, 3).reshape(B, S, D) @ wo

    def _B_ref(u, log_A_real, A_imag, C_real, C_imag, log_dt, D_skip):
        L = u.shape[1]
        dt = torch.exp(log_dt)
        A = -torch.exp(log_A_real) + 1j * A_imag
        C = (C_real + 1j * C_imag) * dt[:, None]
        pos = (lambda x, dt: x.to(dt))(torch.arange(L), log_dt.dtype)
        P = torch.exp((A * dt[:, None])[:, :, None] * pos[None, None, :])
        K = 2.0 * torch.einsum("dn,dnl->dl", C, P).real
        L2 = 2 * L
        u_t = (lambda x, *d: x.permute(*d))(u, 0, 2, 1)
        Kf = (lambda x, *a, **k: torch.fft.rfft(x.float(), *a, **k))(K, L2)
        Uf = (lambda x, *a, **k: torch.fft.rfft(x.float(), *a, **k))(u_t, L2)
        y = (lambda x, *a, **k: torch.fft.irfft(x, *a, **k).to(torch.bfloat16))(Uf * Kf[None, :, :], L2)[:, :, :L]
        y = (lambda x, *d: x.permute(*d))(y, 0, 2, 1)
        return y + u * D_skip[None, None, :]

    x = A_x
    g = _sigmoid((x * gate_w).sum(-1, keepdims=True))
    a = _A_ref(x, A_wqkv, A_wo)
    b = _B_ref(x, B_log_A_real, B_A_imag, B_C_real, B_C_imag, B_log_dt, B_D_skip)
    return g * a + (1 - g) * b
```

```python
import re

TRANS = ("v_exp_f32", "v_log_f32", "v_rcp_f32", "v_rsq_f32", "v_sqrt_f32", "v_sin_f32", "v_cos_f32")

_reg1 = re.compile(r"^([vas])(\d+)$")
_regr = re.compile(r"^([vas])\[(\d+):(\d+)\]$")


def parse_reg(tok):
    tok = tok.strip()
    neg = tok.startswith("-")
    if neg:
        tok = tok[1:]
    if tok.startswith("|") and tok.endswith("|"):
        tok = tok[1:-1]
    m = _reg1.match(tok)
    if m:
        return (m.group(1), [int(m.group(2))])
    m = _regr.match(tok)
    if m:
        return (m.group(1), list(range(int(m.group(2)), int(m.group(3)) + 1)))
    if tok == "vcc":
        return ("s", [106, 107])
    if tok == "exec":
        return ("s", [126, 127])
    if tok == "m0":
        return ("s", [124])
    return None


class Ins:
    __slots__ = ("text", "op", "kind", "wr", "rd", "passes", "mf_d", "mf_ab", "mf_c", "states", "sgemm")

    def __init__(self, text):
        self.text = text
        t = text.split(";")[0].strip()
        mo = re.search(r"offset:(\d+)", t)
        if mo:
            lim = 65535 if t.startswith("ds_") else 4095
            assert int(mo.group(1)) <= lim, "offset too large: " + text
        parts = t.split(None, 1)
        self.op = parts[0]
        ops = []
        if len(parts) > 1:
            ops = [o.strip() for o in parts[1].split(",")]
        cl = []
        for o in ops:
            cl.append(o.split()[0] if o else o)
        ops = cl
        self.wr = set()
        self.rd = set()
        self.passes = 0
        self.sgemm = False
        self.states = 1
        op = self.op

        def R(i):
            if i < len(ops):
                r = parse_reg(ops[i])
                if r:
                    return {(r[0], x) for x in r[1]}
            return set()

        if op == "s_nop":
            self.kind = "nop"
            self.states = int(ops[0], 0) + 1
        elif op.startswith("v_mfma"):
            self.kind = "mfma"
            if "32x32x16" in op or "32x32x8" in op:
                self.passes = 8
            elif "16x16x32" in op or "16x16x16" in op:
                self.passes = 4
            elif "16x16x4_f32" in op or "16x16x4f32" in op:
                self.passes = 8
                self.sgemm = True
            elif "32x32x2_f32" in op or "32x32x2f32" in op:
                self.passes = 16
                self.sgemm = True
            else:
                raise ValueError("unknown mfma " + op)
            self.mf_d = R(0)
            self.mf_ab = R(1) | R(2)
            self.mf_c = R(3)
            self.wr = set(self.mf_d)
            self.rd = self.mf_ab | self.mf_c
        elif op.startswith("v_"):
            self.kind = "trans" if op.replace("_e32", "").replace("_e64", "") in TRANS else "valu"
            if op.startswith("v_cmp"):
                self.wr = R(0)
                self.rd = R(1) | R(2)
                if self.wr == set():
                    self.wr = {("s", 106), ("s", 107)}
            elif op.startswith("v_permlane32_swap") or op.startswith("v_permlane16_swap"):
                self.kind = "permlane"
                self.wr = R(0) | R(1)
                self.rd = R(0) | R(1)
            elif op.startswith("v_readfirstlane") or op.startswith("v_readlane"):
                self.kind = "readlane"
                self.wr = R(0)
                self.rd = R(1) | R(2)
            else:
                self.wr = R(0)
                for i in range(1, len(ops)):
                    self.rd |= R(i)
                if op.startswith("v_cndmask") and len(ops) == 3:
                    self.rd |= {("s", 106), ("s", 107)}
                if op.startswith("v_add_co") or op.startswith("v_sub_co"):
                    self.wr |= R(1)
                if op.startswith("v_fmac") or op.startswith("v_mac") or op.startswith("v_accvgpr") or "dpp" in text or "d16" in op:
                    self.rd |= R(0)
                if "dpp" in text or "row_" in text or "quad_perm" in text:
                    self.kind = "dpp"
        elif op.startswith("ds_read") or op.startswith("ds_bpermute") or op.startswith("ds_swizzle"):
            self.kind = "ds"
            self.wr = R(0)
            self.rd = R(1) | R(2)
            if "d16" in op:
                self.rd |= R(0)
        elif op.startswith("ds_write"):
            self.kind = "ds"
            for i in range(len(ops)):
                self.rd |= R(i)
        elif op.startswith("buffer_load") or op.startswith("global_load"):
            self.kind = "vmem"
            if " lds" in text:
                for i in range(len(ops)):
                    self.rd |= R(i)
            else:
                self.wr = R(0)
                for i in range(1, len(ops)):
                    self.rd |= R(i)
                if "d16" in op:
                    self.rd |= R(0)
        elif op.startswith("buffer_store") or op.startswith("global_store") or op.startswith("buffer_atomic") or op.startswith("global_atomic"):
            self.kind = "vmemst"
            for i in range(len(ops)):
                self.rd |= R(i)
            self.wr = set()
            self.mf_d = R(0) if ("x4" in op or "x3" in op) else set()
        elif op.startswith("s_"):
            self.kind = "salu"
            if op.startswith(("s_cmp", "s_cbranch", "s_branch", "s_waitcnt", "s_barrier", "s_endpgm", "s_setprio", "s_sleep")):
                for i in range(len(ops)):
                    self.rd |= R(i)
            else:
                self.wr = R(0)
                for i in range(1, len(ops)):
                    self.rd |= R(i)
        else:
            raise ValueError("unknown instr " + text)


def vset(s):
    return {x for x in s if x[0] in "va"}


def sset(s):
    return {x for x in s if x[0] == "s"}


XDL_RD = {2: 5, 4: 8, 8: 12, 16: 20}
SG_RD = {2: 4, 4: 6, 8: 10, 16: 18}
XDL_C_OVL = {2: 4, 4: 6, 8: 10, 16: 18}
SG_C_OVL = {2: 2, 4: 4, 8: 8, 16: 16}
XDL_WAR_C = {2: 1, 4: 3, 8: 7, 16: 15}


def need_states(prev, cur):
    n = 0
    pk, ck = prev.kind, cur.kind
    pw_v = vset(prev.wr)
    if pk in ("valu", "trans", "dpp", "permlane"):
        if ck == "mfma" and pw_v & vset(cur.rd):
            n = max(n, 2)
        if pk == "trans" and ck in ("valu", "dpp", "permlane", "readlane", "mfma") and pw_v & vset(cur.rd | cur.wr):
            n = max(n, 1)
        if ck == "dpp" and pw_v & vset(cur.rd):
            n = max(n, 2)
        if ck == "permlane" and pw_v & vset(cur.rd):
            n = max(n, 2)
        if ck == "readlane" and pw_v & vset(cur.rd):
            n = max(n, 1)
    if pk in ("valu", "trans", "dpp", "permlane", "readlane"):
        pw_s = sset(prev.wr)
        if pw_s:
            if ck in ("valu", "trans", "dpp", "permlane", "readlane") and pw_s & sset(cur.rd):
                n = max(n, 4 if ck == "readlane" else 2)
            if ck in ("vmem", "vmemst") and pw_s & sset(cur.rd):
                n = max(n, 5)
            if ("s", 126) in pw_s and ck == "mfma":
                n = max(n, 4)
    if pk == "mfma":
        d = prev.mf_d
        if ck == "mfma":
            if d & cur.mf_ab:
                n = max(n, (SG_RD if prev.sgemm else XDL_RD)[prev.passes])
            if d & cur.mf_c:
                exact = (d == cur.mf_c) and prev.passes == cur.passes and prev.sgemm == cur.sgemm
                if exact:
                    n = max(n, 2 if prev.passes == 2 else 0)
                elif prev.sgemm and not cur.sgemm:
                    n = max(n, 0)
                else:
                    n = max(n, (SG_C_OVL if prev.sgemm else XDL_C_OVL)[prev.passes])
        elif ck in ("valu", "trans", "dpp", "permlane", "readlane", "ds", "vmem", "vmemst"):
            if d & vset(cur.rd | cur.wr):
                n = max(n, (SG_RD if prev.sgemm else XDL_RD)[prev.passes])
            if (not prev.sgemm) and ck in ("valu", "trans", "dpp", "permlane") and prev.mf_c & vset(cur.wr):
                n = max(n, XDL_WAR_C[prev.passes])
    if pk == "vmemst" and prev.mf_d:
        if ck in ("valu", "trans", "dpp", "permlane") and prev.mf_d & vset(cur.wr):
            n = max(n, 2)
        elif prev.mf_d & vset(cur.wr):
            n = max(n, 1)
    if pk == "salu" and ("s", 124) in prev.wr:
        if ck in ("vmem", "ds"):
            n = max(n, 1)
    return n


class Asm:
    def __init__(self):
        self.out = []
        self.hist = []
        self.nlab = 0
        self.total_nops = 0

    def raw(self, text):
        self.out.append(text)

    def comment(self, text):
        self.out.append("    ; " + text)

    def label(self, name):
        self.out.append(name + ":")

    def newlabel(self, p="L"):
        self.nlab += 1
        return "%s_%d" % (p, self.nlab)

    def pending(self, ins):
        need = 0
        dist = 0
        for p in reversed(self.hist):
            r = need_states(p, ins)
            if r - dist > need:
                need = r - dist
            dist += p.states
            if dist > 24:
                break
        return need

    def __call__(self, text):
        ins = Ins(text)
        need = self.pending(ins)
        while need > 0:
            k = min(need, 16)
            nop = Ins("s_nop %d" % (k - 1))
            self.out.append("    s_nop %d" % (k - 1))
            self.hist.append(nop)
            self.total_nops += k
            need -= k
        self.out.append("    " + text)
        self.hist.append(ins)
        if len(self.hist) > 64:
            self.hist = self.hist[-40:]

    def flush(self, n=20):
        worst = 0
        dist = 0
        for p in reversed(self.hist):
            w = 0
            if p.kind == "mfma":
                w = (SG_RD if p.sgemm else XDL_RD)[p.passes]
            elif p.kind in ("valu", "trans", "dpp", "permlane", "readlane"):
                w = 5 if sset(p.wr) else 2
            if w - dist > worst:
                worst = w - dist
            dist += p.states
            if dist > 24:
                break
        if worst > 0:
            self("s_nop %d" % (worst - 1))

    def text(self):
        return "\n".join(self.out) + "\n"


def vr(a, n=1):
    return "v%d" % a if n == 1 else "v[%d:%d]" % (a, a + n - 1)


def ar(a, n=1):
    return "a%d" % a if n == 1 else "a[%d:%d]" % (a, a + n - 1)


def sr(a, n=1):
    return "s%d" % a if n == 1 else "s[%d:%d]" % (a, a + n - 1)


class Alloc:
    def __init__(self, start=0, limit=256):
        self.p = start
        self.limit = limit
        self.hi = start

    def get(self, n=1, align=1):
        self.p = (self.p + align - 1) // align * align
        r = self.p
        self.p += n
        self.hi = max(self.hi, self.p)
        assert self.p <= self.limit, "register overflow"
        return r

    def mark(self):
        return self.p

    def release(self, m):
        self.p = m
```

```python
import sys, os
sys.path.insert(0, os.path.dirname(os.path.abspath(__file__)))
from fw import Asm, vr, sr, Alloc

WS_QKVT = 0
WS_O = 8 << 20
WS_XT = 12 << 20
WS_G = 16 << 20
WS_KR = 17 << 20
WS_BT = 20 << 20
KR_STRIDE = 4224

PROF = int(os.environ.get("PROF", "0"))
QSCALE = 0x3EAE1A3D
import struct
def f32bits(x):
    return struct.unpack("<I", struct.pack("<f", x))[0]
QSCALE = f32bits((18 ** -0.5) * 1.4426950408889634)


class VmQ:
    def __init__(self, asm, name):
        self.q = []
        self.asm = asm
        self.name = name

    def push(self, tag):
        self.q.append(tag)

    def wait(self, tag):
        idx = max(i for i, t in enumerate(self.q) if t == tag) if tag in self.q else -1
        if idx < 0:
            return
        n = len(self.q) - 1 - idx
        self.asm("s_waitcnt %s(%d)" % (self.name, n))
        self.q = self.q[idx + 1:]

    def wait_all(self):
        self.asm("s_waitcnt %s(0)" % self.name)
        self.q = []


def make_srd(a, s, ptr_s, size, off=0):
    if off:
        a("s_add_u32 s%d, s%d, 0x%x" % (s, ptr_s, off))
        a("s_addc_u32 s%d, s%d, 0" % (s + 1, ptr_s + 1))
    else:
        a("s_mov_b32 s%d, s%d" % (s, ptr_s))
        a("s_mov_b32 s%d, s%d" % (s + 1, ptr_s + 1))
    a("s_mov_b32 s%d, 0x%x" % (s + 2, size))
    a("s_mov_b32 s%d, 0x00020000" % (s + 3))


def div_small(a, vq, vrem, vc, d, vtmp):
    m = -(-(1 << 16) // d)
    for c in range(0, 1024):
        assert (c * m) >> 16 == c // d
    a("v_mul_u32_u24 %s, %d, %s" % (vr(vq), m, vr(vc)))
    a("v_lshrrev_b32 %s, 16, %s" % (vr(vq), vr(vq)))
    a("v_mul_u32_u24 %s, %d, %s" % (vr(vtmp), d, vr(vq)))
    a("v_sub_u32 %s, %s, %s" % (vr(vrem), vr(vc), vr(vtmp)))


def gemm(a, cfg):
    wm, wn, tm, tn = cfg["wm"], cfg["wn"], cfg["tm"], cfg["tn"]
    Mt, Nt = wm * tm * 32, wn * tn * 32
    lda, ldb, K = cfg["lda"], cfg["ldb"], cfg["K"]
    sA, sB = cfg["sA"], cfg["sB"]
    s_m0, s_n0 = cfg["s_m0"], cfg["s_n0"]
    st = cfg["s_tmp"]
    s_boff, s_mask = st, st + 2
    assert s_mask % 2 == 0
    nst = K // 32
    P = int(os.environ.get("GP", cfg.get("P", 4)))
    SA = 80
    SB = {128: 320, 96: 192, 64: 192}[Nt]
    bufsz = Mt * SA + 32 * SB
    LB = Mt * SA
    cfg["lds_bytes"] = 3 * bufsz
    nchA = Mt * 4
    cprB = Nt // 8
    nchB = 32 * cprB
    nA = -(-nchA // 256)
    nB = -(-nchB // 256)
    al = Alloc(cfg.get("v_start", 1), cfg.get("v_limit", 256))
    vAg = [al.get() for _ in range(nA)]
    vAl = [al.get() for _ in range(nA)]
    vBg = [al.get() for _ in range(nB)]
    vBl = [al.get() for _ in range(nB)]
    vAf = al.get()
    vBf = al.get()
    vt0, vt1, vt2, vt3 = [al.get() for _ in range(4)]
    FA = [[al.get(4, 4) for _ in range(tm)] for _ in range(2)]
    FB = [[al.get(4, 4) for _ in range(tn)] for _ in range(2)]
    acc = [[al.get(16, 4) for _ in range(tn)] for _ in range(tm)]
    stg = [([al.get(4, 4) for _ in range(nA)], [al.get(4, 4) for _ in range(nB)]) for _ in range(P)]
    cfg["vgprs"] = al.hi

    a.comment("gemm address setup Mt=%d Nt=%d" % (Mt, Nt))
    for i in range(nA):
        a("v_lshrrev_b32 %s, 2, v0" % vr(vt0))
        if i:
            a("v_add_u32 %s, %d, %s" % (vr(vt0), 64 * i, vr(vt0)))
        a("v_and_b32 %s, 3, v0" % vr(vt1))
        a("v_lshlrev_b32 %s, 4, %s" % (vr(vt1), vr(vt1)))
        a("v_mul_u32_u24 %s, %d, %s" % (vr(vAl[i]), SA, vr(vt0)))
        a("v_add_u32 %s, %s, %s" % (vr(vAl[i]), vr(vAl[i]), vr(vt1)))
        a("v_add_u32 %s, %s, %s" % (vr(vt0), sr(s_m0), vr(vt0)))
        a("v_mul_u32_u24 %s, %d, %s" % (vr(vAg[i]), lda, vr(vt0)))
        a("v_add_u32 %s, %s, %s" % (vr(vAg[i]), vr(vAg[i]), vr(vt1)))
    for i in range(nB):
        a("v_add_u32 %s, %d, v0" % (vr(vt2), 256 * i))
        if cprB & (cprB - 1) == 0:
            sh = cprB.bit_length() - 1
            a("v_lshrrev_b32 %s, %d, %s" % (vr(vt0), sh, vr(vt2)))
            a("v_and_b32 %s, %d, %s" % (vr(vt1), cprB - 1, vr(vt2)))
        else:
            div_small(a, vt0, vt1, vt2, cprB, vt3)
        a("v_lshlrev_b32 %s, 4, %s" % (vr(vt1), vr(vt1)))
        a("v_mul_u32_u24 %s, %d, %s" % (vr(vBl[i]), SB, vr(vt0)))
        a("v_add_u32 %s, %s, %s" % (vr(vBl[i]), vr(vBl[i]), vr(vt1)))
        a("v_mul_u32_u24 %s, %d, %s" % (vr(vBg[i]), ldb, vr(vt0)))
        a("v_add_u32 %s, %s, %s" % (vr(vBg[i]), vr(vBg[i]), vr(vt1)))
        a("v_add_u32 %s, %s, %s" % (vr(vBg[i]), sr(s_n0), vr(vBg[i])))
        a("v_add_u32 %s, %s, %s" % (vr(vBg[i]), sr(s_n0), vr(vBg[i])))
    partB = (nchB % 256) != 0
    if partB:
        a("v_cmp_gt_u32 vcc, %d, v0" % (nchB % 256))
        a("s_mov_b64 %s, vcc" % sr(s_mask, 2))
    a("v_lshrrev_b32 %s, 6, v0" % vr(vt0))
    if wn == 2:
        a("v_lshrrev_b32 %s, 1, %s" % (vr(vt1), vr(vt0)))
        a("v_and_b32 %s, 1, %s" % (vr(vt0), vr(vt0)))
    else:
        a("v_mov_b32 %s, %s" % (vr(vt1), vr(vt0)))
        a("v_mov_b32 %s, 0" % vr(vt0))
    a("v_mul_u32_u24 %s, %d, %s" % (vr(vt1), tm * 32, vr(vt1)))
    a("v_and_b32 %s, 31, v0" % vr(vt2))
    a("v_add_u32 %s, %s, %s" % (vr(vt1), vr(vt1), vr(vt2)))
    a("v_mul_u32_u24 %s, %d, %s" % (vr(vAf), SA, vr(vt1)))
    a("v_bfe_u32 %s, v0, 5, 1" % vr(vt2))
    a("v_lshl_add_u32 %s, %s, 4, %s" % (vr(vAf), vr(vt2), vr(vAf)))
    a("v_bfe_u32 %s, v0, 2, 2" % vr(vt1))
    a("v_lshl_add_u32 %s, %s, 3, %s" % (vr(vt1), vr(vt2), vr(vt1)))
    a("v_mul_u32_u24 %s, %d, %s" % (vr(vBf), SB, vr(vt1)))
    a("v_mul_u32_u24 %s, %d, %s" % (vr(vt0), tn * 64, vr(vt0)))
    a("v_add_u32 %s, %s, %s" % (vr(vBf), vr(vBf), vr(vt0)))
    a("v_bfe_u32 %s, v0, 4, 1" % vr(vt0))
    a("v_lshl_add_u32 %s, %s, 5, %s" % (vr(vBf), vr(vt0), vr(vBf)))
    a("v_and_b32 %s, 3, v0" % vr(vt0))
    a("v_lshl_add_u32 %s, %s, 3, %s" % (vr(vBf), vr(vt0), vr(vBf)))
    a("v_add_u32 %s, %d, %s" % (vr(vBf), LB, vr(vBf)))

    vm = VmQ(a, "vmcnt")
    lg = VmQ(a, "lgkmcnt")

    def issue_loads(s):
        A_, B_ = stg[s % P]
        for i in range(nA):
            a("buffer_load_dwordx4 %s, %s, %s, 0 offen offset:%d" % (vr(A_[i], 4), vr(vAg[i]), sr(sA, 4), 64 * s))
            vm.push(("ld", s))
        a("s_mov_b32 %s, 0x%x" % (sr(s_boff), 32 * s * ldb))
        for i in range(nB):
            last_part = partB and i == nB - 1
            if last_part:
                a("s_mov_b64 exec, %s" % sr(s_mask, 2))
            a("buffer_load_dwordx4 %s, %s, %s, %s offen" % (vr(B_[i], 4), vr(vBg[i]), sr(sB, 4), sr(s_boff)))
            vm.push(("ld", s))
            if last_part:
                a("s_mov_b64 exec, -1")

    def write_lds(s):
        A_, B_ = stg[s % P]
        base = (s % 3) * bufsz
        vm.wait(("ld", s))
        for i in range(nA):
            a("ds_write_b128 %s, %s offset:%d" % (vr(vAl[i]), vr(A_[i], 4), base))
            lg.push(("wr", s))
        for i in range(nB):
            last_part = partB and i == nB - 1
            if last_part:
                a("s_mov_b64 exec, %s" % sr(s_mask, 2))
            a("ds_write_b128 %s, %s offset:%d" % (vr(vBl[i]), vr(B_[i], 4), base + LB))
            lg.push(("wr", s))
            if last_part:
                a("s_mov_b64 exec, -1")

    def read_frags(s, kk):
        base = (s % 3) * bufsz
        for t in range(tm):
            a("ds_read_b128 %s, %s offset:%d" % (vr(FA[kk][t], 4), vr(vAf), base + t * 32 * SA + kk * 32))
            lg.push(("fr", s, kk))
        for t in range(tn):
            for hf in range(2):
                a("ds_read_b64_tr_b16 %s, %s offset:%d" % (vr(FB[kk][t] + 2 * hf, 2), vr(vBf),
                                                           base + (kk * 16 + 4 * hf) * SB + t * 64))
                lg.push(("fr", s, kk))

    def mfmas(s, kk):
        lg.wait(("fr", s, kk))
        for ti in range(tm):
            for tj in range(tn):
                c = "0" if (s == 0 and kk == 0) else vr(acc[ti][tj], 16)
                a("v_mfma_f32_32x32x16_bf16 %s, %s, %s, %s" % (vr(acc[ti][tj], 16), vr(FA[kk][ti], 4), vr(FB[kk][tj], 4), c))

    if PROF:
        a("s_memtime s[40:41]")
    if cfg.get("pre"):
        cfg["pre"](a, dict(cfg=cfg, vt=[vt0, vt1, vt2, vt3], tm=tm, tn=tn, wm=wm, wn=wn, al=al))
        cfg["vgprs"] = al.hi
    for s in range(P):
        issue_loads(s)
    write_lds(0)
    issue_loads(P) if P < nst else None
    lg.wait_all()
    a("s_barrier")
    if PROF:
        a("s_memtime s[42:43]")
    read_frags(0, 0)
    for s in range(nst):
        if s + 1 < nst:
            write_lds(s + 1)
            if s + 1 + P < nst:
                issue_loads(s + 1 + P)
        read_frags(s, 1)
        mfmas(s, 0)
        if s + 1 < nst:
            lg.wait_all()
            a("s_barrier")
            read_frags(s + 1, 0)
        mfmas(s, 1)
    if PROF:
        a("s_memtime s[44:45]")
    ctx = dict(cfg=cfg, acc=acc, vt=[vt0, vt1, vt2, vt3], tm=tm, tn=tn, wm=wm, wn=wn, al=al,
               free=[r for st_ in stg for r in st_[0] + st_[1]])
    cfg["epi"](a, ctx)
    if PROF:
        a("s_waitcnt vmcnt(0)")
        a("s_memtime s[46:47]")
        a("s_load_dwordx2 s[48:49], s[0:1], 96")
        a("s_waitcnt lgkmcnt(0)")
        a("s_mov_b32 s50, 256")
        a("s_mov_b32 s51, 0x00020000")
        a("v_lshlrev_b32 %s, 4, s2" % vr(vt1))
        a("v_cmp_eq_u32 vcc, 0, v0")
        a("s_and_saveexec_b64 s[52:53], vcc")
        for i, r in enumerate((40, 42, 44, 46)):
            a("v_mov_b32 %s, s%d" % (vr(vt0), r))
            a("buffer_store_dword %s, %s, s[48:51], 0 offen offset:%d" % (vr(vt0), vr(vt1), 4 * i))
        a("s_mov_b64 exec, s[52:53]")


def epi_gemm1(kind):
    def epi(a, ctx):
        cfg = ctx["cfg"]
        tm, tn, wn = ctx["tm"], ctx["tn"], ctx["wn"]
        vt0, vt1, vt2, vt3 = ctx["vt"]
        acc = ctx["acc"]
        sO = cfg["sO"]
        s_m0, s_n0 = cfg["s_m0"], cfg["s_n0"]
        st = cfg["s_tmp"]
        a("v_lshrrev_b32 %s, 6, v0" % vr(vt0))
        if wn == 2:
            a("v_lshrrev_b32 %s, 1, %s" % (vr(vt1), vr(vt0)))
            a("v_and_b32 %s, 1, %s" % (vr(vt0), vr(vt0)))
        else:
            a("v_mov_b32 %s, %s" % (vr(vt1), vr(vt0)))
            a("v_mov_b32 %s, 0" % vr(vt0))
        a("v_mul_u32_u24 %s, %d, %s" % (vr(vt0), tn * 32, vr(vt0)))
        a("v_and_b32 %s, 31, v0" % vr(vt2))
        a("v_add3_u32 %s, %s, %s, %s" % (vr(vt0), vr(vt0), vr(vt2), sr(s_n0)))
        if kind == "qk":
            a("v_readfirstlane_b32 %s, %s" % (sr(st), vr(vt0)))
            a("s_cmp_lt_u32 %s, 576" % sr(st))
            a("s_cselect_b32 %s, 0x%x, 1.0" % (sr(st), QSCALE))
        a("v_lshlrev_b32 %s, 12, %s" % (vr(vt0), vr(vt0)))
        a("v_mul_u32_u24 %s, %d, %s" % (vr(vt1), tm * 32, vr(vt1)))
        a("v_bfe_u32 %s, v0, 5, 1" % vr(vt2))
        a("v_lshl_add_u32 %s, %s, %d, %s" % (vr(vt1), vr(vt2), 2 if kind == "qk" else 3, vr(vt1)))
        a("v_add_u32 %s, %s, %s" % (vr(vt1), sr(s_m0), vr(vt1)))
        a("v_lshl_add_u32 %s, %s, 1, %s" % (vr(vt0), vr(vt1), vr(vt0)))
        for ti in range(tm):
            for tj in range(tn):
                A = acc[ti][tj]
                if kind == "qk":
                    for r in range(16):
                        a("v_mul_f32 %s, %s, %s" % (vr(A + r), sr(st), vr(A + r)))
                for p in range(8):
                    a("v_cvt_pk_bf16_f32 %s, %s, %s" % (vr(A + p), vr(A + 2 * p), vr(A + 2 * p + 1)))
                a("s_mov_b32 %s, 0x%x" % (sr(st + 1), tj * 32 * 4096))
                if kind == "qk":
                    for i in range(4):
                        a("buffer_store_dwordx2 %s, %s, %s, %s offen offset:%d" % (vr(A + 2 * i, 2), vr(vt0), sr(sO, 4), sr(st + 1), ti * 64 + 16 * i))
                else:
                    for m in range(2):
                        a("buffer_store_dwordx4 %s, %s, %s, %s offen offset:%d" % (vr(A + 4 * m, 4), vr(vt0), sr(sO, 4), sr(st + 1), ti * 64 + 32 * m))
    return epi


def kernel_gemm1(a, name):
    a.raw(".globl %s" % name)
    a.raw(".p2align 8")
    a.raw(".type %s,@function" % name)
    a.label(name)
    lend = a.newlabel("END")
    lv = a.newlabel("VPART")
    a("s_cmp_ge_u32 s2, 240")
    a("s_cbranch_scc1 %s" % lend)
    a("s_load_dwordx4 s[20:23], s[0:1], 0")
    a("s_load_dwordx2 s[24:25], s[0:1], 104")
    a("s_waitcnt lgkmcnt(0)")
    make_srd(a, 4, 20, 2048 * 1152)
    make_srd(a, 8, 22, 576 * 3456)
    make_srd(a, 12, 24, 1728 * 4096, WS_QKVT)
    a("s_cmp_ge_u32 s2, 144")
    a("s_cbranch_scc1 %s" % lv)
    a("s_and_b32 s26, s2, 15")
    a("s_lshl_b32 s26, s26, 7")
    a("s_lshr_b32 s27, s2, 4")
    a("s_lshl_b32 s27, s27, 7")
    c1 = dict(wm=2, wn=2, tm=2, tn=2, lda=1152, ldb=3456, K=576, sA=4, sB=8, sO=12, s_m0=26, s_n0=27, s_tmp=28,
              epi=epi_gemm1("qk"))
    gemm(a, c1)
    a("s_endpgm")
    a.label(lv)
    a("s_sub_u32 s27, s2, 144")
    a("s_and_b32 s26, s27, 15")
    a("s_lshl_b32 s26, s26, 7")
    a("s_lshr_b32 s27, s27, 4")
    a("s_mul_i32 s27, s27, 96")
    a("s_add_u32 s27, s27, 1152")
    c2 = dict(wm=4, wn=1, tm=1, tn=3, lda=1152, ldb=3456, K=576, sA=4, sB=8, sO=12, s_m0=26, s_n0=27, s_tmp=28,
              epi=epi_gemm1("v"))
    gemm(a, c2)
    a.label(lend)
    a("s_endpgm")
    return dict(name=name, grid=240, lds=max(c1["lds_bytes"], c2["lds_bytes"]), vgprs=max(c1["vgprs"], c2["vgprs"]))


SK, SV = 320, 272
K_IMG, V_IMG = 0, 20 * 320
ABUF = 20 * 320 + 20 * 272
ONES = 0x3F803F80


def attn_role(a, cfg):
    sW, sO = cfg["sW"], cfg["sO"]
    s_head, s_qb = cfg["s_head"], cfg["s_q0"]
    st = cfg["s_tmp"]
    s_goff, s_cnt, s_r0 = st, st + 1, st + 2
    s_hm = st + 4
    s_m16 = st + 6
    al = Alloc(1, 256)
    vK1, vK2, vV = al.get(), al.get(), al.get()
    sg = [al.get() for _ in range(3)]
    sl = [al.get() for _ in range(3)]
    vt = [al.get() for _ in range(6)]
    vOa = al.get()
    stg = [al.get(4, 4) for _ in range(3)]
    QB1 = [al.get(4, 4) for _ in range(2)]
    QB2 = [al.get(4, 4) for _ in range(2)]
    KA1 = [al.get(4, 4) for _ in range(2)]
    KA2 = [al.get(4, 4) for _ in range(2)]
    VF = [[al.get(4, 4) for _ in range(2)] for _ in range(2)]
    S = [[al.get(16, 4) for _ in range(2)] for _ in range(2)]
    Pp = [al.get(8, 4) for _ in range(2)]
    O = [al.get(16, 4) for _ in range(2)]
    cfg["vgprs"] = al.hi
    cfg["lds_bytes"] = 4 * ABUF
    t0, t1, t2, t3, t4, t5 = vt
    lg = VmQ(a, "lgkmcnt")

    a("v_lshrrev_b32 %s, 6, v0" % vr(t0))
    a("v_and_b32 %s, 1, %s" % (vr(t1), vr(t0)))
    a("v_lshrrev_b32 %s, 1, %s" % (vr(t2), vr(t0)))
    a("v_bfe_u32 %s, v0, 4, 2" % vr(t3))
    a("v_mad_u32_u24 %s, %s, 9, %s" % (vr(t3), vr(t1), vr(t3)))
    a("v_and_b32 %s, 15, v0" % vr(t4))
    a("v_lshlrev_b32 %s, 4, %s" % (vr(t4), vr(t4)))
    a("v_mul_u32_u24 %s, %d, %s" % (vr(t5), SK - SV, vr(t2)))
    a("v_sub_u32 %s, %d, %s" % (vr(t5), SK, vr(t5)))
    a("v_mul_u32_u24 %s, %d, %s" % (vr(t0), V_IMG, vr(t2)))
    a("v_add_u32 %s, %s, %s" % (vr(t0), vr(t0), vr(t4)))
    a("v_mul_u32_u24 %s, 576, %s" % (vr(t2), vr(t2)))
    a("v_add_u32 %s, %s, %s" % (vr(t2), sr(s_r0), vr(t2)))
    for i in range(3):
        a("v_add_u32 %s, %d, %s" % (vr(t1), 4 * i, vr(t3)))
        a("v_mul_u32_u24 %s, %s, %s" % (vr(sl[i]), vr(t1), vr(t5)))
        a("v_add_u32 %s, %s, %s" % (vr(sl[i]), vr(sl[i]), vr(t0)))
        a("v_add_u32 %s, %s, %s" % (vr(sg[i]), vr(t1), vr(t2)))
        a("v_lshlrev_b32 %s, 12, %s" % (vr(sg[i]), vr(sg[i])))
        a("v_add_u32 %s, %s, %s" % (vr(sg[i]), vr(sg[i]), vr(t4)))
    a("v_bfe_u32 %s, v0, 5, 1" % vr(t0))
    a("v_bfe_u32 %s, v0, 2, 2" % vr(t1))
    a("v_bfe_u32 %s, v0, 4, 1" % vr(t2))
    a("v_and_b32 %s, 3, v0" % vr(t3))
    a("v_lshlrev_b32 %s, 3, %s" % (vr(t3), vr(t3)))
    a("v_lshl_add_u32 %s, %s, 5, %s" % (vr(t3), vr(t2), vr(t3)))
    a("v_lshl_add_u32 %s, %s, 3, %s" % (vr(t4), vr(t0), vr(t1)))
    a("v_mul_u32_u24 %s, %d, %s" % (vr(vK1), SK, vr(t4)))
    a("v_add_u32 %s, %s, %s" % (vr(vK1), vr(vK1), vr(t3)))
    a("v_add_u32 %s, 16, %s" % (vr(t4), vr(t1)))
    a("v_mul_u32_u24 %s, %d, %s" % (vr(vK2), SK, vr(t4)))
    a("v_add_u32 %s, %s, %s" % (vr(vK2), vr(vK2), vr(t3)))
    a("v_and_b32 %s, 31, v0" % vr(t4))
    a("v_min_u32 %s, 19, %s" % (vr(t4), vr(t4)))
    a("v_mul_u32_u24 %s, %d, %s" % (vr(vV), SV, vr(t4)))
    a("v_lshl_add_u32 %s, %s, 4, %s" % (vr(vV), vr(t0), vr(vV)))
    a("v_add_u32 %s, %d, %s" % (vr(vV), V_IMG, vr(vV)))
    a("v_cmp_eq_u32 vcc, 0, %s" % vr(t0))
    a("s_mov_b64 %s, vcc" % sr(s_hm, 2))
    a("v_and_b32 %s, 63, v0" % vr(t1))
    a("v_cmp_gt_u32 vcc, 16, %s" % vr(t1))
    a("s_mov_b64 %s, vcc" % sr(s_m16, 2))

    def ld_chunk():
        for i in range(3):
            if i == 2:
                a("s_mov_b64 exec, %s" % sr(s_m16, 2))
            a("buffer_load_dwordx4 %s, %s, %s, %s offen" % (vr(stg[i], 4), vr(sg[i]), sr(sW, 4), sr(s_goff)))
            if i == 2:
                a("s_mov_b64 exec, -1")
        a("s_add_u32 %s, %s, 256" % (sr(s_goff), sr(s_goff)))

    def wr_chunk(buf):
        a("s_waitcnt vmcnt(0)")
        for i in range(3):
            if i == 2:
                a("s_mov_b64 exec, %s" % sr(s_m16, 2))
            a("ds_write_b128 %s, %s offset:%d" % (vr(sl[i]), vr(stg[i], 4), buf * ABUF))
            lg.push("wr")
            if i == 2:
                a("s_mov_b64 exec, -1")

    def rd_k(tile, par):
        buf, kt = (tile // 4) % 4, tile % 4
        off = buf * ABUF + K_IMG + kt * 64
        a("ds_read_b64_tr_b16 %s, %s offset:%d" % (vr(KA1[par], 2), vr(vK1), off)); lg.push(("k", par))
        a("ds_read_b64_tr_b16 %s, %s offset:%d" % (vr(KA1[par] + 2, 2), vr(vK1), off + 4 * SK)); lg.push(("k", par))
        a("ds_read_b64_tr_b16 %s, %s offset:%d" % (vr(KA2[par], 2), vr(vK2), off)); lg.push(("k", par))

    def rd_v(tile, par):
        buf, kt = (tile // 4) % 4, tile % 4
        off = buf * ABUF + kt * 64
        for m in range(2):
            a("ds_read_b128 %s, %s offset:%d" % (vr(VF[par][m], 4), vr(vV), off + 32 * m)); lg.push(("v", par))

    a("s_mov_b32 %s, 0" % sr(s_goff))
    ld_chunk()
    a("v_lshrrev_b32 %s, 6, v0" % vr(t1))
    a("v_lshlrev_b32 %s, 6, %s" % (vr(t1), vr(t1)))
    a("v_and_b32 %s, 31, v0" % vr(t2))
    a("v_add3_u32 %s, %s, %s, %s" % (vr(t1), vr(t1), vr(t2), sr(s_qb)))
    a("v_mul_u32_u24 %s, 1152, %s" % (vr(vOa), vr(t1)))
    a("v_lshlrev_b32 %s, 1, %s" % (vr(t1), vr(t1)))
    a("v_lshl_add_u32 %s, %s, 15, %s" % (vr(t2), vr(t0), vr(t1)))
    a("s_sub_u32 %s, %s, 576" % (sr(s_cnt), sr(s_r0)))
    a("s_lshl_b32 %s, %s, 12" % (sr(s_cnt), sr(s_cnt)))
    QT = [S[0][1], S[1][1]]
    for qt in range(2):
        for j in range(8):
            a("s_add_u32 %s, %s, %d" % (sr(st + 3), sr(s_cnt), j * 4096 + qt * 64))
            a("buffer_load_ushort %s, %s, %s, %s offen" % (vr(QT[qt] + j), vr(t2), sr(sW, 4), sr(st + 3)))
        for j in range(2):
            a("s_add_u32 %s, %s, %d" % (sr(st + 3), sr(s_cnt), (16 + j) * 4096 + qt * 64))
            a("buffer_load_ushort %s, %s, %s, %s offen" % (vr(QT[qt] + 8 + j), vr(t1), sr(sW, 4), sr(st + 3)))
        for r in range(1, 4):
            a("v_mov_b32 %s, 0" % vr(QB2[qt] + r))
    for p_ in range(2):
        a("v_mov_b32 %s, 0" % vr(KA2[p_] + 2))
        a("v_mov_b32 %s, 0" % vr(KA2[p_] + 3))
    a("v_bfe_u32 %s, v0, 4, 2" % vr(t3))
    a("v_lshrrev_b32 %s, 1, %s" % (vr(t4), vr(t3)))
    a("v_and_b32 %s, 1, %s" % (vr(t3), vr(t3)))
    a("v_add_u32 %s, 18, %s" % (vr(t5), vr(t3)))
    a("v_mul_u32_u24 %s, %d, %s" % (vr(t2), SK, vr(t5)))
    a("v_mul_u32_u24 %s, %d, %s" % (vr(t5), SV, vr(t5)))
    a("v_add_u32 %s, %d, %s" % (vr(t5), V_IMG, vr(t5)))
    a("v_cmp_eq_u32 vcc, 1, %s" % vr(t4))
    a("v_cndmask_b32 %s, %s, %s, vcc" % (vr(t2), vr(t2), vr(t5)))
    a("v_and_b32 %s, 15, v0" % vr(t5))
    a("v_lshl_add_u32 %s, %s, 4, %s" % (vr(t2), vr(t5), vr(t2)))
    a("v_lshrrev_b32 %s, 6, v0" % vr(t5))
    a("v_mul_u32_u24 %s, %d, %s" % (vr(t5), ABUF, vr(t5)))
    a("v_add_u32 %s, %s, %s" % (vr(t2), vr(t2), vr(t5)))
    a("v_and_b32 %s, %s, %s" % (vr(t3), vr(t3), vr(t4)))
    a("v_cmp_eq_u32 vcc, 0, %s" % vr(t3))
    a("v_mov_b32 %s, 0x%x" % (vr(t3), ONES))
    a("v_cndmask_b32 %s, 0, %s, vcc" % (vr(t3), vr(t3)))
    a("v_mov_b32 %s, %s" % (vr(S[0][0]), vr(t3)))
    a("v_mov_b32 %s, %s" % (vr(S[0][0] + 1), vr(t3)))
    a("v_mov_b32 %s, %s" % (vr(S[0][0] + 2), vr(t3)))
    a("v_mov_b32 %s, %s" % (vr(S[0][0] + 3), vr(t3)))
    a("ds_write_b128 %s, %s" % (vr(t2), vr(S[0][0], 4)))
    wr_chunk(0)
    ld_chunk()
    for qt in range(2):
        for j in range(4):
            a("v_lshl_or_b32 %s, %s, 16, %s" % (vr(QB1[qt] + j), vr(QT[qt] + 2 * j + 1), vr(QT[qt] + 2 * j)))
        a("v_lshl_or_b32 %s, %s, 16, %s" % (vr(QB2[qt]), vr(QT[qt] + 9), vr(QT[qt] + 8)))
        a("v_cndmask_b32 %s, 0, %s, %s" % (vr(QB2[qt]), vr(QB2[qt]), sr(s_hm, 2)))
    a("s_waitcnt lgkmcnt(0)")
    lg.q = []
    a("s_barrier")
    rd_k(0, 0)
    rd_k(1, 1)
    lg.wait(("k", 0))
    for qt in range(2):
        Sx = S[qt][0]
        a("v_mfma_f32_32x32x16_bf16 %s, %s, %s, 0" % (vr(Sx, 16), vr(KA1[0], 4), vr(QB1[qt], 4)))
        a("v_mfma_f32_32x32x16_bf16 %s, %s, %s, %s" % (vr(Sx, 16), vr(KA2[0], 4), vr(QB2[qt], 4), vr(Sx, 16)))
    for qt in range(2):
        Sx = S[qt][0]
        a("v_max3_f32 %s, %s, %s, %s" % (vr(t0), vr(Sx), vr(Sx + 1), vr(Sx + 2)))
        for r in range(3, 15, 2):
            a("v_max3_f32 %s, %s, %s, %s" % (vr(t0), vr(t0), vr(Sx + r), vr(Sx + r + 1)))
        a("v_max_f32 %s, %s, %s" % (vr(t0), vr(t0), vr(Sx + 15)))
        a("v_mov_b32 %s, %s" % (vr(t1), vr(t0)))
        a("v_permlane32_swap_b32 %s, %s" % (vr(t0), vr(t1)))
        a("v_max_f32 %s, %s, %s" % (vr(t0), vr(t0), vr(t1)))
        set_m(a, QB2[qt] + 1, t0, t1, t2, s_hm)
    for qt in range(2):
        Sx = S[qt][0]
        a("v_mfma_f32_32x32x16_bf16 %s, %s, %s, 0" % (vr(Sx, 16), vr(KA1[0], 4), vr(QB1[qt], 4)))
        a("v_mfma_f32_32x32x16_bf16 %s, %s, %s, %s" % (vr(Sx, 16), vr(KA2[0], 4), vr(QB2[qt], 4), vr(Sx, 16)))
    for qt in range(2):
        for r in range(16):
            a("v_mov_b32 %s, 0" % vr(O[qt] + r))
    for r in range(8):
        a("v_mov_b32 %s, 0" % vr(Pp[1] + r))
    for m in range(2):
        for r in range(4):
            a("v_mov_b32 %s, 0" % vr(VF[1][m] + r))
    a("s_mov_b32 %s, 0" % sr(s_cnt))
    assert lg.q == [("k", 1)] * 3, lg.q

    def half_e(Sb, r0, Pb, p0, mf):
        e = lambda r: a("v_exp_f32 %s, %s" % (vr(Sb + r), vr(Sb + r)))
        c = lambda k: a("v_cvt_pk_bf16_f32 %s, %s, %s" % (vr(Pb + p0 + k), vr(Sb + r0 + 2 * k), vr(Sb + r0 + 2 * k + 1)))
        VAR = os.environ.get("AVAR", "")
        if "m" in VAR:
            mf = ["s_nop 0", "s_nop 0"]
        if "e" in VAR:
            e = lambda r: None
        if "c" in VAR:
            c = lambda k: None
        a(mf[0])
        e(r0); e(r0 + 1); e(r0 + 2); e(r0 + 3); c(0)
        a(mf[1])
        e(r0 + 4); c(1); e(r0 + 5); e(r0 + 6); e(r0 + 7); c(2); c(3)

    if cfg.get("prof"):
        a("s_memtime s[40:41]")
        a("s_memrealtime s[50:51]")
        a("s_waitcnt lgkmcnt(0)")
    lloop = a.newlabel("ALOOP")
    a.flush()
    a.label(lloop)
    for t in range(16):
        par = t & 1
        kt = t % 4
        buf = (t // 4) % 4
        if kt == 0:
            wr_chunk((buf + 1) % 4)
            ld_chunk()
        rd_v(t, par)
        half_e(S[0][par], 0, Pp[0], 0,
               ["v_mfma_f32_32x32x16_bf16 %s, %s, %s, %s" % (vr(O[1], 16), vr(VF[1 - par][m], 4), vr(Pp[1] + 4 * m, 4), vr(O[1], 16)) for m in range(2)])
        lg.wait(("k", 1 - par))
        Sn = S[0][1 - par]
        half_e(S[0][par], 8, Pp[0], 4,
               ["v_mfma_f32_32x32x16_bf16 %s, %s, %s, 0" % (vr(Sn, 16), vr(KA1[1 - par], 4), vr(QB1[0], 4)),
                "v_mfma_f32_32x32x16_bf16 %s, %s, %s, %s" % (vr(Sn, 16), vr(KA2[1 - par], 4), vr(QB2[0], 4), vr(Sn, 16))])
        rd_k(t + 2, par)
        lg.wait(("v", par))
        half_e(S[1][par], 0, Pp[1], 0,
               ["v_mfma_f32_32x32x16_bf16 %s, %s, %s, %s" % (vr(O[0], 16), vr(VF[par][m], 4), vr(Pp[0] + 4 * m, 4), vr(O[0], 16)) for m in range(2)])
        Sn = S[1][1 - par]
        half_e(S[1][par], 8, Pp[1], 4,
               ["v_mfma_f32_32x32x16_bf16 %s, %s, %s, 0" % (vr(Sn, 16), vr(KA1[1 - par], 4), vr(QB1[1], 4)),
                "v_mfma_f32_32x32x16_bf16 %s, %s, %s, %s" % (vr(Sn, 16), vr(KA2[1 - par], 4), vr(QB2[1], 4), vr(Sn, 16))])
        if kt == 1:
            lg.wait("wr")
            a("s_barrier")
    assert lg.q == [("k", 1)] * 3, lg.q
    a("s_add_u32 %s, %s, 1" % (sr(s_cnt), sr(s_cnt)))
    a("s_cmp_lt_u32 %s, 4" % sr(s_cnt))
    a.flush()
    a("s_cbranch_scc1 %s" % lloop)
    if cfg.get("prof"):
        a("s_memtime s[42:43]")
        a("s_memrealtime s[52:53]")
        a("s_load_dwordx2 s[44:45], s[0:1], 96")
        a("s_waitcnt lgkmcnt(0)")
        a("s_sub_u32 s42, s42, s40")
        a("s_sub_u32 s52, s52, s50")
        a("s_mov_b32 s46, 256")
        a("s_mov_b32 s47, 0x00020000")
        a("v_mov_b32 %s, s42" % vr(t0))
        a("v_lshlrev_b32 %s, 2, s2" % vr(t1))
        a("v_cmp_eq_u32 vcc, 0, v0")
        a("s_and_saveexec_b64 s[48:49], vcc")
        a("buffer_store_dword %s, %s, s[44:47], 0 offen" % (vr(t0), vr(t1)))
        a("v_mov_b32 %s, s52" % vr(t0))
        a("buffer_store_dword %s, %s, s[44:47], 0 offen offset:128" % (vr(t0), vr(t1)))
        a("s_mov_b64 exec, s[48:49]")
    for m in range(2):
        a("v_mfma_f32_32x32x16_bf16 %s, %s, %s, %s" % (vr(O[1], 16), vr(VF[1][m], 4), vr(Pp[1] + 4 * m, 4), vr(O[1], 16)))
    a("s_waitcnt vmcnt(0) lgkmcnt(0)")
    a("v_bfe_u32 %s, v0, 5, 1" % vr(t0))
    a("v_lshl_add_u32 %s, %s, 3, %s" % (vr(vOa), vr(t0), vr(vOa)))
    a("s_mul_i32 %s, %s, 36" % (sr(st + 3), sr(s_head)))
    for qt in range(2):
        Ox = O[qt]
        a("v_mov_b32 %s, %s" % (vr(t1), vr(Ox + 10)))
        a("v_mov_b32 %s, %s" % (vr(t2), vr(Ox + 10)))
        a("v_permlane32_swap_b32 %s, %s" % (vr(t1), vr(t2)))
        a("v_rcp_f32 %s, %s" % (vr(t1), vr(t1)))
        for r in range(10):
            a("v_mul_f32 %s, %s, %s" % (vr(Ox + r), vr(t1), vr(Ox + r)))
        for p_ in range(5):
            a("v_cvt_pk_bf16_f32 %s, %s, %s" % (vr(Ox + p_), vr(Ox + 2 * p_), vr(Ox + 2 * p_ + 1)))
        a("buffer_store_dwordx2 %s, %s, %s, %s offen" % (vr(Ox, 2), vr(vOa), sr(sO, 4), sr(st + 3)))
        a("buffer_store_dwordx2 %s, %s, %s, %s offen offset:16" % (vr(Ox + 2, 2), vr(vOa), sr(sO, 4), sr(st + 3)))
        a("s_mov_b64 exec, %s" % sr(s_hm, 2))
        a("buffer_store_dword %s, %s, %s, %s offen offset:32" % (vr(Ox + 4), vr(vOa), sr(sO, 4), sr(st + 3)))
        a("s_mov_b64 exec, -1")
        a("s_add_u32 %s, %s, %d" % (sr(st + 3), sr(st + 3), 32 * 1152))


def set_m(a, dst, vM, t1, t2, s_hm):
    a("v_cvt_pk_bf16_f32 %s, %s, %s" % (vr(t1), vr(vM), vr(vM)))
    a("v_lshlrev_b32 %s, 16, %s" % (vr(t1), vr(t1)))
    a("v_sub_f32 %s, %s, %s" % (vr(t2), vr(vM), vr(t1)))
    a("v_cvt_pk_bf16_f32 %s, -%s, -%s" % (vr(t2), vr(t1), vr(t2)))
    a("v_cndmask_b32 %s, 0, %s, %s" % (vr(dst), vr(t2), sr(s_hm, 2)))


def kernel_attn(a, name):
    a.raw(".globl %s" % name)
    a.raw(".p2align 8")
    a.raw(".type %s,@function" % name)
    a.label(name)
    lend = a.newlabel("END")
    a("s_cmp_ge_u32 s2, 256")
    a("s_cbranch_scc1 %s" % lend)
    a("s_load_dwordx2 s[24:25], s[0:1], 104")
    a("s_waitcnt lgkmcnt(0)")
    make_srd(a, 4, 24, 1728 * 4096, WS_QKVT)
    make_srd(a, 8, 24, 2048 * 1152, WS_O)
    a("s_and_b32 s26, s2, 7")
    a("s_lshr_b32 s27, s2, 3")
    a("s_and_b32 s27, s27, 3")
    a("s_lshl_b32 s27, s27, 3")
    a("s_add_u32 s26, s26, s27")
    a("s_lshr_b32 s27, s2, 5")
    a("s_lshl_b32 s27, s27, 8")
    c = dict(sW=4, sO=8, s_head=26, s_q0=27, s_tmp=28, prof=PROF)
    a("s_mul_i32 s30, s26, 18")
    a("s_add_u32 s30, s30, 576")
    attn_role(a, c)
    a.label(lend)
    a("s_endpgm")
    return dict(name=name, grid=256, lds=c["lds_bytes"], vgprs=c["vgprs"])


def prep_role(a, cfg):
    s_wg = cfg["s_wg"]
    a("s_load_dwordx2 s[20:21], s[0:1], 0")
    a("s_load_dwordx2 s[22:23], s[0:1], 80")
    a("s_load_dwordx2 s[24:25], s[0:1], 104")
    a("v_lshrrev_b32 v1, 6, v0")
    a("v_readfirstlane_b32 s26, v1")
    a("s_waitcnt lgkmcnt(0)")
    make_srd(a, 4, 20, 2048 * 1152)
    make_srd(a, 8, 24, 576 * 4096, WS_XT)
    make_srd(a, 12, 24, 8192, WS_G)
    a("s_mul_i32 s27, s26, 288")
    a("s_add_u32 s22, s22, s27")
    a("s_addc_u32 s23, s23, 0")
    for i in range(9):
        a("s_load_dwordx8 s[%d:%d], s[22:23], %d" % (28 + 8 * i, 35 + 8 * i, 32 * i))
    a("v_and_b32 v1, 63, v0")
    a("s_lshl_b32 s16, %s, 6" % sr(s_wg))
    a("v_add_u32 v1, s16, v1")
    a("v_mul_u32_u24 v2, 1152, v1")
    a("v_add_u32 v2, s27, v2")
    for i in range(18):
        a("buffer_load_dwordx4 v[%d:%d], v2, s[4:7], 0 offen offset:%d" % (16 + 4 * i, 19 + 4 * i, 16 * i))
    a("s_mul_i32 s17, s26, %d" % (144 * 4096))
    a("v_lshlrev_b32 v3, 1, v1")
    a("v_add_u32 v3, s17, v3")
    a("v_mov_b32 v4, 0")
    a("s_waitcnt lgkmcnt(0)")
    for r in range(72):
        if r % 4 == 0:
            a("s_waitcnt vmcnt(%d)" % (17 - r // 4))
        x = 16 + r
        a("s_mov_b32 s18, 0x%x" % (2 * r * 4096))
        a("buffer_store_short v%d, v3, s[8:11], s18 offen" % x)
        a("s_mov_b32 s19, 0x%x" % ((2 * r + 1) * 4096))
        a("buffer_store_short_d16_hi v%d, v3, s[8:11], s19 offen" % x)
        a("v_lshlrev_b32 v5, 16, v%d" % x)
        a("v_and_b32 v6, 0xffff0000, v%d" % x)
        a("s_lshl_b32 s18, s%d, 16" % (28 + r))
        a("s_and_b32 s19, s%d, 0xffff0000" % (28 + r))
        a("v_mul_f32 v5, s18, v5")
        a("v_mul_f32 v6, s19, v6")
        a("v_cvt_pk_bf16_f32 v7, v5, v6")
        a("v_lshlrev_b32 v5, 16, v7")
        a("v_and_b32 v6, 0xffff0000, v7")
        a("v_add_f32 v4, v4, v5")
        a("v_add_f32 v4, v4, v6")
    a("v_lshlrev_b32 v5, 2, v0")
    a("ds_write_b32 v5, v4")
    a("s_waitcnt lgkmcnt(0)")
    a("s_barrier")
    lskip = a.newlabel("PREPX")
    a("s_cmp_lg_u32 s26, 0")
    a("s_cbranch_scc1 %s" % lskip)
    a("ds_read_b32 v6, v5")
    a("ds_read_b32 v7, v5 offset:256")
    a("ds_read_b32 v8, v5 offset:512")
    a("ds_read_b32 v9, v5 offset:768")
    a("s_waitcnt lgkmcnt(0)")
    a("v_add_f32 v6, v6, v7")
    a("v_add_f32 v8, v8, v9")
    a("v_add_f32 v6, v6, v8")
    a("v_cvt_pk_bf16_f32 v6, v6, v6")
    a("v_and_b32 v6, 0xffff0000, v6")
    a("v_mul_f32 v6, 0xbfb8aa3b, v6")
    a("v_exp_f32 v6, v6")
    a("v_add_f32 v6, 1.0, v6")
    a("v_rcp_f32 v6, v6")
    a("v_cvt_pk_bf16_f32 v6, v6, v6")
    a("v_and_b32 v6, 0xffff0000, v6")
    a("v_lshlrev_b32 v7, 2, v1")
    a("buffer_store_dword v6, v7, s[12:15], 0 offen")
    a.label(lskip)
    a("s_waitcnt vmcnt(0)")
    cfg["vgprs"] = 88
    cfg["lds_bytes"] = 1024


def kernel_prep(a, name):
    a.raw(".globl %s" % name)
    a.raw(".p2align 8")
    a.raw(".type %s,@function" % name)
    a.label(name)
    lend = a.newlabel("END")
    a("s_cmp_ge_u32 s2, 32")
    a("s_cbranch_scc1 %s" % lend)
    c = dict(s_wg=2)
    prep_role(a, c)
    a.label(lend)
    a("s_endpgm")
    return dict(name=name, grid=32, lds=c["lds_bytes"], vgprs=c["vgprs"])


def hi_rows():
    rows = []
    for c in range(2):
        for r in range(8):
            rows.append(128 * c + r)
    for c in (2, 3):
        for r in (0, 2, 4, 6):
            rows.append(128 * c + r)
    for c in (4, 5, 6, 7):
        for r in (0, 4):
            rows.append(128 * c + r)
    for c in range(8, 16):
        rows.append(128 * c)
    rows.append(2048)
    while len(rows) < 48:
        rows.append(0)
    return rows


LOG2E = f32bits(1.4426950408889634)
INV2PI = f32bits(0.15915494309189535)


def kgen_role(a, cfg):
    s_ch = cfg["s_ch"]
    a("s_load_dwordx8 s[20:27], s[0:1], 32")
    a("s_load_dwordx2 s[28:29], s[0:1], 64")
    a("s_load_dwordx2 s[30:31], s[0:1], 104")
    a("s_waitcnt lgkmcnt(0)")
    for i in range(4):
        make_srd(a, 4 + 4 * i, 20 + 2 * i, 576 * 256)
    a("s_lshr_b32 s32, %s, 1" % sr(s_ch))
    a("s_lshl_b32 s32, s32, 2")
    a("s_load_dword s33, s[28:29], s32")
    a("v_and_b32 v1, 15, v0")
    a("v_bfe_u32 v2, v0, 4, 2")
    a("v_lshrrev_b32 v3, 6, v0")
    a("v_lshlrev_b32 v4, 6, v3")
    a("v_lshl_add_u32 v4, v2, 4, v4")
    a("s_lshl_b32 s34, %s, 8" % sr(s_ch))
    a("v_add_u32 v4, s34, v4")
    for i in range(4):
        a("buffer_load_dwordx4 v[%d:%d], v4, s[%d:%d], 0 offen" % (16 + 4 * i, 19 + 4 * i, 4 + 4 * i, 7 + 4 * i))
    rows = hi_rows()
    a("v_lshrrev_b32 v5, 3, v1")
    a("v_lshlrev_b32 v5, 7, v5")
    a("v_and_b32 v6, 7, v1")
    a("v_add_u32 v5, v5, v6")
    a("v_cvt_f32_u32 v8, v5")
    a("v_lshrrev_b32 v5, 2, v1")
    a("v_add_u32 v5, 2, v5")
    a("v_lshlrev_b32 v5, 7, v5")
    a("v_and_b32 v6, 3, v1")
    a("v_lshl_add_u32 v5, v6, 1, v5")
    a("v_lshrrev_b32 v6, 1, v1")
    a("v_lshlrev_b32 v6, 7, v6")
    a("v_and_b32 v7, 1, v1")
    a("v_lshl_add_u32 v6, v7, 2, v6")
    a("v_cmp_gt_u32 vcc, 8, v1")
    a("v_cndmask_b32 v5, v6, v5, vcc")
    a("v_cvt_f32_u32 v9, v5")
    a("v_add_u32 v5, 8, v1")
    a("v_lshlrev_b32 v5, 7, v5")
    a("v_cmp_ge_u32 vcc, 8, v1")
    a("v_cndmask_b32 v5, 0, v5, vcc")
    a("v_cvt_f32_u32 v10, v5")
    a("v_lshlrev_b32 v5, 3, v1")
    a("v_cvt_f32_u32 v11, v5")
    for mt in range(3):
        for i in range(4):
            a("v_mov_b32 v%d, 0" % (48 + 4 * mt + i))
    a("s_waitcnt lgkmcnt(0)")
    a("s_and_b32 s35, %s, 1" % sr(s_ch))
    a("s_lshl_b32 s36, s33, 16")
    a("s_and_b32 s37, s33, 0xffff0000")
    a("s_cmp_eq_u32 s35, 0")
    a("s_cselect_b32 s36, s36, s37")
    a("v_mov_b32 v12, 0x%x" % LOG2E)
    a("v_mul_f32 v12, s36, v12")
    a("v_exp_f32 v12, v12")
    a("v_cvt_pk_bf16_f32 v12, v12, v12")
    a("v_lshlrev_b32 v12, 16, v12")
    a("s_waitcnt vmcnt(0)")

    def cexp(p):
        a("v_mul_f32 v32, v40, %s" % p)
        a("v_mul_f32 v33, v41, %s" % p)
        a("v_exp_f32 v32, v32")
        a("v_fract_f32 v33, v33")
        a("v_sin_f32 v34, v33")
        a("v_cos_f32 v33, v33")

    for st_ in range(8):
        def unpack(dst, base):
            r = base + st_ // 2
            if st_ & 1:
                a("v_and_b32 %s, 0xffff0000, v%d" % (dst, r))
            else:
                a("v_lshlrev_b32 %s, 16, v%d" % (dst, r))
        unpack("v40", 16)
        unpack("v41", 20)
        unpack("v42", 24)
        unpack("v43", 28)
        a("v_mul_f32 v40, 0x%x, v40" % LOG2E)
        a("v_exp_f32 v40, v40")
        a("v_cvt_pk_bf16_f32 v40, v40, v40")
        a("v_lshlrev_b32 v40, 16, v40")
        a("v_mul_f32 v40, v40, v12")
        a("v_mul_f32 v40, 0x%x, v40" % (LOG2E | 0x80000000))
        a("v_mul_f32 v41, v41, v12")
        a("v_mul_f32 v41, 0x%x, v41" % INV2PI)
        a("v_mul_f32 v42, v42, v12")
        a("v_mul_f32 v43, v43, v12")
        cexp("v11")
        a("v_mul_f32 v44, v42, v33")
        a("v_fma_f32 v44, -v43, v34, v44")
        a("v_mul_f32 v44, v44, v32")
        a("v_mul_f32 v45, v42, v34")
        a("v_fma_f32 v45, v43, v33, v45")
        a("v_mul_f32 v45, -v45, v32")
        for mt in range(3):
            cexp("v%d" % (8 + mt))
            a("v_mul_f32 v35, v32, v33")
            a("v_mul_f32 v36, v32, v34")
            D = "v[%d:%d]" % (48 + 4 * mt, 51 + 4 * mt)
            a("v_mfma_f32_16x16x4_f32 %s, v35, v44, %s" % (D, D))
            a("v_mfma_f32_16x16x4_f32 %s, v36, v45, %s" % (D, D))
    a("v_mul_u32_u24 v5, 3072, v3")
    a("v_lshl_add_u32 v5, v2, 8, v5")
    a("v_lshl_add_u32 v5, v1, 2, v5")
    for mt in range(3):
        for i in range(4):
            a("ds_write_b32 v5, v%d offset:%d" % (48 + 4 * mt + i, (16 * mt + i) * 64))
    a("s_waitcnt lgkmcnt(0)")
    a("s_barrier")
    a("v_lshlrev_b32 v5, 2, v0")
    for e in range(3):
        for w in range(4):
            a("ds_read_b32 v%d, v5 offset:%d" % (60 + 4 * e + w, 1024 * e + 3072 * w))
    a("s_waitcnt lgkmcnt(0)")
    for e in range(3):
        b = 60 + 4 * e
        a("v_add_f32 v%d, v%d, v%d" % (b, b, b + 1))
        a("v_add_f32 v%d, v%d, v%d" % (b + 2, b + 2, b + 3))
        a("v_add_f32 v%d, v%d, v%d" % (b, b, b + 2))
        a("v_mul_f32 v%d, 2.0, v%d" % (b, b))
        a("ds_write_b32 v5, v%d offset:%d" % (b, 12288 + 1024 * e))
    a("s_waitcnt lgkmcnt(0)")
    a("s_barrier")
    a("v_lshlrev_b32 v5, 3, v0")
    a("v_sub_u32 v5, 2047, v5")
    for e in range(8):
        p, c_, r7, kk, t = 20 + 6 * 0, 21, 22, 23, 24
        a("v_subrev_u32 v20, %d, v5" % e)
        a("v_cvt_f32_u32 v20, v20")
        a("v_cvt_pk_bf16_f32 v20, v20, v20")
        a("v_lshlrev_b32 v20, 16, v20")
        a("v_cvt_u32_f32 v20, v20")
        a("v_or_b32 v23, 1, v20")
        a("v_ffbh_u32 v23, v23")
        a("v_sub_u32 v23, 24, v23")
        a("v_med3_i32 v23, v23, 0, 3")
        a("v_lshrrev_b32 v21, 7, v20")
        a("v_and_b32 v22, 7, v20")
        a("v_lshrrev_b32 v22, v23, v22")
        a("v_sub_u32 v24, 3, v23")
        a("v_lshlrev_b32 v21, v24, v21")
        a("v_lshl_add_u32 v21, v23, 3, v21")
        a("v_add_u32 v21, v21, v22")
        a("v_bfe_u32 v22, v20, 3, 4")
        a("v_lshl_add_u32 v21, v21, 4, v22")
        a("v_lshlrev_b32 v21, 2, v21")
        a("ds_read_b32 v%d, v21 offset:12288" % (32 + e))
    a("s_waitcnt lgkmcnt(0)")
    for e in range(4):
        a("v_cvt_pk_bf16_f32 v%d, v%d, v%d" % (44 + e, 32 + 2 * e, 33 + 2 * e))
    make_srd(a, 4, 30, 576 * KR_STRIDE, WS_KR)
    a("s_mul_i32 s34, %s, %d" % (sr(s_ch), KR_STRIDE))
    a("v_lshlrev_b32 v5, 4, v0")
    a("buffer_store_dwordx4 v[44:47], v5, s[4:7], s34 offen")
    a("v_mov_b32 v40, 0")
    a("v_mov_b32 v41, 0")
    a("v_mov_b32 v42, 0")
    a("v_mov_b32 v43, 0")
    a("v_cmp_gt_u32 vcc, 8, v0")
    a("s_and_saveexec_b64 s[38:39], vcc")
    a("s_add_u32 s34, s34, 4096")
    a("buffer_store_dwordx4 v[40:43], v5, s[4:7], s34 offen")
    a("s_mov_b64 exec, s[38:39]")
    a("s_waitcnt vmcnt(0)")
    cfg["vgprs"] = 72
    cfg["lds_bytes"] = 12288 + 3072


def kernel_kgen(a, name):
    a.raw(".globl %s" % name)
    a.raw(".p2align 8")
    a.raw(".type %s,@function" % name)
    a.label(name)
    lend = a.newlabel("END")
    a("s_cmp_ge_u32 s2, 576")
    a("s_cbranch_scc1 %s" % lend)
    c = dict(s_ch=2)
    kgen_role(a, c)
    a.label(lend)
    a("s_endpgm")
    return dict(name=name, grid=576, lds=c["lds_bytes"], vgprs=c["vgprs"])


CU_ROW = 144
CU_SZ = 33 * CU_ROW
KC = 1312
CW = CU_SZ + 8 * KC


def conv_role(a, cfg):
    s_wg = cfg["s_wg"]
    a("s_load_dwordx2 s[22:23], s[0:1], 72")
    a("s_load_dwordx2 s[24:25], s[0:1], 104")
    a("v_lshrrev_b32 v1, 6, v0")
    a("v_readfirstlane_b32 s26, v1")
    a("s_lshl_b32 s27, %s, 2" % sr(s_wg))
    a("s_add_u32 s27, s27, s26")
    a("s_waitcnt lgkmcnt(0)")
    make_srd(a, 4, 24, 576 * KR_STRIDE, WS_KR)
    make_srd(a, 8, 24, 576 * 4096, WS_XT)
    make_srd(a, 12, 24, 576 * 4096, WS_BT)
    a("s_lshr_b32 s28, s27, 1")
    a("s_lshl_b32 s28, s28, 2")
    a("s_load_dword s29, s[22:23], s28")
    a("s_mul_i32 s30, s27, %d" % KR_STRIDE)
    a("s_lshl_b32 s31, s27, 12")
    a("s_mul_i32 s32, s26, %d" % CW)
    a("v_and_b32 v2, 63, v0")
    a("v_lshlrev_b32 v3, 4, v2")
    SG = 120
    a("v_and_b32 v5, 7, v2")
    a("v_lshlrev_b32 v5, 4, v5")
    a("v_lshrrev_b32 v4, 3, v2")
    a("v_lshl_add_u32 v13, v4, 1, v5")
    a("v_mul_u32_u24 v14, %d, v4" % KC)
    a("v_add3_u32 v14, v14, v5, s32")

    def ld_win(w):
        a("s_add_u32 s33, s30, %d" % (2 * (1536 - 512 * w)))
        for k in range(9):
            a("buffer_load_dwordx4 %s, v13, s[4:7], s33 offen offset:%d" % (vr(SG + 4 * k, 4), 128 * k))

    def wr_win():
        for k in range(9):
            a("ds_write_b128 v14, %s offset:%d" % (vr(SG + 4 * k, 4), CU_SZ + 128 * k))

    for k in range(4):
        a("buffer_load_dwordx4 v[%d:%d], v3, s[8:11], s31 offen offset:%d" % (16 + 4 * k, 19 + 4 * k, 1024 * k))
    ld_win(0)
    a("v_cmp_gt_u32 vcc, 8, v2")
    a("s_mov_b64 s[34:35], vcc")
    a("v_mul_u32_u24 v4, %d, v4" % CU_ROW)
    a("v_add3_u32 v4, v4, v5, s32")
    for r in range(4):
        a("v_mov_b32 v%d, 0" % (56 + r))
    a("s_mov_b64 exec, s[34:35]")
    a("ds_write_b128 v4, v[56:59]")
    a("s_mov_b64 exec, -1")
    a("v_and_b32 v6, 31, v2")
    a("v_bfe_u32 v7, v2, 5, 1")
    a("v_and_b32 v8, 7, v6")
    a("v_sub_u32 v8, 7, v8")
    a("v_mul_u32_u24 v8, %d, v8" % KC)
    a("v_lshrrev_b32 v9, 3, v6")
    a("v_sub_u32 v9, v7, v9")
    a("v_lshl_add_u32 v8, v9, 4, v8")
    a("v_add_u32 v8, s32, v8")
    a("v_add_u32 v8, %d, v8" % (CU_SZ + 48))
    a("v_lshlrev_b32 v10, 4, v7")
    a("v_add_u32 v10, s32, v10")
    a("v_mul_u32_u24 v9, %d, v6" % CU_ROW)
    a("v_add_u32 v9, v9, v10")
    a("v_add_u32 v9, %d, v9" % CU_ROW)
    a("s_waitcnt vmcnt(9)")
    for k in range(4):
        a("ds_write_b128 v4, v[%d:%d] offset:%d" % (16 + 4 * k, 19 + 4 * k, CU_ROW + 8 * CU_ROW * k))
    a("s_waitcnt vmcnt(0)")
    wr_win()
    ld_win(1)
    RING = 10
    F0 = 16
    B0 = 56
    AC = 88
    lg = VmQ(a, "lgkmcnt")
    fr = lambda m: vr(F0 + 4 * (m % RING), 4)
    br = lambda par, s_: vr(B0 + 16 * par + 4 * s_, 4)

    def rd_delta(d):
        w = d // 8
        if d > 0:
            a("v_subrev_u32 v9, %d, v9" % CU_ROW)
        a("v_max_i32 v11, v9, v10")
        if d % 8 == 0 and d > 0:
            a("s_waitcnt vmcnt(0)")
            wr_win()
            if w < 3:
                ld_win(w + 1)
        for m in range(4 * d - 1 - (2 if d == 0 else 0), 4 * d + 3):
            a("ds_read_b128 %s, v8 offset:%d" % (fr(m), 960 - 32 * (m - 32 * w))); lg.push(d)
        for s_ in range(4):
            a("ds_read_b128 %s, v11 offset:%d" % (br(d & 1, s_), 32 * s_)); lg.push(d)

    a("s_waitcnt lgkmcnt(0)")
    rd_delta(0)
    for d in range(32):
        if d + 1 < 32:
            rd_delta(d + 1)
        if (d + 1) % 8 == 0 and d + 1 < 32:
            a("s_waitcnt lgkmcnt(15)")
            a("s_waitcnt lgkmcnt(8)")
            lg.q = [x for x in lg.q if x != d]
        else:
            lg.wait(d)
        for s_ in range(4):
            for t in range(2):
                c = "0" if (d == 0 and s_ == 0) else vr(AC + 16 * t, 16)
                a("v_mfma_f32_32x32x16_bf16 %s, %s, %s, %s" % (vr(AC + 16 * t, 16), fr(4 * d + 2 * t - s_), br(d & 1, s_), c))
    a("v_mul_u32_u24 v9, %d, v6" % CU_ROW)
    a("v_lshl_add_u32 v9, v7, 3, v9")
    a("v_add_u32 v9, s32, v9")
    for t in range(2):
        for q in range(4):
            k = 4 * t + q
            a("ds_read_b64 v[%d:%d], v9 offset:%d" % (16 + 2 * k, 17 + 2 * k, CU_ROW + 64 * t + 16 * q))
    a("v_lshlrev_b32 v12, 7, v6")
    a("v_lshl_add_u32 v12, v7, 3, v12")
    a("s_and_b32 s35, s27, 1")
    a("s_lshl_b32 s36, s29, 16")
    a("s_and_b32 s37, s29, 0xffff0000")
    a("s_cmp_eq_u32 s35, 0")
    a("s_cselect_b32 s36, s36, s37")
    a("s_waitcnt lgkmcnt(0)")
    for t in range(2):
        for q in range(4):
            k = 4 * t + q
            for pp in range(2):
                A = AC + 16 * t + 4 * q + 2 * pp
                U = 16 + 2 * k + pp
                a("v_cvt_pk_bf16_f32 v32, v%d, v%d" % (A, A + 1))
                a("v_lshlrev_b32 v33, 16, v%d" % U)
                a("v_and_b32 v34, 0xffff0000, v%d" % U)
                a("v_mul_f32 v33, s36, v33")
                a("v_mul_f32 v34, s36, v34")
                a("v_cvt_pk_bf16_f32 v33, v33, v34")
                a("v_lshlrev_b32 v34, 16, v32")
                a("v_and_b32 v32, 0xffff0000, v32")
                a("v_lshlrev_b32 v35, 16, v33")
                a("v_and_b32 v33, 0xffff0000, v33")
                a("v_add_f32 v34, v34, v35")
                a("v_add_f32 v32, v32, v33")
                a("v_cvt_pk_bf16_f32 v%d, v34, v32" % (A))
            A = AC + 16 * t + 4 * q
            a("v_mov_b32 v%d, v%d" % (A + 1, A + 2))
            a("buffer_store_dwordx2 v[%d:%d], v12, s[12:15], s31 offen offset:%d" % (A, A + 1, 64 * t + 16 * q))
    a("s_waitcnt vmcnt(0)")
    cfg["vgprs"] = 156
    cfg["lds_bytes"] = 4 * CW


def kernel_conv(a, name):
    a.raw(".globl %s" % name)
    a.raw(".p2align 8")
    a.raw(".type %s,@function" % name)
    a.label(name)
    lend = a.newlabel("END")
    a("s_cmp_ge_u32 s2, 144")
    a("s_cbranch_scc1 %s" % lend)
    c = dict(s_wg=2)
    conv_role(a, c)
    a.label(lend)
    a("s_endpgm")
    return dict(name=name, grid=144, lds=c["lds_bytes"], vgprs=c["vgprs"])


def gemm3_pre(a, ctx):
    cfg = ctx["cfg"]
    tm, tn, wn = ctx["tm"], ctx["tn"], ctx["wn"]
    vt0, vt1, vt2, vt3 = ctx["vt"]
    al = ctx["al"]
    s_m0, s_n0 = cfg["s_m0"], cfg["s_n0"]
    G = [[al.get(4, 4) for q in range(4)] for ti in range(tm)]
    Bv = [[[al.get(2, 2) for q in range(4)] for tj in range(tn)] for ti in range(tm)]
    vo = al.get()
    cfg["G"], cfg["Bv"], cfg["vo"] = G, Bv, vo
    a("v_lshrrev_b32 %s, 6, v0" % vr(vt0))
    if wn == 2:
        a("v_lshrrev_b32 %s, 1, %s" % (vr(vt1), vr(vt0)))
        a("v_and_b32 %s, 1, %s" % (vr(vt0), vr(vt0)))
    else:
        a("v_mov_b32 %s, %s" % (vr(vt1), vr(vt0)))
        a("v_mov_b32 %s, 0" % vr(vt0))
    a("v_mul_u32_u24 %s, %d, %s" % (vr(vt0), tn * 32, vr(vt0)))
    a("v_and_b32 %s, 31, v0" % vr(vt2))
    a("v_add3_u32 %s, %s, %s, %s" % (vr(vt0), vr(vt0), vr(vt2), sr(s_n0)))
    a("v_mul_u32_u24 %s, %d, %s" % (vr(vt1), tm * 32, vr(vt1)))
    a("v_bfe_u32 %s, v0, 5, 1" % vr(vt2))
    a("v_lshl_add_u32 %s, %s, 2, %s" % (vr(vt1), vr(vt2), vr(vt1)))
    a("v_add_u32 %s, %s, %s" % (vr(vt1), sr(s_m0), vr(vt1)))
    a("v_lshlrev_b32 %s, 2, %s" % (vr(vt2), vr(vt1)))
    for ti in range(tm):
        for q in range(4):
            a("buffer_load_dwordx4 %s, %s, %s, 0 offen offset:%d" % (vr(G[ti][q], 4), vr(vt2), sr(cfg["sG"], 4), (ti * 32 + 8 * q) * 4))
    a("v_lshlrev_b32 %s, 12, %s" % (vr(vt2), vr(vt0)))
    a("v_lshl_add_u32 %s, %s, 1, %s" % (vr(vt2), vr(vt1), vr(vt2)))
    for ti in range(tm):
        for tj in range(tn):
            a("s_mov_b32 %s, 0x%x" % (sr(cfg["s_tmp"]), tj * 32 * 4096))
            for q in range(4):
                a("buffer_load_dwordx2 %s, %s, %s, %s offen offset:%d" % (vr(Bv[ti][tj][q], 2), vr(vt2), sr(cfg["sBT"], 4), sr(cfg["s_tmp"]), (ti * 32 + 8 * q) * 2))
    a("v_mul_u32_u24 %s, 1152, %s" % (vr(vo), vr(vt1)))
    a("v_lshl_add_u32 %s, %s, 1, %s" % (vr(vo), vr(vt0), vr(vo)))


def gemm3_epi(a, ctx):
    cfg = ctx["cfg"]
    tm, tn = ctx["tm"], ctx["tn"]
    vt0, vt1, vt2, vt3 = ctx["vt"]
    acc = ctx["acc"]
    G, Bv, vo = cfg["G"], cfg["Bv"], cfg["vo"]
    sO = cfg["sO"]
    st = cfg["s_tmp"]
    for ti in range(tm):
        for tj in range(tn):
            A = acc[ti][tj]
            for q in range(4):
                for i in range(4):
                    r = A + 4 * q + i
                    g = G[ti][q] + i
                    b = Bv[ti][tj][q] + (i >> 1)
                    a("v_cvt_pk_bf16_f32 %s, %s, %s" % (vr(r), vr(r), vr(r)))
                    a("v_sub_f32 %s, 1.0, %s" % (vr(vt0), vr(g)))
                    a("v_and_b32 %s, 0xffff0000, %s" % (vr(r), vr(r)))
                    if i & 1:
                        a("v_and_b32 %s, 0xffff0000, %s" % (vr(vt1), vr(b)))
                    else:
                        a("v_lshlrev_b32 %s, 16, %s" % (vr(vt1), vr(b)))
                    a("v_cvt_pk_bf16_f32 %s, %s, %s" % (vr(vt0), vr(vt0), vr(vt0)))
                    a("v_mul_f32 %s, %s, %s" % (vr(r), vr(g), vr(r)))
                    a("v_and_b32 %s, 0xffff0000, %s" % (vr(vt0), vr(vt0)))
                    a("v_mul_f32 %s, %s, %s" % (vr(vt0), vr(vt0), vr(vt1)))
                    a("v_cvt_pk_bf16_f32 %s, %s, %s" % (vr(r), vr(r), vr(vt0)))
                    a("v_lshlrev_b32 %s, 16, %s" % (vr(vt0), vr(r)))
                    a("v_and_b32 %s, 0xffff0000, %s" % (vr(r), vr(r)))
                    a("v_add_f32 %s, %s, %s" % (vr(r), vr(r), vr(vt0)))
                    a("v_cvt_pk_bf16_f32 %s, %s, %s" % (vr(r), vr(r), vr(r)))
                    off = (ti * 32 + 8 * q + i) * 1152 + tj * 64
                    a("s_mov_b32 %s, 0x%x" % (sr(st + 1), off))
                    a("buffer_store_short %s, %s, %s, %s offen" % (vr(r), vr(vo), sr(sO, 4), sr(st + 1)))


def gemm3_role(a, cfg):
    s_wg = cfg["s_wg"]
    a("s_load_dwordx2 s[20:21], s[0:1], 16")
    a("s_load_dwordx2 s[22:23], s[0:1], 88")
    a("s_load_dwordx2 s[24:25], s[0:1], 104")
    a("s_waitcnt lgkmcnt(0)")
    make_srd(a, 4, 24, 2048 * 1152, WS_O)
    make_srd(a, 8, 20, 576 * 1152)
    make_srd(a, 12, 22, 2048 * 1152)
    make_srd(a, 16, 24, 8192, WS_G)
    make_srd(a, 36, 24, 576 * 4096, WS_BT)
    a("s_and_b32 s26, %s, 31" % sr(s_wg))
    a("s_lshl_b32 s26, s26, 6")
    a("s_lshr_b32 s27, %s, 5" % sr(s_wg))
    a("s_lshl_b32 s27, s27, 6")
    c = dict(wm=2, wn=2, tm=1, tn=1, lda=1152, ldb=1152, K=576, sA=4, sB=8, sO=12, sG=16, sBT=36, s_m0=26, s_n0=27, s_tmp=28,
             epi=gemm3_epi, pre=gemm3_pre)
    gemm(a, c)
    a("s_waitcnt vmcnt(0)")
    cfg["vgprs"] = c["vgprs"]
    cfg["lds_bytes"] = c["lds_bytes"]


def kernel_gemm3(a, name):
    a.raw(".globl %s" % name)
    a.raw(".p2align 8")
    a.raw(".type %s,@function" % name)
    a.label(name)
    lend = a.newlabel("END")
    a("s_cmp_ge_u32 s2, 288")
    a("s_cbranch_scc1 %s" % lend)
    c = dict(s_wg=2)
    gemm3_role(a, c)
    a.label(lend)
    a("s_endpgm")
    return dict(name=name, grid=288, lds=c["lds_bytes"], vgprs=c["vgprs"])


HEADER = open("gated_mix__mha_block__ssm_conv_s4d__prompt.s.ref").read().split("; @launch")[0]


def build(kfuncs):
    a = Asm()
    infos = []
    body = Asm()
    for f, nm in kfuncs:
        infos.append(f(body, nm))
    out = HEADER
    for k in infos:
        out += "; @launch kernel=%s grid=(%d,1,1) block=(256,1,1) lds=%d\n" % (k["name"], k["grid"], k["lds"])
    out += '.amdgcn_target "amdgcn-amd-amdhsa--gfx950"\n.text\n'
    out += body.text()
    out += '.section .rodata,"a"\n'
    for k in infos:
        v = (k["vgprs"] + 3) // 4 * 4
        out += ".p2align 6\n.amdhsa_kernel %s\n" % k["name"]
        out += "  .amdhsa_next_free_vgpr %d\n  .amdhsa_next_free_sgpr 102\n  .amdhsa_accum_offset %d\n" % (v, v)
        out += "  .amdhsa_group_segment_fixed_size 0\n  .amdhsa_kernarg_size 112\n  .amdhsa_user_sgpr_count 2\n"
        out += "  .amdhsa_user_sgpr_kernarg_segment_ptr 1\n  .amdhsa_system_sgpr_workgroup_id_x 1\n.end_amdhsa_kernel\n"
    return out


if __name__ == "__main__":
    path = sys.argv[1]
    mode = sys.argv[2] if len(sys.argv) > 2 else "all"
    if mode == "gemm1":
        s = build([(kernel_gemm1, "gemm1_kernel")])
    elif mode == "prep":
        s = build([(kernel_prep, "prep_kernel")])
    elif mode == "kgen":
        s = build([(kernel_kgen, "kgen_kernel")])
    elif mode == "conv":
        s = build([(kernel_prep, "prep_kernel"), (kernel_kgen, "kgen_kernel"), (kernel_conv, "conv_kernel")])
    elif mode == "six":
        s = build([(kernel_gemm1, "gemm1_kernel"), (kernel_prep, "prep_kernel"), (kernel_kgen, "kgen_kernel"), (kernel_attn, "attn_kernel"), (kernel_conv, "conv_kernel"), (kernel_gemm3, "gemm3_kernel")])
    elif mode == "attn":
        s = build([(kernel_gemm1, "gemm1_kernel"), (kernel_attn, "attn_kernel")])
    open(path, "w").write(s)
```

```python
import sys, os
sys.path.insert(0, os.path.dirname(os.path.abspath(__file__)))
from fw import Asm, vr, sr, Alloc

WS_QKVT = 0
WS_O = 8 << 20
WS_XT = 12 << 20
WS_G = 16 << 20
WS_KR = 17 << 20
WS_BT = 20 << 20
KR_STRIDE = 4224

PROF = int(os.environ.get("PROF", "0"))
QSCALE = 0x3EAE1A3D
import struct
def f32bits(x):
    return struct.unpack("<I", struct.pack("<f", x))[0]
QSCALE = f32bits((18 ** -0.5) * 1.4426950408889634)


class VmQ:
    def __init__(self, asm, name):
        self.q = []
        self.asm = asm
        self.name = name

    def push(self, tag):
        self.q.append(tag)

    def wait(self, tag):
        idx = max(i for i, t in enumerate(self.q) if t == tag) if tag in self.q else -1
        if idx < 0:
            return
        n = len(self.q) - 1 - idx
        self.asm("s_waitcnt %s(%d)" % (self.name, n))
        self.q = self.q[idx + 1:]

    def wait_all(self):
        self.asm("s_waitcnt %s(0)" % self.name)
        self.q = []


def make_srd(a, s, ptr_s, size, off=0):
    if off:
        a("s_add_u32 s%d, s%d, 0x%x" % (s, ptr_s, off))
        a("s_addc_u32 s%d, s%d, 0" % (s + 1, ptr_s + 1))
    else:
        a("s_mov_b32 s%d, s%d" % (s, ptr_s))
        a("s_mov_b32 s%d, s%d" % (s + 1, ptr_s + 1))
    a("s_mov_b32 s%d, 0x%x" % (s + 2, size))
    a("s_mov_b32 s%d, 0x00020000" % (s + 3))


def div_small(a, vq, vrem, vc, d, vtmp):
    m = -(-(1 << 16) // d)
    for c in range(0, 1024):
        assert (c * m) >> 16 == c // d
    a("v_mul_u32_u24 %s, %d, %s" % (vr(vq), m, vr(vc)))
    a("v_lshrrev_b32 %s, 16, %s" % (vr(vq), vr(vq)))
    a("v_mul_u32_u24 %s, %d, %s" % (vr(vtmp), d, vr(vq)))
    a("v_sub_u32 %s, %s, %s" % (vr(vrem), vr(vc), vr(vtmp)))


def gemm(a, cfg):
    wm, wn, tm, tn = cfg["wm"], cfg["wn"], cfg["tm"], cfg["tn"]
    Mt, Nt = wm * tm * 32, wn * tn * 32
    lda, ldb, K = cfg["lda"], cfg["ldb"], cfg["K"]
    sA, sB = cfg["sA"], cfg["sB"]
    s_m0, s_n0 = cfg["s_m0"], cfg["s_n0"]
    st = cfg["s_tmp"]
    s_boff, s_mask = st, st + 2
    assert s_mask % 2 == 0
    nst = K // 32
    P = int(os.environ.get("GP", cfg.get("P", 4)))
    SA = 80
    SB = {128: 320, 96: 192, 64: 192}[Nt]
    bufsz = Mt * SA + 32 * SB
    LB = Mt * SA
    cfg["lds_bytes"] = 3 * bufsz
    nchA = Mt * 4
    cprB = Nt // 8
    nchB = 32 * cprB
    nA = -(-nchA // 256)
    nB = -(-nchB // 256)
    al = Alloc(cfg.get("v_start", 1), cfg.get("v_limit", 256))
    vAg = [al.get() for _ in range(nA)]
    vAl = [al.get() for _ in range(nA)]
    vBg = [al.get() for _ in range(nB)]
    vBl = [al.get() for _ in range(nB)]
    vAf = al.get()
    vBf = al.get()
    vt0, vt1, vt2, vt3 = [al.get() for _ in range(4)]
    FA = [[al.get(4, 4) for _ in range(tm)] for _ in range(2)]
    FB = [[al.get(4, 4) for _ in range(tn)] for _ in range(2)]
    acc = [[al.get(16, 4) for _ in range(tn)] for _ in range(tm)]
    stg = [([al.get(4, 4) for _ in range(nA)], [al.get(4, 4) for _ in range(nB)]) for _ in range(P)]
    cfg["vgprs"] = al.hi

    a.comment("gemm address setup Mt=%d Nt=%d" % (Mt, Nt))
    for i in range(nA):
        a("v_lshrrev_b32 %s, 2, v0" % vr(vt0))
        if i:
            a("v_add_u32 %s, %d, %s" % (vr(vt0), 64 * i, vr(vt0)))
        a("v_and_b32 %s, 3, v0" % vr(vt1))
        a("v_lshlrev_b32 %s, 4, %s" % (vr(vt1), vr(vt1)))
        a("v_mul_u32_u24 %s, %d, %s" % (vr(vAl[i]), SA, vr(vt0)))
        a("v_add_u32 %s, %s, %s" % (vr(vAl[i]), vr(vAl[i]), vr(vt1)))
        a("v_add_u32 %s, %s, %s" % (vr(vt0), sr(s_m0), vr(vt0)))
        a("v_mul_u32_u24 %s, %d, %s" % (vr(vAg[i]), lda, vr(vt0)))
        a("v_add_u32 %s, %s, %s" % (vr(vAg[i]), vr(vAg[i]), vr(vt1)))
    for i in range(nB):
        a("v_add_u32 %s, %d, v0" % (vr(vt2), 256 * i))
        if cprB & (cprB - 1) == 0:
            sh = cprB.bit_length() - 1
            a("v_lshrrev_b32 %s, %d, %s" % (vr(vt0), sh, vr(vt2)))
            a("v_and_b32 %s, %d, %s" % (vr(vt1), cprB - 1, vr(vt2)))
        else:
            div_small(a, vt0, vt1, vt2, cprB, vt3)
        a("v_lshlrev_b32 %s, 4, %s" % (vr(vt1), vr(vt1)))
        a("v_mul_u32_u24 %s, %d, %s" % (vr(vBl[i]), SB, vr(vt0)))
        a("v_add_u32 %s, %s, %s" % (vr(vBl[i]), vr(vBl[i]), vr(vt1)))
        a("v_mul_u32_u24 %s, %d, %s" % (vr(vBg[i]), ldb, vr(vt0)))
        a("v_add_u32 %s, %s, %s" % (vr(vBg[i]), vr(vBg[i]), vr(vt1)))
        a("v_add_u32 %s, %s, %s" % (vr(vBg[i]), sr(s_n0), vr(vBg[i])))
        a("v_add_u32 %s, %s, %s" % (vr(vBg[i]), sr(s_n0), vr(vBg[i])))
    partB = (nchB % 256) != 0
    if partB:
        a("v_cmp_gt_u32 vcc, %d, v0" % (nchB % 256))
        a("s_mov_b64 %s, vcc" % sr(s_mask, 2))
    a("v_lshrrev_b32 %s, 6, v0" % vr(vt0))
    if wn == 2:
        a("v_lshrrev_b32 %s, 1, %s" % (vr(vt1), vr(vt0)))
        a("v_and_b32 %s, 1, %s" % (vr(vt0), vr(vt0)))
    else:
        a("v_mov_b32 %s, %s" % (vr(vt1), vr(vt0)))
        a("v_mov_b32 %s, 0" % vr(vt0))
    a("v_mul_u32_u24 %s, %d, %s" % (vr(vt1), tm * 32, vr(vt1)))
    a("v_and_b32 %s, 31, v0" % vr(vt2))
    a("v_add_u32 %s, %s, %s" % (vr(vt1), vr(vt1), vr(vt2)))
    a("v_mul_u32_u24 %s, %d, %s" % (vr(vAf), SA, vr(vt1)))
    a("v_bfe_u32 %s, v0, 5, 1" % vr(vt2))
    a("v_lshl_add_u32 %s, %s, 4, %s" % (vr(vAf), vr(vt2), vr(vAf)))
    a("v_bfe_u32 %s, v0, 2, 2" % vr(vt1))
    a("v_lshl_add_u32 %s, %s, 3, %s" % (vr(vt1), vr(vt2), vr(vt1)))
    a("v_mul_u32_u24 %s, %d, %s" % (vr(vBf), SB, vr(vt1)))
    a("v_mul_u32_u24 %s, %d, %s" % (vr(vt0), tn * 64, vr(vt0)))
    a("v_add_u32 %s, %s, %s" % (vr(vBf), vr(vBf), vr(vt0)))
    a("v_bfe_u32 %s, v0, 4, 1" % vr(vt0))
    a("v_lshl_add_u32 %s, %s, 5, %s" % (vr(vBf), vr(vt0), vr(vBf)))
    a("v_and_b32 %s, 3, v0" % vr(vt0))
    a("v_lshl_add_u32 %s, %s, 3, %s" % (vr(vBf), vr(vt0), vr(vBf)))
    a("v_add_u32 %s, %d, %s" % (vr(vBf), LB, vr(vBf)))

    vm = VmQ(a, "vmcnt")
    lg = VmQ(a, "lgkmcnt")

    def issue_loads(s):
        A_, B_ = stg[s % P]
        for i in range(nA):
            a("buffer_load_dwordx4 %s, %s, %s, 0 offen offset:%d" % (vr(A_[i], 4), vr(vAg[i]), sr(sA, 4), 64 * s))
            vm.push(("ld", s))
        a("s_mov_b32 %s, 0x%x" % (sr(s_boff), 32 * s * ldb))
        for i in range(nB):
            last_part = partB and i == nB - 1
            if last_part:
                a("s_mov_b64 exec, %s" % sr(s_mask, 2))
            a("buffer_load_dwordx4 %s, %s, %s, %s offen" % (vr(B_[i], 4), vr(vBg[i]), sr(sB, 4), sr(s_boff)))
            vm.push(("ld", s))
            if last_part:
                a("s_mov_b64 exec, -1")

    def write_lds(s):
        A_, B_ = stg[s % P]
        base = (s % 3) * bufsz
        vm.wait(("ld", s))
        for i in range(nA):
            a("ds_write_b128 %s, %s offset:%d" % (vr(vAl[i]), vr(A_[i], 4), base))
            lg.push(("wr", s))
        for i in range(nB):
            last_part = partB and i == nB - 1
            if last_part:
                a("s_mov_b64 exec, %s" % sr(s_mask, 2))
            a("ds_write_b128 %s, %s offset:%d" % (vr(vBl[i]), vr(B_[i], 4), base + LB))
            lg.push(("wr", s))
            if last_part:
                a("s_mov_b64 exec, -1")

    def read_frags(s, kk):
        base = (s % 3) * bufsz
        for t in range(tm):
            a("ds_read_b128 %s, %s offset:%d" % (vr(FA[kk][t], 4), vr(vAf), base + t * 32 * SA + kk * 32))
            lg.push(("fr", s, kk))
        for t in range(tn):
            for hf in range(2):
                a("ds_read_b64_tr_b16 %s, %s offset:%d" % (vr(FB[kk][t] + 2 * hf, 2), vr(vBf),
                                                           base + (kk * 16 + 4 * hf) * SB + t * 64))
                lg.push(("fr", s, kk))

    def mfmas(s, kk):
        lg.wait(("fr", s, kk))
        for ti in range(tm):
            for tj in range(tn):
                c = "0" if (s == 0 and kk == 0) else vr(acc[ti][tj], 16)
                a("v_mfma_f32_32x32x16_bf16 %s, %s, %s, %s" % (vr(acc[ti][tj], 16), vr(FA[kk][ti], 4), vr(FB[kk][tj], 4), c))

    if PROF:
        a("s_memtime s[40:41]")
    if cfg.get("pre"):
        cfg["pre"](a, dict(cfg=cfg, vt=[vt0, vt1, vt2, vt3], tm=tm, tn=tn, wm=wm, wn=wn, al=al))
        cfg["vgprs"] = al.hi
    for s in range(P):
        issue_loads(s)
    write_lds(0)
    issue_loads(P) if P < nst else None
    lg.wait_all()
    a("s_barrier")
    if PROF:
        a("s_memtime s[42:43]")
    read_frags(0, 0)
    for s in range(nst):
        if s + 1 < nst:
            write_lds(s + 1)
            if s + 1 + P < nst:
                issue_loads(s + 1 + P)
        read_frags(s, 1)
        mfmas(s, 0)
        if s + 1 < nst:
            lg.wait_all()
            a("s_barrier")
            read_frags(s + 1, 0)
        mfmas(s, 1)
    if PROF:
        a("s_memtime s[44:45]")
    ctx = dict(cfg=cfg, acc=acc, vt=[vt0, vt1, vt2, vt3], tm=tm, tn=tn, wm=wm, wn=wn, al=al,
               free=[r for st_ in stg for r in st_[0] + st_[1]])
    cfg["epi"](a, ctx)
    if PROF:
        a("s_waitcnt vmcnt(0)")
        a("s_memtime s[46:47]")
        a("s_load_dwordx2 s[48:49], s[0:1], 96")
        a("s_waitcnt lgkmcnt(0)")
        a("s_mov_b32 s50, 256")
        a("s_mov_b32 s51, 0x00020000")
        a("v_lshlrev_b32 %s, 4, s2" % vr(vt1))
        a("v_cmp_eq_u32 vcc, 0, v0")
        a("s_and_saveexec_b64 s[52:53], vcc")
        for i, r in enumerate((40, 42, 44, 46)):
            a("v_mov_b32 %s, s%d" % (vr(vt0), r))
            a("buffer_store_dword %s, %s, s[48:51], 0 offen offset:%d" % (vr(vt0), vr(vt1), 4 * i))
        a("s_mov_b64 exec, s[52:53]")


def epi_gemm1(kind):
    def epi(a, ctx):
        cfg = ctx["cfg"]
        tm, tn, wn = ctx["tm"], ctx["tn"], ctx["wn"]
        vt0, vt1, vt2, vt3 = ctx["vt"]
        acc = ctx["acc"]
        sO = cfg["sO"]
        s_m0, s_n0 = cfg["s_m0"], cfg["s_n0"]
        st = cfg["s_tmp"]
        a("v_lshrrev_b32 %s, 6, v0" % vr(vt0))
        if wn == 2:
            a("v_lshrrev_b32 %s, 1, %s" % (vr(vt1), vr(vt0)))
            a("v_and_b32 %s, 1, %s" % (vr(vt0), vr(vt0)))
        else:
            a("v_mov_b32 %s, %s" % (vr(vt1), vr(vt0)))
            a("v_mov_b32 %s, 0" % vr(vt0))
        a("v_mul_u32_u24 %s, %d, %s" % (vr(vt0), tn * 32, vr(vt0)))
        a("v_and_b32 %s, 31, v0" % vr(vt2))
        a("v_add3_u32 %s, %s, %s, %s" % (vr(vt0), vr(vt0), vr(vt2), sr(s_n0)))
        if kind == "qk":
            a("v_readfirstlane_b32 %s, %s" % (sr(st), vr(vt0)))
            a("s_cmp_lt_u32 %s, 576" % sr(st))
            a("s_cselect_b32 %s, 0x%x, 1.0" % (sr(st), QSCALE))
        a("v_lshlrev_b32 %s, 12, %s" % (vr(vt0), vr(vt0)))
        a("v_mul_u32_u24 %s, %d, %s" % (vr(vt1), tm * 32, vr(vt1)))
        a("v_bfe_u32 %s, v0, 5, 1" % vr(vt2))
        a("v_lshl_add_u32 %s, %s, %d, %s" % (vr(vt1), vr(vt2), 2 if kind == "qk" else 3, vr(vt1)))
        a("v_add_u32 %s, %s, %s" % (vr(vt1), sr(s_m0), vr(vt1)))
        a("v_lshl_add_u32 %s, %s, 1, %s" % (vr(vt0), vr(vt1), vr(vt0)))
        for ti in range(tm):
            for tj in range(tn):
                A = acc[ti][tj]
                if kind == "qk":
                    for r in range(16):
                        a("v_mul_f32 %s, %s, %s" % (vr(A + r), sr(st), vr(A + r)))
                for p in range(8):
                    a("v_cvt_pk_bf16_f32 %s, %s, %s" % (vr(A + p), vr(A + 2 * p), vr(A + 2 * p + 1)))
                a("s_mov_b32 %s, 0x%x" % (sr(st + 1), tj * 32 * 4096))
                if kind == "qk":
                    for i in range(4):
                        a("buffer_store_dwordx2 %s, %s, %s, %s offen offset:%d" % (vr(A + 2 * i, 2), vr(vt0), sr(sO, 4), sr(st + 1), ti * 64 + 16 * i))
                else:
                    for m in range(2):
                        a("buffer_store_dwordx4 %s, %s, %s, %s offen offset:%d" % (vr(A + 4 * m, 4), vr(vt0), sr(sO, 4), sr(st + 1), ti * 64 + 32 * m))
    return epi


def kernel_gemm1(a, name):
    a.raw(".globl %s" % name)
    a.raw(".p2align 8")
    a.raw(".type %s,@function" % name)
    a.label(name)
    lend = a.newlabel("END")
    lv = a.newlabel("VPART")
    a("s_cmp_ge_u32 s2, 240")
    a("s_cbranch_scc1 %s" % lend)
    a("s_load_dwordx4 s[20:23], s[0:1], 0")
    a("s_load_dwordx2 s[24:25], s[0:1], 104")
    a("s_waitcnt lgkmcnt(0)")
    make_srd(a, 4, 20, 2048 * 1152)
    make_srd(a, 8, 22, 576 * 3456)
    make_srd(a, 12, 24, 1728 * 4096, WS_QKVT)
    a("s_cmp_ge_u32 s2, 144")
    a("s_cbranch_scc1 %s" % lv)
    a("s_and_b32 s26, s2, 15")
    a("s_lshl_b32 s26, s26, 7")
    a("s_lshr_b32 s27, s2, 4")
    a("s_lshl_b32 s27, s27, 7")
    c1 = dict(wm=2, wn=2, tm=2, tn=2, lda=1152, ldb=3456, K=576, sA=4, sB=8, sO=12, s_m0=26, s_n0=27, s_tmp=28,
              epi=epi_gemm1("qk"))
    gemm(a, c1)
    a("s_endpgm")
    a.label(lv)
    a("s_sub_u32 s27, s2, 144")
    a("s_and_b32 s26, s27, 15")
    a("s_lshl_b32 s26, s26, 7")
    a("s_lshr_b32 s27, s27, 4")
    a("s_mul_i32 s27, s27, 96")
    a("s_add_u32 s27, s27, 1152")
    c2 = dict(wm=4, wn=1, tm=1, tn=3, lda=1152, ldb=3456, K=576, sA=4, sB=8, sO=12, s_m0=26, s_n0=27, s_tmp=28,
              epi=epi_gemm1("v"))
    gemm(a, c2)
    a.label(lend)
    a("s_endpgm")
    return dict(name=name, grid=240, lds=max(c1["lds_bytes"], c2["lds_bytes"]), vgprs=max(c1["vgprs"], c2["vgprs"]))


SK, SV = 320, 272
K_IMG, V_IMG = 0, 20 * 320
ABUF = 20 * 320 + 20 * 272
ONES = 0x3F803F80


def attn_role(a, cfg):
    sW, sO = cfg["sW"], cfg["sO"]
    s_head, s_qb = cfg["s_head"], cfg["s_q0"]
    st = cfg["s_tmp"]
    s_goff, s_cnt, s_r0 = st, st + 1, st + 2
    s_hm = st + 4
    s_m16 = st + 6
    al = Alloc(1, 256)
    vK1, vK2, vV = al.get(), al.get(), al.get()
    sg = [al.get() for _ in range(3)]
    sl = [al.get() for _ in range(3)]
    vt = [al.get() for _ in range(6)]
    vOa = al.get()
    stg = [al.get(4, 4) for _ in range(3)]
    QB1 = [al.get(4, 4) for _ in range(2)]
    QB2 = [al.get(4, 4) for _ in range(2)]
    KA1 = [al.get(4, 4) for _ in range(2)]
    KA2 = [al.get(4, 4) for _ in range(2)]
    VF = [[al.get(4, 4) for _ in range(2)] for _ in range(2)]
    S = [[al.get(16, 4) for _ in range(2)] for _ in range(2)]
    Pp = [al.get(8, 4) for _ in range(2)]
    O = [al.get(16, 4) for _ in range(2)]
    cfg["vgprs"] = al.hi
    cfg["lds_bytes"] = 4 * ABUF
    t0, t1, t2, t3, t4, t5 = vt
    lg = VmQ(a, "lgkmcnt")

    a("v_lshrrev_b32 %s, 6, v0" % vr(t0))
    a("v_and_b32 %s, 1, %s" % (vr(t1), vr(t0)))
    a("v_lshrrev_b32 %s, 1, %s" % (vr(t2), vr(t0)))
    a("v_bfe_u32 %s, v0, 4, 2" % vr(t3))
    a("v_mad_u32_u24 %s, %s, 9, %s" % (vr(t3), vr(t1), vr(t3)))
    a("v_and_b32 %s, 15, v0" % vr(t4))
    a("v_lshlrev_b32 %s, 4, %s" % (vr(t4), vr(t4)))
    a("v_mul_u32_u24 %s, %d, %s" % (vr(t5), SK - SV, vr(t2)))
    a("v_sub_u32 %s, %d, %s" % (vr(t5), SK, vr(t5)))
    a("v_mul_u32_u24 %s, %d, %s" % (vr(t0), V_IMG, vr(t2)))
    a("v_add_u32 %s, %s, %s" % (vr(t0), vr(t0), vr(t4)))
    a("v_mul_u32_u24 %s, 576, %s" % (vr(t2), vr(t2)))
    a("v_add_u32 %s, %s, %s" % (vr(t2), sr(s_r0), vr(t2)))
    for i in range(3):
        a("v_add_u32 %s, %d, %s" % (vr(t1), 4 * i, vr(t3)))
        a("v_mul_u32_u24 %s, %s, %s" % (vr(sl[i]), vr(t1), vr(t5)))
        a("v_add_u32 %s, %s, %s" % (vr(sl[i]), vr(sl[i]), vr(t0)))
        a("v_add_u32 %s, %s, %s" % (vr(sg[i]), vr(t1), vr(t2)))
        a("v_lshlrev_b32 %s, 12, %s" % (vr(sg[i]), vr(sg[i])))
        a("v_add_u32 %s, %s, %s" % (vr(sg[i]), vr(sg[i]), vr(t4)))
    a("v_bfe_u32 %s, v0, 5, 1" % vr(t0))
    a("v_bfe_u32 %s, v0, 2, 2" % vr(t1))
    a("v_bfe_u32 %s, v0, 4, 1" % vr(t2))
    a("v_and_b32 %s, 3, v0" % vr(t3))
    a("v_lshlrev_b32 %s, 3, %s" % (vr(t3), vr(t3)))
    a("v_lshl_add_u32 %s, %s, 5, %s" % (vr(t3), vr(t2), vr(t3)))
    a("v_lshl_add_u32 %s, %s, 3, %s" % (vr(t4), vr(t0), vr(t1)))
    a("v_mul_u32_u24 %s, %d, %s" % (vr(vK1), SK, vr(t4)))
    a("v_add_u32 %s, %s, %s" % (vr(vK1), vr(vK1), vr(t3)))
    a("v_add_u32 %s, 16, %s" % (vr(t4), vr(t1)))
    a("v_mul_u32_u24 %s, %d, %s" % (vr(vK2), SK, vr(t4)))
    a("v_add_u32 %s, %s, %s" % (vr(vK2), vr(vK2), vr(t3)))
    a("v_and_b32 %s, 31, v0" % vr(t4))
    a("v_min_u32 %s, 19, %s" % (vr(t4), vr(t4)))
    a("v_mul_u32_u24 %s, %d, %s" % (vr(vV), SV, vr(t4)))
    a("v_lshl_add_u32 %s, %s, 4, %s" % (vr(vV), vr(t0), vr(vV)))
    a("v_add_u32 %s, %d, %s" % (vr(vV), V_IMG, vr(vV)))
    a("v_cmp_eq_u32 vcc, 0, %s" % vr(t0))
    a("s_mov_b64 %s, vcc" % sr(s_hm, 2))
    a("v_and_b32 %s, 63, v0" % vr(t1))
    a("v_cmp_gt_u32 vcc, 16, %s" % vr(t1))
    a("s_mov_b64 %s, vcc" % sr(s_m16, 2))

    def ld_chunk():
        for i in range(3):
            if i == 2:
                a("s_mov_b64 exec, %s" % sr(s_m16, 2))
            a("buffer_load_dwordx4 %s, %s, %s, %s offen" % (vr(stg[i], 4), vr(sg[i]), sr(sW, 4), sr(s_goff)))
            if i == 2:
                a("s_mov_b64 exec, -1")
        a("s_add_u32 %s, %s, 256" % (sr(s_goff), sr(s_goff)))

    def wr_chunk(buf):
        a("s_waitcnt vmcnt(0)")
        for i in range(3):
            if i == 2:
                a("s_mov_b64 exec, %s" % sr(s_m16, 2))
            a("ds_write_b128 %s, %s offset:%d" % (vr(sl[i]), vr(stg[i], 4), buf * ABUF))
            lg.push("wr")
            if i == 2:
                a("s_mov_b64 exec, -1")

    def rd_k(tile, par):
        buf, kt = (tile // 4) % 4, tile % 4
        off = buf * ABUF + K_IMG + kt * 64
        a("ds_read_b64_tr_b16 %s, %s offset:%d" % (vr(KA1[par], 2), vr(vK1), off)); lg.push(("k", par))
        a("ds_read_b64_tr_b16 %s, %s offset:%d" % (vr(KA1[par] + 2, 2), vr(vK1), off + 4 * SK)); lg.push(("k", par))
        a("ds_read_b64_tr_b16 %s, %s offset:%d" % (vr(KA2[par], 2), vr(vK2), off)); lg.push(("k", par))

    def rd_v(tile, par):
        buf, kt = (tile // 4) % 4, tile % 4
        off = buf * ABUF + kt * 64
        for m in range(2):
            a("ds_read_b128 %s, %s offset:%d" % (vr(VF[par][m], 4), vr(vV), off + 32 * m)); lg.push(("v", par))

    a("s_mov_b32 %s, 0" % sr(s_goff))
    ld_chunk()
    a("v_lshrrev_b32 %s, 6, v0" % vr(t1))
    a("v_lshlrev_b32 %s, 6, %s" % (vr(t1), vr(t1)))
    a("v_and_b32 %s, 31, v0" % vr(t2))
    a("v_add3_u32 %s, %s, %s, %s" % (vr(t1), vr(t1), vr(t2), sr(s_qb)))
    a("v_mul_u32_u24 %s, 1152, %s" % (vr(vOa), vr(t1)))
    a("v_lshlrev_b32 %s, 1, %s" % (vr(t1), vr(t1)))
    a("v_lshl_add_u32 %s, %s, 15, %s" % (vr(t2), vr(t0), vr(t1)))
    a("s_sub_u32 %s, %s, 576" % (sr(s_cnt), sr(s_r0)))
    a("s_lshl_b32 %s, %s, 12" % (sr(s_cnt), sr(s_cnt)))
    QT = [S[0][1], S[1][1]]
    for qt in range(2):
        for j in range(8):
            a("s_add_u32 %s, %s, %d" % (sr(st + 3), sr(s_cnt), j * 4096 + qt * 64))
            a("buffer_load_ushort %s, %s, %s, %s offen" % (vr(QT[qt] + j), vr(t2), sr(sW, 4), sr(st + 3)))
        for j in range(2):
            a("s_add_u32 %s, %s, %d" % (sr(st + 3), sr(s_cnt), (16 + j) * 4096 + qt * 64))
            a("buffer_load_ushort %s, %s, %s, %s offen" % (vr(QT[qt] + 8 + j), vr(t1), sr(sW, 4), sr(st + 3)))
        for r in range(1, 4):
            a("v_mov_b32 %s, 0" % vr(QB2[qt] + r))
    for p_ in range(2):
        a("v_mov_b32 %s, 0" % vr(KA2[p_] + 2))
        a("v_mov_b32 %s, 0" % vr(KA2[p_] + 3))
    a("v_bfe_u32 %s, v0, 4, 2" % vr(t3))
    a("v_lshrrev_b32 %s, 1, %s" % (vr(t4), vr(t3)))
    a("v_and_b32 %s, 1, %s" % (vr(t3), vr(t3)))
    a("v_add_u32 %s, 18, %s" % (vr(t5), vr(t3)))
    a("v_mul_u32_u24 %s, %d, %s" % (vr(t2), SK, vr(t5)))
    a("v_mul_u32_u24 %s, %d, %s" % (vr(t5), SV, vr(t5)))
    a("v_add_u32 %s, %d, %s" % (vr(t5), V_IMG, vr(t5)))
    a("v_cmp_eq_u32 vcc, 1, %s" % vr(t4))
    a("v_cndmask_b32 %s, %s, %s, vcc" % (vr(t2), vr(t2), vr(t5)))
    a("v_and_b32 %s, 15, v0" % vr(t5))
    a("v_lshl_add_u32 %s, %s, 4, %s" % (vr(t2), vr(t5), vr(t2)))
    a("v_lshrrev_b32 %s, 6, v0" % vr(t5))
    a("v_mul_u32_u24 %s, %d, %s" % (vr(t5), ABUF, vr(t5)))
    a("v_add_u32 %s, %s, %s" % (vr(t2), vr(t2), vr(t5)))
    a("v_and_b32 %s, %s, %s" % (vr(t3), vr(t3), vr(t4)))
    a("v_cmp_eq_u32 vcc, 0, %s" % vr(t3))
    a("v_mov_b32 %s, 0x%x" % (vr(t3), ONES))
    a("v_cndmask_b32 %s, 0, %s, vcc" % (vr(t3), vr(t3)))
    a("v_mov_b32 %s, %s" % (vr(S[0][0]), vr(t3)))
    a("v_mov_b32 %s, %s" % (vr(S[0][0] + 1), vr(t3)))
    a("v_mov_b32 %s, %s" % (vr(S[0][0] + 2), vr(t3)))
    a("v_mov_b32 %s, %s" % (vr(S[0][0] + 3), vr(t3)))
    a("ds_write_b128 %s, %s" % (vr(t2), vr(S[0][0], 4)))
    wr_chunk(0)
    ld_chunk()
    for qt in range(2):
        for j in range(4):
            a("v_lshl_or_b32 %s, %s, 16, %s" % (vr(QB1[qt] + j), vr(QT[qt] + 2 * j + 1), vr(QT[qt] + 2 * j)))
        a("v_lshl_or_b32 %s, %s, 16, %s" % (vr(QB2[qt]), vr(QT[qt] + 9), vr(QT[qt] + 8)))
        a("v_cndmask_b32 %s, 0, %s, %s" % (vr(QB2[qt]), vr(QB2[qt]), sr(s_hm, 2)))
    a("s_waitcnt lgkmcnt(0)")
    lg.q = []
    a("s_barrier")
    rd_k(0, 0)
    rd_k(1, 1)
    lg.wait(("k", 0))
    for qt in range(2):
        Sx = S[qt][0]
        a("v_mfma_f32_32x32x16_bf16 %s, %s, %s, 0" % (vr(Sx, 16), vr(KA1[0], 4), vr(QB1[qt], 4)))
        a("v_mfma_f32_32x32x16_bf16 %s, %s, %s, %s" % (vr(Sx, 16), vr(KA2[0], 4), vr(QB2[qt], 4), vr(Sx, 16)))
    for qt in range(2):
        Sx = S[qt][0]
        a("v_max3_f32 %s, %s, %s, %s" % (vr(t0), vr(Sx), vr(Sx + 1), vr(Sx + 2)))
        for r in range(3, 15, 2):
            a("v_max3_f32 %s, %s, %s, %s" % (vr(t0), vr(t0), vr(Sx + r), vr(Sx + r + 1)))
        a("v_max_f32 %s, %s, %s" % (vr(t0), vr(t0), vr(Sx + 15)))
        a("v_mov_b32 %s, %s" % (vr(t1), vr(t0)))
        a("v_permlane32_swap_b32 %s, %s" % (vr(t0), vr(t1)))
        a("v_max_f32 %s, %s, %s" % (vr(t0), vr(t0), vr(t1)))
        set_m(a, QB2[qt] + 1, t0, t1, t2, s_hm)
    for qt in range(2):
        Sx = S[qt][0]
        a("v_mfma_f32_32x32x16_bf16 %s, %s, %s, 0" % (vr(Sx, 16), vr(KA1[0], 4), vr(QB1[qt], 4)))
        a("v_mfma_f32_32x32x16_bf16 %s, %s, %s, %s" % (vr(Sx, 16), vr(KA2[0], 4), vr(QB2[qt], 4), vr(Sx, 16)))
    for qt in range(2):
        for r in range(16):
            a("v_mov_b32 %s, 0" % vr(O[qt] + r))
    for r in range(8):
        a("v_mov_b32 %s, 0" % vr(Pp[1] + r))
    for m in range(2):
        for r in range(4):
            a("v_mov_b32 %s, 0" % vr(VF[1][m] + r))
    a("s_mov_b32 %s, 0" % sr(s_cnt))
    assert lg.q == [("k", 1)] * 3, lg.q

    def half_e(Sb, r0, Pb, p0, mf):
        e = lambda r: a("v_exp_f32 %s, %s" % (vr(Sb + r), vr(Sb + r)))
        c = lambda k: a("v_cvt_pk_bf16_f32 %s, %s, %s" % (vr(Pb + p0 + k), vr(Sb + r0 + 2 * k), vr(Sb + r0 + 2 * k + 1)))
        VAR = os.environ.get("AVAR", "")
        if "m" in VAR:
            mf = ["s_nop 0", "s_nop 0"]
        if "e" in VAR:
            e = lambda r: None
        if "c" in VAR:
            c = lambda k: None
        a(mf[0])
        e(r0); e(r0 + 1); e(r0 + 2); e(r0 + 3); c(0)
        a(mf[1])
        e(r0 + 4); c(1); e(r0 + 5); e(r0 + 6); e(r0 + 7); c(2); c(3)

    if cfg.get("prof"):
        a("s_memtime s[40:41]")
        a("s_memrealtime s[50:51]")
        a("s_waitcnt lgkmcnt(0)")
    lloop = a.newlabel("ALOOP")
    a.flush()
    a.label(lloop)
    for t in range(16):
        par = t & 1
        kt = t % 4
        buf = (t // 4) % 4
        if kt == 0:
            wr_chunk((buf + 1) % 4)
            ld_chunk()
        rd_v(t, par)
        half_e(S[0][par], 0, Pp[0], 0,
               ["v_mfma_f32_32x32x16_bf16 %s, %s, %s, %s" % (vr(O[1], 16), vr(VF[1 - par][m], 4), vr(Pp[1] + 4 * m, 4), vr(O[1], 16)) for m in range(2)])
        lg.wait(("k", 1 - par))
        Sn = S[0][1 - par]
        half_e(S[0][par], 8, Pp[0], 4,
               ["v_mfma_f32_32x32x16_bf16 %s, %s, %s, 0" % (vr(Sn, 16), vr(KA1[1 - par], 4), vr(QB1[0], 4)),
                "v_mfma_f32_32x32x16_bf16 %s, %s, %s, %s" % (vr(Sn, 16), vr(KA2[1 - par], 4), vr(QB2[0], 4), vr(Sn, 16))])
        rd_k(t + 2, par)
        lg.wait(("v", par))
        half_e(S[1][par], 0, Pp[1], 0,
               ["v_mfma_f32_32x32x16_bf16 %s, %s, %s, %s" % (vr(O[0], 16), vr(VF[par][m], 4), vr(Pp[0] + 4 * m, 4), vr(O[0], 16)) for m in range(2)])
        Sn = S[1][1 - par]
        half_e(S[1][par], 8, Pp[1], 4,
               ["v_mfma_f32_32x32x16_bf16 %s, %s, %s, 0" % (vr(Sn, 16), vr(KA1[1 - par], 4), vr(QB1[1], 4)),
                "v_mfma_f32_32x32x16_bf16 %s, %s, %s, %s" % (vr(Sn, 16), vr(KA2[1 - par], 4), vr(QB2[1], 4), vr(Sn, 16))])
        if kt == 1:
            lg.wait("wr")
            a("s_barrier")
    assert lg.q == [("k", 1)] * 3, lg.q
    a("s_add_u32 %s, %s, 1" % (sr(s_cnt), sr(s_cnt)))
    a("s_cmp_lt_u32 %s, 4" % sr(s_cnt))
    a.flush()
    a("s_cbranch_scc1 %s" % lloop)
    if cfg.get("prof"):
        a("s_memtime s[42:43]")
        a("s_memrealtime s[52:53]")
        a("s_load_dwordx2 s[44:45], s[0:1], 96")
        a("s_waitcnt lgkmcnt(0)")
        a("s_sub_u32 s42, s42, s40")
        a("s_sub_u32 s52, s52, s50")
        a("s_mov_b32 s46, 256")
        a("s_mov_b32 s47, 0x00020000")
        a("v_mov_b32 %s, s42" % vr(t0))
        a("v_lshlrev_b32 %s, 2, s2" % vr(t1))
        a("v_cmp_eq_u32 vcc, 0, v0")
        a("s_and_saveexec_b64 s[48:49], vcc")
        a("buffer_store_dword %s, %s, s[44:47], 0 offen" % (vr(t0), vr(t1)))
        a("v_mov_b32 %s, s52" % vr(t0))
        a("buffer_store_dword %s, %s, s[44:47], 0 offen offset:128" % (vr(t0), vr(t1)))
        a("s_mov_b64 exec, s[48:49]")
    for m in range(2):
        a("v_mfma_f32_32x32x16_bf16 %s, %s, %s, %s" % (vr(O[1], 16), vr(VF[1][m], 4), vr(Pp[1] + 4 * m, 4), vr(O[1], 16)))
    a("s_waitcnt vmcnt(0) lgkmcnt(0)")
    a("v_bfe_u32 %s, v0, 5, 1" % vr(t0))
    a("v_lshl_add_u32 %s, %s, 3, %s" % (vr(vOa), vr(t0), vr(vOa)))
    a("s_mul_i32 %s, %s, 36" % (sr(st + 3), sr(s_head)))
    for qt in range(2):
        Ox = O[qt]
        a("v_mov_b32 %s, %s" % (vr(t1), vr(Ox + 10)))
        a("v_mov_b32 %s, %s" % (vr(t2), vr(Ox + 10)))
        a("v_permlane32_swap_b32 %s, %s" % (vr(t1), vr(t2)))
        a("v_rcp_f32 %s, %s" % (vr(t1), vr(t1)))
        for r in range(10):
            a("v_mul_f32 %s, %s, %s" % (vr(Ox + r), vr(t1), vr(Ox + r)))
        for p_ in range(5):
            a("v_cvt_pk_bf16_f32 %s, %s, %s" % (vr(Ox + p_), vr(Ox + 2 * p_), vr(Ox + 2 * p_ + 1)))
        a("buffer_store_dwordx2 %s, %s, %s, %s offen" % (vr(Ox, 2), vr(vOa), sr(sO, 4), sr(st + 3)))
        a("buffer_store_dwordx2 %s, %s, %s, %s offen offset:16" % (vr(Ox + 2, 2), vr(vOa), sr(sO, 4), sr(st + 3)))
        a("s_mov_b64 exec, %s" % sr(s_hm, 2))
        a("buffer_store_dword %s, %s, %s, %s offen offset:32" % (vr(Ox + 4), vr(vOa), sr(sO, 4), sr(st + 3)))
        a("s_mov_b64 exec, -1")
        a("s_add_u32 %s, %s, %d" % (sr(st + 3), sr(st + 3), 32 * 1152))


def set_m(a, dst, vM, t1, t2, s_hm):
    a("v_cvt_pk_bf16_f32 %s, %s, %s" % (vr(t1), vr(vM), vr(vM)))
    a("v_lshlrev_b32 %s, 16, %s" % (vr(t1), vr(t1)))
    a("v_sub_f32 %s, %s, %s" % (vr(t2), vr(vM), vr(t1)))
    a("v_cvt_pk_bf16_f32 %s, -%s, -%s" % (vr(t2), vr(t1), vr(t2)))
    a("v_cndmask_b32 %s, 0, %s, %s" % (vr(dst), vr(t2), sr(s_hm, 2)))


def kernel_attn(a, name):
    a.raw(".globl %s" % name)
    a.raw(".p2align 8")
    a.raw(".type %s,@function" % name)
    a.label(name)
    lend = a.newlabel("END")
    a("s_cmp_ge_u32 s2, 256")
    a("s_cbranch_scc1 %s" % lend)
    a("s_load_dwordx2 s[24:25], s[0:1], 104")
    a("s_waitcnt lgkmcnt(0)")
    make_srd(a, 4, 24, 1728 * 4096, WS_QKVT)
    make_srd(a, 8, 24, 2048 * 1152, WS_O)
    a("s_and_b32 s26, s2, 7")
    a("s_lshr_b32 s27, s2, 3")
    a("s_and_b32 s27, s27, 3")
    a("s_lshl_b32 s27, s27, 3")
    a("s_add_u32 s26, s26, s27")
    a("s_lshr_b32 s27, s2, 5")
    a("s_lshl_b32 s27, s27, 8")
    c = dict(sW=4, sO=8, s_head=26, s_q0=27, s_tmp=28, prof=PROF)
    a("s_mul_i32 s30, s26, 18")
    a("s_add_u32 s30, s30, 576")
    attn_role(a, c)
    a.label(lend)
    a("s_endpgm")
    return dict(name=name, grid=256, lds=c["lds_bytes"], vgprs=c["vgprs"])


def prep_role(a, cfg):
    s_wg = cfg["s_wg"]
    a("s_load_dwordx2 s[20:21], s[0:1], 0")
    a("s_load_dwordx2 s[22:23], s[0:1], 80")
    a("s_load_dwordx2 s[24:25], s[0:1], 104")
    a("v_lshrrev_b32 v1, 6, v0")
    a("v_readfirstlane_b32 s26, v1")
    a("s_waitcnt lgkmcnt(0)")
    make_srd(a, 4, 20, 2048 * 1152)
    make_srd(a, 8, 24, 576 * 4096, WS_XT)
    make_srd(a, 12, 24, 8192, WS_G)
    a("s_mul_i32 s27, s26, 288")
    a("s_add_u32 s22, s22, s27")
    a("s_addc_u32 s23, s23, 0")
    for i in range(9):
        a("s_load_dwordx8 s[%d:%d], s[22:23], %d" % (28 + 8 * i, 35 + 8 * i, 32 * i))
    a("v_and_b32 v1, 63, v0")
    a("s_lshl_b32 s16, %s, 6" % sr(s_wg))
    a("v_add_u32 v1, s16, v1")
    a("v_mul_u32_u24 v2, 1152, v1")
    a("v_add_u32 v2, s27, v2")
    for i in range(18):
        a("buffer_load_dwordx4 v[%d:%d], v2, s[4:7], 0 offen offset:%d" % (16 + 4 * i, 19 + 4 * i, 16 * i))
    a("s_mul_i32 s17, s26, %d" % (144 * 4096))
    a("v_lshlrev_b32 v3, 1, v1")
    a("v_add_u32 v3, s17, v3")
    a("v_mov_b32 v4, 0")
    a("s_waitcnt lgkmcnt(0)")
    for r in range(72):
        if r % 4 == 0:
            a("s_waitcnt vmcnt(%d)" % (17 - r // 4))
        x = 16 + r
        a("s_mov_b32 s18, 0x%x" % (2 * r * 4096))
        a("buffer_store_short v%d, v3, s[8:11], s18 offen" % x)
        a("s_mov_b32 s19, 0x%x" % ((2 * r + 1) * 4096))
        a("buffer_store_short_d16_hi v%d, v3, s[8:11], s19 offen" % x)
        a("v_lshlrev_b32 v5, 16, v%d" % x)
        a("v_and_b32 v6, 0xffff0000, v%d" % x)
        a("s_lshl_b32 s18, s%d, 16" % (28 + r))
        a("s_and_b32 s19, s%d, 0xffff0000" % (28 + r))
        a("v_mul_f32 v5, s18, v5")
        a("v_mul_f32 v6, s19, v6")
        a("v_cvt_pk_bf16_f32 v7, v5, v6")
        a("v_lshlrev_b32 v5, 16, v7")
        a("v_and_b32 v6, 0xffff0000, v7")
        a("v_add_f32 v4, v4, v5")
        a("v_add_f32 v4, v4, v6")
    a("v_lshlrev_b32 v5, 2, v0")
    a("ds_write_b32 v5, v4")
    a("s_waitcnt lgkmcnt(0)")
    a("s_barrier")
    lskip = a.newlabel("PREPX")
    a("s_cmp_lg_u32 s26, 0")
    a("s_cbranch_scc1 %s" % lskip)
    a("ds_read_b32 v6, v5")
    a("ds_read_b32 v7, v5 offset:256")
    a("ds_read_b32 v8, v5 offset:512")
    a("ds_read_b32 v9, v5 offset:768")
    a("s_waitcnt lgkmcnt(0)")
    a("v_add_f32 v6, v6, v7")
    a("v_add_f32 v8, v8, v9")
    a("v_add_f32 v6, v6, v8")
    a("v_cvt_pk_bf16_f32 v6, v6, v6")
    a("v_and_b32 v6, 0xffff0000, v6")
    a("v_mul_f32 v6, 0xbfb8aa3b, v6")
    a("v_exp_f32 v6, v6")
    a("v_add_f32 v6, 1.0, v6")
    a("v_rcp_f32 v6, v6")
    a("v_cvt_pk_bf16_f32 v6, v6, v6")
    a("v_and_b32 v6, 0xffff0000, v6")
    a("v_lshlrev_b32 v7, 2, v1")
    a("buffer_store_dword v6, v7, s[12:15], 0 offen")
    a.label(lskip)
    a("s_waitcnt vmcnt(0)")
    cfg["vgprs"] = 88
    cfg["lds_bytes"] = 1024


def kernel_prep(a, name):
    a.raw(".globl %s" % name)
    a.raw(".p2align 8")
    a.raw(".type %s,@function" % name)
    a.label(name)
    lend = a.newlabel("END")
    a("s_cmp_ge_u32 s2, 32")
    a("s_cbranch_scc1 %s" % lend)
    c = dict(s_wg=2)
    prep_role(a, c)
    a.label(lend)
    a("s_endpgm")
    return dict(name=name, grid=32, lds=c["lds_bytes"], vgprs=c["vgprs"])


def hi_rows():
    rows = []
    for c in range(2):
        for r in range(8):
            rows.append(128 * c + r)
    for c in (2, 3):
        for r in (0, 2, 4, 6):
            rows.append(128 * c + r)
    for c in (4, 5, 6, 7):
        for r in (0, 4):
            rows.append(128 * c + r)
    for c in range(8, 16):
        rows.append(128 * c)
    rows.append(2048)
    while len(rows) < 48:
        rows.append(0)
    return rows


LOG2E = f32bits(1.4426950408889634)
INV2PI = f32bits(0.15915494309189535)


def kgen_role(a, cfg):
    s_ch = cfg["s_ch"]
    a("s_load_dwordx8 s[20:27], s[0:1], 32")
    a("s_load_dwordx2 s[28:29], s[0:1], 64")
    a("s_load_dwordx2 s[30:31], s[0:1], 104")
    a("s_waitcnt lgkmcnt(0)")
    for i in range(4):
        make_srd(a, 4 + 4 * i, 20 + 2 * i, 576 * 256)
    a("s_lshr_b32 s32, %s, 1" % sr(s_ch))
    a("s_lshl_b32 s32, s32, 2")
    a("s_load_dword s33, s[28:29], s32")
    a("v_and_b32 v1, 15, v0")
    a("v_bfe_u32 v2, v0, 4, 2")
    a("v_lshrrev_b32 v3, 6, v0")
    a("v_lshlrev_b32 v4, 6, v3")
    a("v_lshl_add_u32 v4, v2, 4, v4")
    a("s_lshl_b32 s34, %s, 8" % sr(s_ch))
    a("v_add_u32 v4, s34, v4")
    for i in range(4):
        a("buffer_load_dwordx4 v[%d:%d], v4, s[%d:%d], 0 offen" % (16 + 4 * i, 19 + 4 * i, 4 + 4 * i, 7 + 4 * i))
    rows = hi_rows()
    a("v_lshrrev_b32 v5, 3, v1")
    a("v_lshlrev_b32 v5, 7, v5")
    a("v_and_b32 v6, 7, v1")
    a("v_add_u32 v5, v5, v6")
    a("v_cvt_f32_u32 v8, v5")
    a("v_lshrrev_b32 v5, 2, v1")
    a("v_add_u32 v5, 2, v5")
    a("v_lshlrev_b32 v5, 7, v5")
    a("v_and_b32 v6, 3, v1")
    a("v_lshl_add_u32 v5, v6, 1, v5")
    a("v_lshrrev_b32 v6, 1, v1")
    a("v_lshlrev_b32 v6, 7, v6")
    a("v_and_b32 v7, 1, v1")
    a("v_lshl_add_u32 v6, v7, 2, v6")
    a("v_cmp_gt_u32 vcc, 8, v1")
    a("v_cndmask_b32 v5, v6, v5, vcc")
    a("v_cvt_f32_u32 v9, v5")
    a("v_add_u32 v5, 8, v1")
    a("v_lshlrev_b32 v5, 7, v5")
    a("v_cmp_ge_u32 vcc, 8, v1")
    a("v_cndmask_b32 v5, 0, v5, vcc")
    a("v_cvt_f32_u32 v10, v5")
    a("v_lshlrev_b32 v5, 3, v1")
    a("v_cvt_f32_u32 v11, v5")
    for mt in range(3):
        for i in range(4):
            a("v_mov_b32 v%d, 0" % (48 + 4 * mt + i))
    a("s_waitcnt lgkmcnt(0)")
    a("s_and_b32 s35, %s, 1" % sr(s_ch))
    a("s_lshl_b32 s36, s33, 16")
    a("s_and_b32 s37, s33, 0xffff0000")
    a("s_cmp_eq_u32 s35, 0")
    a("s_cselect_b32 s36, s36, s37")
    a("v_mov_b32 v12, 0x%x" % LOG2E)
    a("v_mul_f32 v12, s36, v12")
    a("v_exp_f32 v12, v12")
    a("v_cvt_pk_bf16_f32 v12, v12, v12")
    a("v_lshlrev_b32 v12, 16, v12")
    a("s_waitcnt vmcnt(0)")

    def cexp(p):
        a("v_mul_f32 v32, v40, %s" % p)
        a("v_mul_f32 v33, v41, %s" % p)
        a("v_exp_f32 v32, v32")
        a("v_fract_f32 v33, v33")
        a("v_sin_f32 v34, v33")
        a("v_cos_f32 v33, v33")

    for st_ in range(8):
        def unpack(dst, base):
            r = base + st_ // 2
            if st_ & 1:
                a("v_and_b32 %s, 0xffff0000, v%d" % (dst, r))
            else:
                a("v_lshlrev_b32 %s, 16, v%d" % (dst, r))
        unpack("v40", 16)
        unpack("v41", 20)
        unpack("v42", 24)
        unpack("v43", 28)
        a("v_mul_f32 v40, 0x%x, v40" % LOG2E)
        a("v_exp_f32 v40, v40")
        a("v_cvt_pk_bf16_f32 v40, v40, v40")
        a("v_lshlrev_b32 v40, 16, v40")
        a("v_mul_f32 v40, v40, v12")
        a("v_mul_f32 v40, 0x%x, v40" % (LOG2E | 0x80000000))
        a("v_mul_f32 v41, v41, v12")
        a("v_mul_f32 v41, 0x%x, v41" % INV2PI)
        a("v_mul_f32 v42, v42, v12")
        a("v_mul_f32 v43, v43, v12")
        cexp("v11")
        a("v_mul_f32 v44, v42, v33")
        a("v_fma_f32 v44, -v43, v34, v44")
        a("v_mul_f32 v44, v44, v32")
        a("v_mul_f32 v45, v42, v34")
        a("v_fma_f32 v45, v43, v33, v45")
        a("v_mul_f32 v45, -v45, v32")
        for mt in range(3):
            cexp("v%d" % (8 + mt))
            a("v_mul_f32 v35, v32, v33")
            a("v_mul_f32 v36, v32, v34")
            D = "v[%d:%d]" % (48 + 4 * mt, 51 + 4 * mt)
            a("v_mfma_f32_16x16x4_f32 %s, v35, v44, %s" % (D, D))
            a("v_mfma_f32_16x16x4_f32 %s, v36, v45, %s" % (D, D))
    a("v_mul_u32_u24 v5, 3072, v3")
    a("v_lshl_add_u32 v5, v2, 8, v5")
    a("v_lshl_add_u32 v5, v1, 2, v5")
    for mt in range(3):
        for i in range(4):
            a("ds_write_b32 v5, v%d offset:%d" % (48 + 4 * mt + i, (16 * mt + i) * 64))
    a("s_waitcnt lgkmcnt(0)")
    a("s_barrier")
    a("v_lshlrev_b32 v5, 2, v0")
    for e in range(3):
        for w in range(4):
            a("ds_read_b32 v%d, v5 offset:%d" % (60 + 4 * e + w, 1024 * e + 3072 * w))
    a("s_waitcnt lgkmcnt(0)")
    for e in range(3):
        b = 60 + 4 * e
        a("v_add_f32 v%d, v%d, v%d" % (b, b, b + 1))
        a("v_add_f32 v%d, v%d, v%d" % (b + 2, b + 2, b + 3))
        a("v_add_f32 v%d, v%d, v%d" % (b, b, b + 2))
        a("v_mul_f32 v%d, 2.0, v%d" % (b, b))
        a("ds_write_b32 v5, v%d offset:%d" % (b, 12288 + 1024 * e))
    a("s_waitcnt lgkmcnt(0)")
    a("s_barrier")
    a("v_lshlrev_b32 v5, 3, v0")
    a("v_sub_u32 v5, 2047, v5")
    for e in range(8):
        p, c_, r7, kk, t = 20 + 6 * 0, 21, 22, 23, 24
        a("v_subrev_u32 v20, %d, v5" % e)
        a("v_cvt_f32_u32 v20, v20")
        a("v_cvt_pk_bf16_f32 v20, v20, v20")
        a("v_lshlrev_b32 v20, 16, v20")
        a("v_cvt_u32_f32 v20, v20")
        a("v_or_b32 v23, 1, v20")
        a("v_ffbh_u32 v23, v23")
        a("v_sub_u32 v23, 24, v23")
        a("v_med3_i32 v23, v23, 0, 3")
        a("v_lshrrev_b32 v21, 7, v20")
        a("v_and_b32 v22, 7, v20")
        a("v_lshrrev_b32 v22, v23, v22")
        a("v_sub_u32 v24, 3, v23")
        a("v_lshlrev_b32 v21, v24, v21")
        a("v_lshl_add_u32 v21, v23, 3, v21")
        a("v_add_u32 v21, v21, v22")
        a("v_bfe_u32 v22, v20, 3, 4")
        a("v_lshl_add_u32 v21, v21, 4, v22")
        a("v_lshlrev_b32 v21, 2, v21")
        a("ds_read_b32 v%d, v21 offset:12288" % (32 + e))
    a("s_waitcnt lgkmcnt(0)")
    for e in range(4):
        a("v_cvt_pk_bf16_f32 v%d, v%d, v%d" % (44 + e, 32 + 2 * e, 33 + 2 * e))
    make_srd(a, 4, 30, 576 * KR_STRIDE, WS_KR)
    a("s_mul_i32 s34, %s, %d" % (sr(s_ch), KR_STRIDE))
    a("v_lshlrev_b32 v5, 4, v0")
    a("buffer_store_dwordx4 v[44:47], v5, s[4:7], s34 offen")
    a("v_mov_b32 v40, 0")
    a("v_mov_b32 v41, 0")
    a("v_mov_b32 v42, 0")
    a("v_mov_b32 v43, 0")
    a("v_cmp_gt_u32 vcc, 8, v0")
    a("s_and_saveexec_b64 s[38:39], vcc")
    a("s_add_u32 s34, s34, 4096")
    a("buffer_store_dwordx4 v[40:43], v5, s[4:7], s34 offen")
    a("s_mov_b64 exec, s[38:39]")
    a("s_waitcnt vmcnt(0)")
    cfg["vgprs"] = 72
    cfg["lds_bytes"] = 12288 + 3072


def kernel_kgen(a, name):
    a.raw(".globl %s" % name)
    a.raw(".p2align 8")
    a.raw(".type %s,@function" % name)
    a.label(name)
    lend = a.newlabel("END")
    a("s_cmp_ge_u32 s2, 576")
    a("s_cbranch_scc1 %s" % lend)
    c = dict(s_ch=2)
    kgen_role(a, c)
    a.label(lend)
    a("s_endpgm")
    return dict(name=name, grid=576, lds=c["lds_bytes"], vgprs=c["vgprs"])


CU_ROW = 144
CU_SZ = 33 * CU_ROW
KC = 1312
CW = CU_SZ + 8 * KC


def conv_role(a, cfg):
    s_wg = cfg["s_wg"]
    a("s_load_dwordx2 s[22:23], s[0:1], 72")
    a("s_load_dwordx2 s[24:25], s[0:1], 104")
    a("v_lshrrev_b32 v1, 6, v0")
    a("v_readfirstlane_b32 s26, v1")
    a("s_lshl_b32 s27, %s, 2" % sr(s_wg))
    a("s_add_u32 s27, s27, s26")
    a("s_waitcnt lgkmcnt(0)")
    make_srd(a, 4, 24, 576 * KR_STRIDE, WS_KR)
    make_srd(a, 8, 24, 576 * 4096, WS_XT)
    make_srd(a, 12, 24, 576 * 4096, WS_BT)
    a("s_lshr_b32 s28, s27, 1")
    a("s_lshl_b32 s28, s28, 2")
    a("s_load_dword s29, s[22:23], s28")
    a("s_mul_i32 s30, s27, %d" % KR_STRIDE)
    a("s_lshl_b32 s31, s27, 12")
    a("s_mul_i32 s32, s26, %d" % CW)
    a("v_and_b32 v2, 63, v0")
    a("v_lshlrev_b32 v3, 4, v2")
    SG = 120
    a("v_and_b32 v5, 7, v2")
    a("v_lshlrev_b32 v5, 4, v5")
    a("v_lshrrev_b32 v4, 3, v2")
    a("v_lshl_add_u32 v13, v4, 1, v5")
    a("v_mul_u32_u24 v14, %d, v4" % KC)
    a("v_add3_u32 v14, v14, v5, s32")

    def ld_win(w):
        a("s_add_u32 s33, s30, %d" % (2 * (1536 - 512 * w)))
        for k in range(9):
            a("buffer_load_dwordx4 %s, v13, s[4:7], s33 offen offset:%d" % (vr(SG + 4 * k, 4), 128 * k))

    def wr_win():
        for k in range(9):
            a("ds_write_b128 v14, %s offset:%d" % (vr(SG + 4 * k, 4), CU_SZ + 128 * k))

    for k in range(4):
        a("buffer_load_dwordx4 v[%d:%d], v3, s[8:11], s31 offen offset:%d" % (16 + 4 * k, 19 + 4 * k, 1024 * k))
    ld_win(0)
    a("v_cmp_gt_u32 vcc, 8, v2")
    a("s_mov_b64 s[34:35], vcc")
    a("v_mul_u32_u24 v4, %d, v4" % CU_ROW)
    a("v_add3_u32 v4, v4, v5, s32")
    for r in range(4):
        a("v_mov_b32 v%d, 0" % (56 + r))
    a("s_mov_b64 exec, s[34:35]")
    a("ds_write_b128 v4, v[56:59]")
    a("s_mov_b64 exec, -1")
    a("v_and_b32 v6, 31, v2")
    a("v_bfe_u32 v7, v2, 5, 1")
    a("v_and_b32 v8, 7, v6")
    a("v_sub_u32 v8, 7, v8")
    a("v_mul_u32_u24 v8, %d, v8" % KC)
    a("v_lshrrev_b32 v9, 3, v6")
    a("v_sub_u32 v9, v7, v9")
    a("v_lshl_add_u32 v8, v9, 4, v8")
    a("v_add_u32 v8, s32, v8")
    a("v_add_u32 v8, %d, v8" % (CU_SZ + 48))
    a("v_lshlrev_b32 v10, 4, v7")
    a("v_add_u32 v10, s32, v10")
    a("v_mul_u32_u24 v9, %d, v6" % CU_ROW)
    a("v_add_u32 v9, v9, v10")
    a("v_add_u32 v9, %d, v9" % CU_ROW)
    a("s_waitcnt vmcnt(9)")
    for k in range(4):
        a("ds_write_b128 v4, v[%d:%d] offset:%d" % (16 + 4 * k, 19 + 4 * k, CU_ROW + 8 * CU_ROW * k))
    a("s_waitcnt vmcnt(0)")
    wr_win()
    ld_win(1)
    RING = 10
    F0 = 16
    B0 = 56
    AC = 88
    lg = VmQ(a, "lgkmcnt")
    fr = lambda m: vr(F0 + 4 * (m % RING), 4)
    br = lambda par, s_: vr(B0 + 16 * par + 4 * s_, 4)

    def rd_delta(d):
        w = d // 8
        if d > 0:
            a("v_subrev_u32 v9, %d, v9" % CU_ROW)
        a("v_max_i32 v11, v9, v10")
        if d % 8 == 0 and d > 0:
            a("s_waitcnt vmcnt(0)")
            wr_win()
            if w < 3:
                ld_win(w + 1)
        for m in range(4 * d - 1 - (2 if d == 0 else 0), 4 * d + 3):
            a("ds_read_b128 %s, v8 offset:%d" % (fr(m), 960 - 32 * (m - 32 * w))); lg.push(d)
        for s_ in range(4):
            a("ds_read_b128 %s, v11 offset:%d" % (br(d & 1, s_), 32 * s_)); lg.push(d)

    a("s_waitcnt lgkmcnt(0)")
    rd_delta(0)
    for d in range(32):
        if d + 1 < 32:
            rd_delta(d + 1)
        if (d + 1) % 8 == 0 and d + 1 < 32:
            a("s_waitcnt lgkmcnt(15)")
            a("s_waitcnt lgkmcnt(8)")
            lg.q = [x for x in lg.q if x != d]
        else:
            lg.wait(d)
        for s_ in range(4):
            for t in range(2):
                c = "0" if (d == 0 and s_ == 0) else vr(AC + 16 * t, 16)
                a("v_mfma_f32_32x32x16_bf16 %s, %s, %s, %s" % (vr(AC + 16 * t, 16), fr(4 * d + 2 * t - s_), br(d & 1, s_), c))
    a("v_mul_u32_u24 v9, %d, v6" % CU_ROW)
    a("v_lshl_add_u32 v9, v7, 3, v9")
    a("v_add_u32 v9, s32, v9")
    for t in range(2):
        for q in range(4):
            k = 4 * t + q
            a("ds_read_b64 v[%d:%d], v9 offset:%d" % (16 + 2 * k, 17 + 2 * k, CU_ROW + 64 * t + 16 * q))
    a("v_lshlrev_b32 v12, 7, v6")
    a("v_lshl_add_u32 v12, v7, 3, v12")
    a("s_and_b32 s35, s27, 1")
    a("s_lshl_b32 s36, s29, 16")
    a("s_and_b32 s37, s29, 0xffff0000")
    a("s_cmp_eq_u32 s35, 0")
    a("s_cselect_b32 s36, s36, s37")
    a("s_waitcnt lgkmcnt(0)")
    for t in range(2):
        for q in range(4):
            k = 4 * t + q
            for pp in range(2):
                A = AC + 16 * t + 4 * q + 2 * pp
                U = 16 + 2 * k + pp
                a("v_cvt_pk_bf16_f32 v32, v%d, v%d" % (A, A + 1))
                a("v_lshlrev_b32 v33, 16, v%d" % U)
                a("v_and_b32 v34, 0xffff0000, v%d" % U)
                a("v_mul_f32 v33, s36, v33")
                a("v_mul_f32 v34, s36, v34")
                a("v_cvt_pk_bf16_f32 v33, v33, v34")
                a("v_lshlrev_b32 v34, 16, v32")
                a("v_and_b32 v32, 0xffff0000, v32")
                a("v_lshlrev_b32 v35, 16, v33")
                a("v_and_b32 v33, 0xffff0000, v33")
                a("v_add_f32 v34, v34, v35")
                a("v_add_f32 v32, v32, v33")
                a("v_cvt_pk_bf16_f32 v%d, v34, v32" % (A))
            A = AC + 16 * t + 4 * q
            a("v_mov_b32 v%d, v%d" % (A + 1, A + 2))
            a("buffer_store_dwordx2 v[%d:%d], v12, s[12:15], s31 offen offset:%d" % (A, A + 1, 64 * t + 16 * q))
    a("s_waitcnt vmcnt(0)")
    cfg["vgprs"] = 156
    cfg["lds_bytes"] = 4 * CW


def kernel_conv(a, name):
    a.raw(".globl %s" % name)
    a.raw(".p2align 8")
    a.raw(".type %s,@function" % name)
    a.label(name)
    lend = a.newlabel("END")
    a("s_cmp_ge_u32 s2, 144")
    a("s_cbranch_scc1 %s" % lend)
    c = dict(s_wg=2)
    conv_role(a, c)
    a.label(lend)
    a("s_endpgm")
    return dict(name=name, grid=144, lds=c["lds_bytes"], vgprs=c["vgprs"])


def gemm3_pre(a, ctx):
    cfg = ctx["cfg"]
    tm, tn, wn = ctx["tm"], ctx["tn"], ctx["wn"]
    vt0, vt1, vt2, vt3 = ctx["vt"]
    al = ctx["al"]
    s_m0, s_n0 = cfg["s_m0"], cfg["s_n0"]
    G = [[al.get(4, 4) for q in range(4)] for ti in range(tm)]
    Bv = [[[al.get(2, 2) for q in range(4)] for tj in range(tn)] for ti in range(tm)]
    vo = al.get()
    cfg["G"], cfg["Bv"], cfg["vo"] = G, Bv, vo
    a("v_lshrrev_b32 %s, 6, v0" % vr(vt0))
    if wn == 2:
        a("v_lshrrev_b32 %s, 1, %s" % (vr(vt1), vr(vt0)))
        a("v_and_b32 %s, 1, %s" % (vr(vt0), vr(vt0)))
    else:
        a("v_mov_b32 %s, %s" % (vr(vt1), vr(vt0)))
        a("v_mov_b32 %s, 0" % vr(vt0))
    a("v_mul_u32_u24 %s, %d, %s" % (vr(vt0), tn * 32, vr(vt0)))
    a("v_and_b32 %s, 31, v0" % vr(vt2))
    a("v_add3_u32 %s, %s, %s, %s" % (vr(vt0), vr(vt0), vr(vt2), sr(s_n0)))
    a("v_mul_u32_u24 %s, %d, %s" % (vr(vt1), tm * 32, vr(vt1)))
    a("v_bfe_u32 %s, v0, 5, 1" % vr(vt2))
    a("v_lshl_add_u32 %s, %s, 2, %s" % (vr(vt1), vr(vt2), vr(vt1)))
    a("v_add_u32 %s, %s, %s" % (vr(vt1), sr(s_m0), vr(vt1)))
    a("v_lshlrev_b32 %s, 2, %s" % (vr(vt2), vr(vt1)))
    for ti in range(tm):
        for q in range(4):
            a("buffer_load_dwordx4 %s, %s, %s, 0 offen offset:%d" % (vr(G[ti][q], 4), vr(vt2), sr(cfg["sG"], 4), (ti * 32 + 8 * q) * 4))
    a("v_lshlrev_b32 %s, 12, %s" % (vr(vt2), vr(vt0)))
    a("v_lshl_add_u32 %s, %s, 1, %s" % (vr(vt2), vr(vt1), vr(vt2)))
    for ti in range(tm):
        for tj in range(tn):
            a("s_mov_b32 %s, 0x%x" % (sr(cfg["s_tmp"]), tj * 32 * 4096))
            for q in range(4):
                a("buffer_load_dwordx2 %s, %s, %s, %s offen offset:%d" % (vr(Bv[ti][tj][q], 2), vr(vt2), sr(cfg["sBT"], 4), sr(cfg["s_tmp"]), (ti * 32 + 8 * q) * 2))
    a("v_mul_u32_u24 %s, 1152, %s" % (vr(vo), vr(vt1)))
    a("v_lshl_add_u32 %s, %s, 1, %s" % (vr(vo), vr(vt0), vr(vo)))


def gemm3_epi(a, ctx):
    cfg = ctx["cfg"]
    tm, tn = ctx["tm"], ctx["tn"]
    vt0, vt1, vt2, vt3 = ctx["vt"]
    acc = ctx["acc"]
    G, Bv, vo = cfg["G"], cfg["Bv"], cfg["vo"]
    sO = cfg["sO"]
    st = cfg["s_tmp"]
    for ti in range(tm):
        for tj in range(tn):
            A = acc[ti][tj]
            for q in range(4):
                for i in range(4):
                    r = A + 4 * q + i
                    g = G[ti][q] + i
                    b = Bv[ti][tj][q] + (i >> 1)
                    a("v_cvt_pk_bf16_f32 %s, %s, %s" % (vr(r), vr(r), vr(r)))
                    a("v_sub_f32 %s, 1.0, %s" % (vr(vt0), vr(g)))
                    a("v_and_b32 %s, 0xffff0000, %s" % (vr(r), vr(r)))
                    if i & 1:
                        a("v_and_b32 %s, 0xffff0000, %s" % (vr(vt1), vr(b)))
                    else:
                        a("v_lshlrev_b32 %s, 16, %s" % (vr(vt1), vr(b)))
                    a("v_cvt_pk_bf16_f32 %s, %s, %s" % (vr(vt0), vr(vt0), vr(vt0)))
                    a("v_mul_f32 %s, %s, %s" % (vr(r), vr(g), vr(r)))
                    a("v_and_b32 %s, 0xffff0000, %s" % (vr(vt0), vr(vt0)))
                    a("v_mul_f32 %s, %s, %s" % (vr(vt0), vr(vt0), vr(vt1)))
                    a("v_cvt_pk_bf16_f32 %s, %s, %s" % (vr(r), vr(r), vr(vt0)))
                    a("v_lshlrev_b32 %s, 16, %s" % (vr(vt0), vr(r)))
                    a("v_and_b32 %s, 0xffff0000, %s" % (vr(r), vr(r)))
                    a("v_add_f32 %s, %s, %s" % (vr(r), vr(r), vr(vt0)))
                    a("v_cvt_pk_bf16_f32 %s, %s, %s" % (vr(r), vr(r), vr(r)))
                    off = (ti * 32 + 8 * q + i) * 1152 + tj * 64
                    a("s_mov_b32 %s, 0x%x" % (sr(st + 1), off))
                    a("buffer_store_short %s, %s, %s, %s offen" % (vr(r), vr(vo), sr(sO, 4), sr(st + 1)))


def gemm3_role(a, cfg):
    s_wg = cfg["s_wg"]
    a("s_load_dwordx2 s[20:21], s[0:1], 16")
    a("s_load_dwordx2 s[22:23], s[0:1], 88")
    a("s_load_dwordx2 s[24:25], s[0:1], 104")
    a("s_waitcnt lgkmcnt(0)")
    make_srd(a, 4, 24, 2048 * 1152, WS_O)
    make_srd(a, 8, 20, 576 * 1152)
    make_srd(a, 12, 22, 2048 * 1152)
    make_srd(a, 16, 24, 8192, WS_G)
    make_srd(a, 36, 24, 576 * 4096, WS_BT)
    a("s_and_b32 s26, %s, 31" % sr(s_wg))
    a("s_lshl_b32 s26, s26, 6")
    a("s_lshr_b32 s27, %s, 5" % sr(s_wg))
    a("s_lshl_b32 s27, s27, 6")
    c = dict(wm=2, wn=2, tm=1, tn=1, lda=1152, ldb=1152, K=576, sA=4, sB=8, sO=12, sG=16, sBT=36, s_m0=26, s_n0=27, s_tmp=28,
             epi=gemm3_epi, pre=gemm3_pre)
    gemm(a, c)
    a("s_waitcnt vmcnt(0)")
    cfg["vgprs"] = c["vgprs"]
    cfg["lds_bytes"] = c["lds_bytes"]


def kernel_gemm3(a, name):
    a.raw(".globl %s" % name)
    a.raw(".p2align 8")
    a.raw(".type %s,@function" % name)
    a.label(name)
    lend = a.newlabel("END")
    a("s_cmp_ge_u32 s2, 288")
    a("s_cbranch_scc1 %s" % lend)
    c = dict(s_wg=2)
    gemm3_role(a, c)
    a.label(lend)
    a("s_endpgm")
    return dict(name=name, grid=288, lds=c["lds_bytes"], vgprs=c["vgprs"])


def kstart(a, name):
    a.raw(".globl %s" % name)
    a.raw(".p2align 8")
    a.raw(".type %s,@function" % name)
    a.label(name)


def kernel_L1(a, name):
    kstart(a, name)
    lend, lprep, lkg, lv = a.newlabel("END"), a.newlabel("PREP"), a.newlabel("KGEN"), a.newlabel("VPART")
    a("s_cmp_ge_u32 s2, 240")
    a("s_cbranch_scc1 %s" % lprep)
    a("s_load_dwordx4 s[20:23], s[0:1], 0")
    a("s_load_dwordx2 s[24:25], s[0:1], 104")
    a("s_waitcnt lgkmcnt(0)")
    make_srd(a, 4, 20, 2048 * 1152)
    make_srd(a, 8, 22, 576 * 3456)
    make_srd(a, 12, 24, 1728 * 4096, WS_QKVT)
    a("s_cmp_ge_u32 s2, 144")
    a("s_cbranch_scc1 %s" % lv)
    a("s_and_b32 s26, s2, 15")
    a("s_lshl_b32 s26, s26, 7")
    a("s_lshr_b32 s27, s2, 4")
    a("s_lshl_b32 s27, s27, 7")
    c1 = dict(wm=2, wn=2, tm=2, tn=2, lda=1152, ldb=3456, K=576, sA=4, sB=8, sO=12, s_m0=26, s_n0=27, s_tmp=28,
              epi=epi_gemm1("qk"))
    gemm(a, c1)
    a("s_endpgm")
    a.label(lv)
    a("s_sub_u32 s27, s2, 144")
    a("s_and_b32 s26, s27, 15")
    a("s_lshl_b32 s26, s26, 7")
    a("s_lshr_b32 s27, s27, 4")
    a("s_mul_i32 s27, s27, 96")
    a("s_add_u32 s27, s27, 1152")
    c2 = dict(wm=4, wn=1, tm=1, tn=3, lda=1152, ldb=3456, K=576, sA=4, sB=8, sO=12, s_m0=26, s_n0=27, s_tmp=28,
              epi=epi_gemm1("v"))
    gemm(a, c2)
    a("s_endpgm")
    a.label(lprep)
    a("s_cmp_ge_u32 s2, 272")
    a("s_cbranch_scc1 %s" % lkg)
    a("s_sub_u32 s3, s2, 240")
    c3 = dict(s_wg=3)
    prep_role(a, c3)
    a("s_endpgm")
    a.label(lkg)
    a("s_cmp_ge_u32 s2, 848")
    a("s_cbranch_scc1 %s" % lend)
    a("s_sub_u32 s3, s2, 272")
    c4 = dict(s_ch=3)
    kgen_role(a, c4)
    a.label(lend)
    a("s_endpgm")
    cs = (c1, c2, c3, c4)
    return dict(name=name, grid=848, lds=max(c["lds_bytes"] for c in cs), vgprs=max(c["vgprs"] for c in cs))


def kernel_L2(a, name):
    kstart(a, name)
    lend, lcv = a.newlabel("END"), a.newlabel("CONV")
    a("s_cmp_ge_u32 s2, 256")
    a("s_cbranch_scc1 %s" % lcv)
    a("s_load_dwordx2 s[24:25], s[0:1], 104")
    a("s_waitcnt lgkmcnt(0)")
    make_srd(a, 4, 24, 1728 * 4096, WS_QKVT)
    make_srd(a, 8, 24, 2048 * 1152, WS_O)
    a("s_and_b32 s26, s2, 7")
    a("s_lshr_b32 s27, s2, 3")
    a("s_and_b32 s27, s27, 3")
    a("s_lshl_b32 s27, s27, 3")
    a("s_add_u32 s26, s26, s27")
    a("s_lshr_b32 s27, s2, 5")
    a("s_lshl_b32 s27, s27, 8")
    c = dict(sW=4, sO=8, s_head=26, s_q0=27, s_tmp=28, prof=PROF)
    a("s_mul_i32 s30, s26, 18")
    a("s_add_u32 s30, s30, 576")
    attn_role(a, c)
    a("s_endpgm")
    a.label(lcv)
    a("s_cmp_ge_u32 s2, 400")
    a("s_cbranch_scc1 %s" % lend)
    a("s_sub_u32 s3, s2, 256")
    c2 = dict(s_wg=3)
    conv_role(a, c2)
    a.label(lend)
    a("s_endpgm")
    return dict(name=name, grid=400, lds=max(c["lds_bytes"], c2["lds_bytes"]), vgprs=max(c["vgprs"], c2["vgprs"]))


HEADER = open("gated_mix__mha_block__ssm_conv_s4d__prompt.s.ref").read().split("; @launch")[0]


def build(kfuncs):
    a = Asm()
    infos = []
    body = Asm()
    for f, nm in kfuncs:
        infos.append(f(body, nm))
    out = HEADER
    for k in infos:
        out += "; @launch kernel=%s grid=(%d,1,1) block=(256,1,1) lds=%d\n" % (k["name"], k["grid"], k["lds"])
    out += '.amdgcn_target "amdgcn-amd-amdhsa--gfx950"\n.text\n'
    out += body.text()
    out += '.section .rodata,"a"\n'
    for k in infos:
        v = (k["vgprs"] + 3) // 4 * 4
        out += ".p2align 6\n.amdhsa_kernel %s\n" % k["name"]
        out += "  .amdhsa_next_free_vgpr %d\n  .amdhsa_next_free_sgpr 102\n  .amdhsa_accum_offset %d\n" % (v, v)
        out += "  .amdhsa_group_segment_fixed_size 0\n  .amdhsa_kernarg_size 112\n  .amdhsa_user_sgpr_count 2\n"
        out += "  .amdhsa_user_sgpr_kernarg_segment_ptr 1\n  .amdhsa_system_sgpr_workgroup_id_x 1\n.end_amdhsa_kernel\n"
    return out


if __name__ == "__main__":
    path = sys.argv[1]
    mode = sys.argv[2] if len(sys.argv) > 2 else "all"
    if mode == "gemm1":
        s = build([(kernel_gemm1, "gemm1_kernel")])
    elif mode == "prep":
        s = build([(kernel_prep, "prep_kernel")])
    elif mode == "kgen":
        s = build([(kernel_kgen, "kgen_kernel")])
    elif mode == "conv":
        s = build([(kernel_prep, "prep_kernel"), (kernel_kgen, "kgen_kernel"), (kernel_conv, "conv_kernel")])
    elif mode == "six":
        s = build([(kernel_gemm1, "gemm1_kernel"), (kernel_prep, "prep_kernel"), (kernel_kgen, "kgen_kernel"), (kernel_attn, "attn_kernel"), (kernel_conv, "conv_kernel"), (kernel_gemm3, "gemm3_kernel")])
    elif mode == "all":
        s = build([(kernel_L1, "l1_kernel"), (kernel_L2, "l2_kernel"), (kernel_gemm3, "l3_kernel")])
    elif mode == "attn":
        s = build([(kernel_gemm1, "gemm1_kernel"), (kernel_attn, "attn_kernel")])
    open(path, "w").write(s)
```

```python
import sys, os
sys.path.insert(0, os.path.dirname(os.path.abspath(__file__)))
from fw import Asm, vr, sr, Alloc

WS_QKVT = 0
WS_O = 8 << 20
WS_XT = 12 << 20
WS_G = 16 << 20
WS_KR = 17 << 20
WS_BT = 20 << 20
KR_STRIDE = 4224

PROF = int(os.environ.get("PROF", "0"))
QSCALE = 0x3EAE1A3D
import struct
def f32bits(x):
    return struct.unpack("<I", struct.pack("<f", x))[0]
QSCALE = f32bits((18 ** -0.5) * 1.4426950408889634)


class VmQ:
    def __init__(self, asm, name):
        self.q = []
        self.asm = asm
        self.name = name

    def push(self, tag):
        self.q.append(tag)

    def wait(self, tag):
        idx = max(i for i, t in enumerate(self.q) if t == tag) if tag in self.q else -1
        if idx < 0:
            return
        n = len(self.q) - 1 - idx
        self.asm("s_waitcnt %s(%d)" % (self.name, n))
        self.q = self.q[idx + 1:]

    def wait_all(self):
        self.asm("s_waitcnt %s(0)" % self.name)
        self.q = []


def make_srd(a, s, ptr_s, size, off=0):
    if off:
        a("s_add_u32 s%d, s%d, 0x%x" % (s, ptr_s, off))
        a("s_addc_u32 s%d, s%d, 0" % (s + 1, ptr_s + 1))
    else:
        a("s_mov_b32 s%d, s%d" % (s, ptr_s))
        a("s_mov_b32 s%d, s%d" % (s + 1, ptr_s + 1))
    a("s_mov_b32 s%d, 0x%x" % (s + 2, size))
    a("s_mov_b32 s%d, 0x00020000" % (s + 3))


def div_small(a, vq, vrem, vc, d, vtmp):
    m = -(-(1 << 16) // d)
    for c in range(0, 1024):
        assert (c * m) >> 16 == c // d
    a("v_mul_u32_u24 %s, %d, %s" % (vr(vq), m, vr(vc)))
    a("v_lshrrev_b32 %s, 16, %s" % (vr(vq), vr(vq)))
    a("v_mul_u32_u24 %s, %d, %s" % (vr(vtmp), d, vr(vq)))
    a("v_sub_u32 %s, %s, %s" % (vr(vrem), vr(vc), vr(vtmp)))


def gemm(a, cfg):
    wm, wn, tm, tn = cfg["wm"], cfg["wn"], cfg["tm"], cfg["tn"]
    Mt, Nt = wm * tm * 32, wn * tn * 32
    lda, ldb, K = cfg["lda"], cfg["ldb"], cfg["K"]
    sA, sB = cfg["sA"], cfg["sB"]
    s_m0, s_n0 = cfg["s_m0"], cfg["s_n0"]
    st = cfg["s_tmp"]
    s_boff, s_mask = st, st + 2
    assert s_mask % 2 == 0
    nst = K // 32
    P = int(os.environ.get("GP", cfg.get("P", 4)))
    SA = 80
    SB = {128: 320, 96: 192, 64: 192}[Nt]
    bufsz = Mt * SA + 32 * SB
    LB = Mt * SA
    cfg["lds_bytes"] = 3 * bufsz
    nchA = Mt * 4
    cprB = Nt // 8
    nchB = 32 * cprB
    nA = -(-nchA // 256)
    nB = -(-nchB // 256)
    al = Alloc(cfg.get("v_start", 1), cfg.get("v_limit", 256))
    vAg = [al.get() for _ in range(nA)]
    vAl = [al.get() for _ in range(nA)]
    vBg = [al.get() for _ in range(nB)]
    vBl = [al.get() for _ in range(nB)]
    vAf = al.get()
    vBf = al.get()
    vt0, vt1, vt2, vt3 = [al.get() for _ in range(4)]
    FA = [[al.get(4, 4) for _ in range(tm)] for _ in range(2)]
    FB = [[al.get(4, 4) for _ in range(tn)] for _ in range(2)]
    acc = [[al.get(16, 4) for _ in range(tn)] for _ in range(tm)]
    stg = [([al.get(4, 4) for _ in range(nA)], [al.get(4, 4) for _ in range(nB)]) for _ in range(P)]
    cfg["vgprs"] = al.hi

    a.comment("gemm address setup Mt=%d Nt=%d" % (Mt, Nt))
    for i in range(nA):
        a("v_lshrrev_b32 %s, 2, v0" % vr(vt0))
        if i:
            a("v_add_u32 %s, %d, %s" % (vr(vt0), 64 * i, vr(vt0)))
        a("v_and_b32 %s, 3, v0" % vr(vt1))
        a("v_lshlrev_b32 %s, 4, %s" % (vr(vt1), vr(vt1)))
        a("v_mul_u32_u24 %s, %d, %s" % (vr(vAl[i]), SA, vr(vt0)))
        a("v_add_u32 %s, %s, %s" % (vr(vAl[i]), vr(vAl[i]), vr(vt1)))
        a("v_add_u32 %s, %s, %s" % (vr(vt0), sr(s_m0), vr(vt0)))
        a("v_mul_u32_u24 %s, %d, %s" % (vr(vAg[i]), lda, vr(vt0)))
        a("v_add_u32 %s, %s, %s" % (vr(vAg[i]), vr(vAg[i]), vr(vt1)))
    for i in range(nB):
        a("v_add_u32 %s, %d, v0" % (vr(vt2), 256 * i))
        if cprB & (cprB - 1) == 0:
            sh = cprB.bit_length() - 1
            a("v_lshrrev_b32 %s, %d, %s" % (vr(vt0), sh, vr(vt2)))
            a("v_and_b32 %s, %d, %s" % (vr(vt1), cprB - 1, vr(vt2)))
        else:
            div_small(a, vt0, vt1, vt2, cprB, vt3)
        a("v_lshlrev_b32 %s, 4, %s" % (vr(vt1), vr(vt1)))
        a("v_mul_u32_u24 %s, %d, %s" % (vr(vBl[i]), SB, vr(vt0)))
        a("v_add_u32 %s, %s, %s" % (vr(vBl[i]), vr(vBl[i]), vr(vt1)))
        a("v_mul_u32_u24 %s, %d, %s" % (vr(vBg[i]), ldb, vr(vt0)))
        a("v_add_u32 %s, %s, %s" % (vr(vBg[i]), vr(vBg[i]), vr(vt1)))
        a("v_add_u32 %s, %s, %s" % (vr(vBg[i]), sr(s_n0), vr(vBg[i])))
        a("v_add_u32 %s, %s, %s" % (vr(vBg[i]), sr(s_n0), vr(vBg[i])))
    partB = (nchB % 256) != 0
    if partB:
        a("v_cmp_gt_u32 vcc, %d, v0" % (nchB % 256))
        a("s_mov_b64 %s, vcc" % sr(s_mask, 2))
    a("v_lshrrev_b32 %s, 6, v0" % vr(vt0))
    if wn == 2:
        a("v_lshrrev_b32 %s, 1, %s" % (vr(vt1), vr(vt0)))
        a("v_and_b32 %s, 1, %s" % (vr(vt0), vr(vt0)))
    else:
        a("v_mov_b32 %s, %s" % (vr(vt1), vr(vt0)))
        a("v_mov_b32 %s, 0" % vr(vt0))
    a("v_mul_u32_u24 %s, %d, %s" % (vr(vt1), tm * 32, vr(vt1)))
    a("v_and_b32 %s, 31, v0" % vr(vt2))
    a("v_add_u32 %s, %s, %s" % (vr(vt1), vr(vt1), vr(vt2)))
    a("v_mul_u32_u24 %s, %d, %s" % (vr(vAf), SA, vr(vt1)))
    a("v_bfe_u32 %s, v0, 5, 1" % vr(vt2))
    a("v_lshl_add_u32 %s, %s, 4, %s" % (vr(vAf), vr(vt2), vr(vAf)))
    a("v_bfe_u32 %s, v0, 2, 2" % vr(vt1))
    a("v_lshl_add_u32 %s, %s, 3, %s" % (vr(vt1), vr(vt2), vr(vt1)))
    a("v_mul_u32_u24 %s, %d, %s" % (vr(vBf), SB, vr(vt1)))
    a("v_mul_u32_u24 %s, %d, %s" % (vr(vt0), tn * 64, vr(vt0)))
    a("v_add_u32 %s, %s, %s" % (vr(vBf), vr(vBf), vr(vt0)))
    a("v_bfe_u32 %s, v0, 4, 1" % vr(vt0))
    a("v_lshl_add_u32 %s, %s, 5, %s" % (vr(vBf), vr(vt0), vr(vBf)))
    a("v_and_b32 %s, 3, v0" % vr(vt0))
    a("v_lshl_add_u32 %s, %s, 3, %s" % (vr(vBf), vr(vt0), vr(vBf)))
    a("v_add_u32 %s, %d, %s" % (vr(vBf), LB, vr(vBf)))

    vm = VmQ(a, "vmcnt")
    lg = VmQ(a, "lgkmcnt")

    def issue_loads(s):
        A_, B_ = stg[s % P]
        for i in range(nA):
            a("buffer_load_dwordx4 %s, %s, %s, 0 offen offset:%d" % (vr(A_[i], 4), vr(vAg[i]), sr(sA, 4), 64 * s))
            vm.push(("ld", s))
        a("s_mov_b32 %s, 0x%x" % (sr(s_boff), 32 * s * ldb))
        for i in range(nB):
            last_part = partB and i == nB - 1
            if last_part:
                a("s_mov_b64 exec, %s" % sr(s_mask, 2))
            a("buffer_load_dwordx4 %s, %s, %s, %s offen" % (vr(B_[i], 4), vr(vBg[i]), sr(sB, 4), sr(s_boff)))
            vm.push(("ld", s))
            if last_part:
                a("s_mov_b64 exec, -1")

    def write_lds(s):
        A_, B_ = stg[s % P]
        base = (s % 3) * bufsz
        vm.wait(("ld", s))
        for i in range(nA):
            a("ds_write_b128 %s, %s offset:%d" % (vr(vAl[i]), vr(A_[i], 4), base))
            lg.push(("wr", s))
        for i in range(nB):
            last_part = partB and i == nB - 1
            if last_part:
                a("s_mov_b64 exec, %s" % sr(s_mask, 2))
            a("ds_write_b128 %s, %s offset:%d" % (vr(vBl[i]), vr(B_[i], 4), base + LB))
            lg.push(("wr", s))
            if last_part:
                a("s_mov_b64 exec, -1")

    def read_frags(s, kk):
        base = (s % 3) * bufsz
        for t in range(tm):
            a("ds_read_b128 %s, %s offset:%d" % (vr(FA[kk][t], 4), vr(vAf), base + t * 32 * SA + kk * 32))
            lg.push(("fr", s, kk))
        for t in range(tn):
            for hf in range(2):
                a("ds_read_b64_tr_b16 %s, %s offset:%d" % (vr(FB[kk][t] + 2 * hf, 2), vr(vBf),
                                                           base + (kk * 16 + 4 * hf) * SB + t * 64))
                lg.push(("fr", s, kk))

    def mfmas(s, kk):
        lg.wait(("fr", s, kk))
        for ti in range(tm):
            for tj in range(tn):
                c = "0" if (s == 0 and kk == 0) else vr(acc[ti][tj], 16)
                a("v_mfma_f32_32x32x16_bf16 %s, %s, %s, %s" % (vr(acc[ti][tj], 16), vr(FA[kk][ti], 4), vr(FB[kk][tj], 4), c))

    if PROF:
        a("s_memtime s[40:41]")
    if cfg.get("pre"):
        cfg["pre"](a, dict(cfg=cfg, vt=[vt0, vt1, vt2, vt3], tm=tm, tn=tn, wm=wm, wn=wn, al=al))
        cfg["vgprs"] = al.hi
    for s in range(P):
        issue_loads(s)
    write_lds(0)
    issue_loads(P) if P < nst else None
    lg.wait_all()
    a("s_barrier")
    if PROF:
        a("s_memtime s[42:43]")
    read_frags(0, 0)
    for s in range(nst):
        if s + 1 < nst:
            write_lds(s + 1)
            if s + 1 + P < nst:
                issue_loads(s + 1 + P)
        read_frags(s, 1)
        mfmas(s, 0)
        if s + 1 < nst:
            lg.wait_all()
            a("s_barrier")
            read_frags(s + 1, 0)
        mfmas(s, 1)
    if PROF:
        a("s_memtime s[44:45]")
    ctx = dict(cfg=cfg, acc=acc, vt=[vt0, vt1, vt2, vt3], tm=tm, tn=tn, wm=wm, wn=wn, al=al,
               free=[r for st_ in stg for r in st_[0] + st_[1]])
    cfg["epi"](a, ctx)
    if PROF:
        a("s_waitcnt vmcnt(0)")
        a("s_memtime s[46:47]")
        a("s_load_dwordx2 s[48:49], s[0:1], 96")
        a("s_waitcnt lgkmcnt(0)")
        a("s_mov_b32 s50, 256")
        a("s_mov_b32 s51, 0x00020000")
        a("v_lshlrev_b32 %s, 4, s2" % vr(vt1))
        a("v_cmp_eq_u32 vcc, 0, v0")
        a("s_and_saveexec_b64 s[52:53], vcc")
        for i, r in enumerate((40, 42, 44, 46)):
            a("v_mov_b32 %s, s%d" % (vr(vt0), r))
            a("buffer_store_dword %s, %s, s[48:51], 0 offen offset:%d" % (vr(vt0), vr(vt1), 4 * i))
        a("s_mov_b64 exec, s[52:53]")


def epi_gemm1(kind):
    def epi(a, ctx):
        cfg = ctx["cfg"]
        tm, tn, wn = ctx["tm"], ctx["tn"], ctx["wn"]
        vt0, vt1, vt2, vt3 = ctx["vt"]
        acc = ctx["acc"]
        sO = cfg["sO"]
        s_m0, s_n0 = cfg["s_m0"], cfg["s_n0"]
        st = cfg["s_tmp"]
        a("v_lshrrev_b32 %s, 6, v0" % vr(vt0))
        if wn == 2:
            a("v_lshrrev_b32 %s, 1, %s" % (vr(vt1), vr(vt0)))
            a("v_and_b32 %s, 1, %s" % (vr(vt0), vr(vt0)))
        else:
            a("v_mov_b32 %s, %s" % (vr(vt1), vr(vt0)))
            a("v_mov_b32 %s, 0" % vr(vt0))
        a("v_mul_u32_u24 %s, %d, %s" % (vr(vt0), tn * 32, vr(vt0)))
        a("v_and_b32 %s, 31, v0" % vr(vt2))
        a("v_add3_u32 %s, %s, %s, %s" % (vr(vt0), vr(vt0), vr(vt2), sr(s_n0)))
        if kind == "qk":
            a("v_readfirstlane_b32 %s, %s" % (sr(st), vr(vt0)))
            a("s_cmp_lt_u32 %s, 576" % sr(st))
            a("s_cselect_b32 %s, 0x%x, 1.0" % (sr(st), QSCALE))
        a("v_lshlrev_b32 %s, 12, %s" % (vr(vt0), vr(vt0)))
        a("v_mul_u32_u24 %s, %d, %s" % (vr(vt1), tm * 32, vr(vt1)))
        a("v_bfe_u32 %s, v0, 5, 1" % vr(vt2))
        a("v_lshl_add_u32 %s, %s, %d, %s" % (vr(vt1), vr(vt2), 2 if kind == "qk" else 3, vr(vt1)))
        a("v_add_u32 %s, %s, %s" % (vr(vt1), sr(s_m0), vr(vt1)))
        a("v_lshl_add_u32 %s, %s, 1, %s" % (vr(vt0), vr(vt1), vr(vt0)))
        for ti in range(tm):
            for tj in range(tn):
                A = acc[ti][tj]
                if kind == "qk":
                    for r in range(16):
                        a("v_mul_f32 %s, %s, %s" % (vr(A + r), sr(st), vr(A + r)))
                for p in range(8):
                    a("v_cvt_pk_bf16_f32 %s, %s, %s" % (vr(A + p), vr(A + 2 * p), vr(A + 2 * p + 1)))
                a("s_mov_b32 %s, 0x%x" % (sr(st + 1), tj * 32 * 4096))
                if kind == "qk":
                    for i in range(4):
                        a("buffer_store_dwordx2 %s, %s, %s, %s offen offset:%d" % (vr(A + 2 * i, 2), vr(vt0), sr(sO, 4), sr(st + 1), ti * 64 + 16 * i))
                else:
                    for m in range(2):
                        a("buffer_store_dwordx4 %s, %s, %s, %s offen offset:%d" % (vr(A + 4 * m, 4), vr(vt0), sr(sO, 4), sr(st + 1), ti * 64 + 32 * m))
    return epi


def kernel_gemm1(a, name):
    a.raw(".globl %s" % name)
    a.raw(".p2align 8")
    a.raw(".type %s,@function" % name)
    a.label(name)
    lend = a.newlabel("END")
    lv = a.newlabel("VPART")
    a("s_cmp_ge_u32 s2, 240")
    a("s_cbranch_scc1 %s" % lend)
    a("s_load_dwordx4 s[20:23], s[0:1], 0")
    a("s_load_dwordx2 s[24:25], s[0:1], 104")
    a("s_waitcnt lgkmcnt(0)")
    make_srd(a, 4, 20, 2048 * 1152)
    make_srd(a, 8, 22, 576 * 3456)
    make_srd(a, 12, 24, 1728 * 4096, WS_QKVT)
    a("s_cmp_ge_u32 s2, 144")
    a("s_cbranch_scc1 %s" % lv)
    a("s_and_b32 s26, s2, 15")
    a("s_lshl_b32 s26, s26, 7")
    a("s_lshr_b32 s27, s2, 4")
    a("s_lshl_b32 s27, s27, 7")
    c1 = dict(wm=2, wn=2, tm=2, tn=2, lda=1152, ldb=3456, K=576, sA=4, sB=8, sO=12, s_m0=26, s_n0=27, s_tmp=28,
              epi=epi_gemm1("qk"))
    gemm(a, c1)
    a("s_endpgm")
    a.label(lv)
    a("s_sub_u32 s27, s2, 144")
    a("s_and_b32 s26, s27, 15")
    a("s_lshl_b32 s26, s26, 7")
    a("s_lshr_b32 s27, s27, 4")
    a("s_mul_i32 s27, s27, 96")
    a("s_add_u32 s27, s27, 1152")
    c2 = dict(wm=4, wn=1, tm=1, tn=3, lda=1152, ldb=3456, K=576, sA=4, sB=8, sO=12, s_m0=26, s_n0=27, s_tmp=28,
              epi=epi_gemm1("v"))
    gemm(a, c2)
    a.label(lend)
    a("s_endpgm")
    return dict(name=name, grid=240, lds=max(c1["lds_bytes"], c2["lds_bytes"]), vgprs=max(c1["vgprs"], c2["vgprs"]))


SK, SV = 320, 272
K_IMG, V_IMG = 0, 20 * 320
ABUF = 20 * 320 + 20 * 272
ONES = 0x3F803F80


def attn_role(a, cfg):
    sW, sO = cfg["sW"], cfg["sO"]
    s_head, s_qb = cfg["s_head"], cfg["s_q0"]
    st = cfg["s_tmp"]
    s_goff, s_cnt, s_r0 = st, st + 1, st + 2
    s_hm = st + 4
    s_m16 = st + 6
    al = Alloc(1, 256)
    vK1, vK2, vV = al.get(), al.get(), al.get()
    sg = [al.get() for _ in range(3)]
    sl = [al.get() for _ in range(3)]
    vt = [al.get() for _ in range(6)]
    vOa = al.get()
    stg = [al.get(4, 4) for _ in range(3)]
    QB1 = [al.get(4, 4) for _ in range(2)]
    QB2 = [al.get(4, 4) for _ in range(2)]
    KA1 = [al.get(4, 4) for _ in range(2)]
    KA2 = [al.get(4, 4) for _ in range(2)]
    VF = [[al.get(4, 4) for _ in range(2)] for _ in range(2)]
    S = [[al.get(16, 4) for _ in range(2)] for _ in range(2)]
    Pp = [al.get(8, 4) for _ in range(2)]
    O = [al.get(16, 4) for _ in range(2)]
    cfg["vgprs"] = al.hi
    cfg["lds_bytes"] = 4 * ABUF
    t0, t1, t2, t3, t4, t5 = vt
    lg = VmQ(a, "lgkmcnt")

    a("v_lshrrev_b32 %s, 6, v0" % vr(t0))
    a("v_and_b32 %s, 1, %s" % (vr(t1), vr(t0)))
    a("v_lshrrev_b32 %s, 1, %s" % (vr(t2), vr(t0)))
    a("v_bfe_u32 %s, v0, 4, 2" % vr(t3))
    a("v_mad_u32_u24 %s, %s, 9, %s" % (vr(t3), vr(t1), vr(t3)))
    a("v_and_b32 %s, 15, v0" % vr(t4))
    a("v_lshlrev_b32 %s, 4, %s" % (vr(t4), vr(t4)))
    a("v_mul_u32_u24 %s, %d, %s" % (vr(t5), SK - SV, vr(t2)))
    a("v_sub_u32 %s, %d, %s" % (vr(t5), SK, vr(t5)))
    a("v_mul_u32_u24 %s, %d, %s" % (vr(t0), V_IMG, vr(t2)))
    a("v_add_u32 %s, %s, %s" % (vr(t0), vr(t0), vr(t4)))
    a("v_mul_u32_u24 %s, 576, %s" % (vr(t2), vr(t2)))
    a("v_add_u32 %s, %s, %s" % (vr(t2), sr(s_r0), vr(t2)))
    for i in range(3):
        a("v_add_u32 %s, %d, %s" % (vr(t1), 4 * i, vr(t3)))
        a("v_mul_u32_u24 %s, %s, %s" % (vr(sl[i]), vr(t1), vr(t5)))
        a("v_add_u32 %s, %s, %s" % (vr(sl[i]), vr(sl[i]), vr(t0)))
        a("v_add_u32 %s, %s, %s" % (vr(sg[i]), vr(t1), vr(t2)))
        a("v_lshlrev_b32 %s, 12, %s" % (vr(sg[i]), vr(sg[i])))
        a("v_add_u32 %s, %s, %s" % (vr(sg[i]), vr(sg[i]), vr(t4)))
    a("v_bfe_u32 %s, v0, 5, 1" % vr(t0))
    a("v_bfe_u32 %s, v0, 2, 2" % vr(t1))
    a("v_bfe_u32 %s, v0, 4, 1" % vr(t2))
    a("v_and_b32 %s, 3, v0" % vr(t3))
    a("v_lshlrev_b32 %s, 3, %s" % (vr(t3), vr(t3)))
    a("v_lshl_add_u32 %s, %s, 5, %s" % (vr(t3), vr(t2), vr(t3)))
    a("v_lshl_add_u32 %s, %s, 3, %s" % (vr(t4), vr(t0), vr(t1)))
    a("v_mul_u32_u24 %s, %d, %s" % (vr(vK1), SK, vr(t4)))
    a("v_add_u32 %s, %s, %s" % (vr(vK1), vr(vK1), vr(t3)))
    a("v_add_u32 %s, 16, %s" % (vr(t4), vr(t1)))
    a("v_mul_u32_u24 %s, %d, %s" % (vr(vK2), SK, vr(t4)))
    a("v_add_u32 %s, %s, %s" % (vr(vK2), vr(vK2), vr(t3)))
    a("v_and_b32 %s, 31, v0" % vr(t4))
    a("v_min_u32 %s, 19, %s" % (vr(t4), vr(t4)))
    a("v_mul_u32_u24 %s, %d, %s" % (vr(vV), SV, vr(t4)))
    a("v_lshl_add_u32 %s, %s, 4, %s" % (vr(vV), vr(t0), vr(vV)))
    a("v_add_u32 %s, %d, %s" % (vr(vV), V_IMG, vr(vV)))
    a("v_cmp_eq_u32 vcc, 0, %s" % vr(t0))
    a("s_mov_b64 %s, vcc" % sr(s_hm, 2))
    a("v_and_b32 %s, 63, v0" % vr(t1))
    a("v_cmp_gt_u32 vcc, 16, %s" % vr(t1))
    a("s_mov_b64 %s, vcc" % sr(s_m16, 2))

    def ld_chunk():
        for i in range(3):
            if i == 2:
                a("s_mov_b64 exec, %s" % sr(s_m16, 2))
            a("buffer_load_dwordx4 %s, %s, %s, %s offen" % (vr(stg[i], 4), vr(sg[i]), sr(sW, 4), sr(s_goff)))
            if i == 2:
                a("s_mov_b64 exec, -1")
        a("s_add_u32 %s, %s, 256" % (sr(s_goff), sr(s_goff)))

    def wr_chunk(buf):
        a("s_waitcnt vmcnt(0)")
        for i in range(3):
            if i == 2:
                a("s_mov_b64 exec, %s" % sr(s_m16, 2))
            a("ds_write_b128 %s, %s offset:%d" % (vr(sl[i]), vr(stg[i], 4), buf * ABUF))
            lg.push("wr")
            if i == 2:
                a("s_mov_b64 exec, -1")

    def rd_k(tile, par):
        buf, kt = (tile // 4) % 4, tile % 4
        off = buf * ABUF + K_IMG + kt * 64
        a("ds_read_b64_tr_b16 %s, %s offset:%d" % (vr(KA1[par], 2), vr(vK1), off)); lg.push(("k", par))
        a("ds_read_b64_tr_b16 %s, %s offset:%d" % (vr(KA1[par] + 2, 2), vr(vK1), off + 4 * SK)); lg.push(("k", par))
        a("ds_read_b64_tr_b16 %s, %s offset:%d" % (vr(KA2[par], 2), vr(vK2), off)); lg.push(("k", par))

    def rd_v(tile, par):
        buf, kt = (tile // 4) % 4, tile % 4
        off = buf * ABUF + kt * 64
        for m in range(2):
            a("ds_read_b128 %s, %s offset:%d" % (vr(VF[par][m], 4), vr(vV), off + 32 * m)); lg.push(("v", par))

    s_mode = st + 8
    lp1, lpass2, lfall, lstore, lskipm = [a.newlabel(x) for x in ("AP1", "APASS2", "AFALL", "ASTORE", "ASKIPM")]
    a("s_mov_b32 %s, 0" % sr(s_mode))
    a("s_mov_b32 %s, 0" % sr(s_goff))
    ld_chunk()
    a("v_lshrrev_b32 %s, 6, v0" % vr(t1))
    a("v_lshlrev_b32 %s, 6, %s" % (vr(t1), vr(t1)))
    a("v_and_b32 %s, 31, v0" % vr(t2))
    a("v_add3_u32 %s, %s, %s, %s" % (vr(t1), vr(t1), vr(t2), sr(s_qb)))
    a("v_mul_u32_u24 %s, 1152, %s" % (vr(vOa), vr(t1)))
    a("v_lshlrev_b32 %s, 1, %s" % (vr(t1), vr(t1)))
    a("v_lshl_add_u32 %s, %s, 15, %s" % (vr(t2), vr(t0), vr(t1)))
    a("s_sub_u32 %s, %s, 576" % (sr(s_cnt), sr(s_r0)))
    a("s_lshl_b32 %s, %s, 12" % (sr(s_cnt), sr(s_cnt)))
    QT = [S[0][1], S[1][1]]
    for qt in range(2):
        for j in range(8):
            a("s_add_u32 %s, %s, %d" % (sr(st + 3), sr(s_cnt), j * 4096 + qt * 64))
            a("buffer_load_ushort %s, %s, %s, %s offen" % (vr(QT[qt] + j), vr(t2), sr(sW, 4), sr(st + 3)))
        for j in range(2):
            a("s_add_u32 %s, %s, %d" % (sr(st + 3), sr(s_cnt), (16 + j) * 4096 + qt * 64))
            a("buffer_load_ushort %s, %s, %s, %s offen" % (vr(QT[qt] + 8 + j), vr(t1), sr(sW, 4), sr(st + 3)))
        for r in range(1, 4):
            a("v_mov_b32 %s, 0" % vr(QB2[qt] + r))
    for p_ in range(2):
        a("v_mov_b32 %s, 0" % vr(KA2[p_] + 2))
        a("v_mov_b32 %s, 0" % vr(KA2[p_] + 3))
    a("v_bfe_u32 %s, v0, 4, 2" % vr(t3))
    a("v_lshrrev_b32 %s, 1, %s" % (vr(t4), vr(t3)))
    a("v_and_b32 %s, 1, %s" % (vr(t3), vr(t3)))
    a("v_add_u32 %s, 18, %s" % (vr(t5), vr(t3)))
    a("v_mul_u32_u24 %s, %d, %s" % (vr(t2), SK, vr(t5)))
    a("v_mul_u32_u24 %s, %d, %s" % (vr(t5), SV, vr(t5)))
    a("v_add_u32 %s, %d, %s" % (vr(t5), V_IMG, vr(t5)))
    a("v_cmp_eq_u32 vcc, 1, %s" % vr(t4))
    a("v_cndmask_b32 %s, %s, %s, vcc" % (vr(t2), vr(t2), vr(t5)))
    a("v_and_b32 %s, 15, v0" % vr(t5))
    a("v_lshl_add_u32 %s, %s, 4, %s" % (vr(t2), vr(t5), vr(t2)))
    a("v_lshrrev_b32 %s, 6, v0" % vr(t5))
    a("v_mul_u32_u24 %s, %d, %s" % (vr(t5), ABUF, vr(t5)))
    a("v_add_u32 %s, %s, %s" % (vr(t2), vr(t2), vr(t5)))
    a("v_and_b32 %s, %s, %s" % (vr(t3), vr(t3), vr(t4)))
    a("v_cmp_eq_u32 vcc, 0, %s" % vr(t3))
    a("v_mov_b32 %s, 0x%x" % (vr(t3), ONES))
    a("v_cndmask_b32 %s, 0, %s, vcc" % (vr(t3), vr(t3)))
    a("v_mov_b32 %s, %s" % (vr(S[0][0]), vr(t3)))
    a("v_mov_b32 %s, %s" % (vr(S[0][0] + 1), vr(t3)))
    a("v_mov_b32 %s, %s" % (vr(S[0][0] + 2), vr(t3)))
    a("v_mov_b32 %s, %s" % (vr(S[0][0] + 3), vr(t3)))
    a("ds_write_b128 %s, %s" % (vr(t2), vr(S[0][0], 4)))
    wr_chunk(0)
    ld_chunk()
    for qt in range(2):
        for j in range(4):
            a("v_lshl_or_b32 %s, %s, 16, %s" % (vr(QB1[qt] + j), vr(QT[qt] + 2 * j + 1), vr(QT[qt] + 2 * j)))
        a("v_lshl_or_b32 %s, %s, 16, %s" % (vr(QB2[qt]), vr(QT[qt] + 9), vr(QT[qt] + 8)))
        a("v_cndmask_b32 %s, 0, %s, %s" % (vr(QB2[qt]), vr(QB2[qt]), sr(s_hm, 2)))
    a.flush()
    a("s_branch %s" % lp1)
    a.label(lpass2)
    a("s_mov_b32 %s, 0" % sr(s_goff))
    ld_chunk()
    wr_chunk(0)
    ld_chunk()
    a.label(lp1)
    a("s_waitcnt lgkmcnt(0)")
    lg.q = []
    a("s_barrier")
    rd_k(0, 0)
    rd_k(1, 1)
    lg.wait(("k", 0))
    a("s_cmp_lg_u32 %s, 0" % sr(s_mode))
    a("s_cbranch_scc1 %s" % lskipm)
    for qt in range(2):
        Sx = S[qt][0]
        a("v_mfma_f32_32x32x16_bf16 %s, %s, %s, 0" % (vr(Sx, 16), vr(KA1[0], 4), vr(QB1[qt], 4)))
        a("v_mfma_f32_32x32x16_bf16 %s, %s, %s, %s" % (vr(Sx, 16), vr(KA2[0], 4), vr(QB2[qt], 4), vr(Sx, 16)))
    for qt in range(2):
        Sx = S[qt][0]
        a("v_max3_f32 %s, %s, %s, %s" % (vr(t0), vr(Sx), vr(Sx + 1), vr(Sx + 2)))
        for r in range(3, 15, 2):
            a("v_max3_f32 %s, %s, %s, %s" % (vr(t0), vr(t0), vr(Sx + r), vr(Sx + r + 1)))
        a("v_max_f32 %s, %s, %s" % (vr(t0), vr(t0), vr(Sx + 15)))
        a("v_mov_b32 %s, %s" % (vr(t1), vr(t0)))
        a("v_permlane32_swap_b32 %s, %s" % (vr(t0), vr(t1)))
        a("v_max_f32 %s, %s, %s" % (vr(t0), vr(t0), vr(t1)))
        set_m(a, QB2[qt] + 1, t0, t1, t2, s_hm)
    a.flush()
    a.label(lskipm)
    for qt in range(2):
        Sx = S[qt][0]
        a("v_mfma_f32_32x32x16_bf16 %s, %s, %s, 0" % (vr(Sx, 16), vr(KA1[0], 4), vr(QB1[qt], 4)))
        a("v_mfma_f32_32x32x16_bf16 %s, %s, %s, %s" % (vr(Sx, 16), vr(KA2[0], 4), vr(QB2[qt], 4), vr(Sx, 16)))
    for qt in range(2):
        for r in range(16):
            a("v_mov_b32 %s, 0" % vr(O[qt] + r))
    for r in range(8):
        a("v_mov_b32 %s, 0" % vr(Pp[1] + r))
    for m in range(2):
        for r in range(4):
            a("v_mov_b32 %s, 0" % vr(VF[1][m] + r))
    a("s_mov_b32 %s, 0" % sr(s_cnt))
    assert lg.q == [("k", 1)] * 3, lg.q

    def half_e(Sb, r0, Pb, p0, mf):
        e = lambda r: a("v_exp_f32 %s, %s" % (vr(Sb + r), vr(Sb + r)))
        c = lambda k: a("v_cvt_pk_bf16_f32 %s, %s, %s" % (vr(Pb + p0 + k), vr(Sb + r0 + 2 * k), vr(Sb + r0 + 2 * k + 1)))
        VAR = os.environ.get("AVAR", "")
        if "m" in VAR:
            mf = ["s_nop 0", "s_nop 0"]
        if "e" in VAR:
            e = lambda r: None
        if "c" in VAR:
            c = lambda k: None
        a(mf[0])
        e(r0); e(r0 + 1); e(r0 + 2); e(r0 + 3); c(0)
        a(mf[1])
        e(r0 + 4); c(1); e(r0 + 5); e(r0 + 6); e(r0 + 7); c(2); c(3)

    if cfg.get("prof"):
        a("s_memtime s[40:41]")
        a("s_memrealtime s[50:51]")
        a("s_waitcnt lgkmcnt(0)")
    lloop = a.newlabel("ALOOP")
    a.flush()
    a.label(lloop)
    for t in range(16):
        par = t & 1
        kt = t % 4
        buf = (t // 4) % 4
        if kt == 0:
            wr_chunk((buf + 1) % 4)
            ld_chunk()
        rd_v(t, par)
        half_e(S[0][par], 0, Pp[0], 0,
               ["v_mfma_f32_32x32x16_bf16 %s, %s, %s, %s" % (vr(O[1], 16), vr(VF[1 - par][m], 4), vr(Pp[1] + 4 * m, 4), vr(O[1], 16)) for m in range(2)])
        lg.wait(("k", 1 - par))
        Sn = S[0][1 - par]
        half_e(S[0][par], 8, Pp[0], 4,
               ["v_mfma_f32_32x32x16_bf16 %s, %s, %s, 0" % (vr(Sn, 16), vr(KA1[1 - par], 4), vr(QB1[0], 4)),
                "v_mfma_f32_32x32x16_bf16 %s, %s, %s, %s" % (vr(Sn, 16), vr(KA2[1 - par], 4), vr(QB2[0], 4), vr(Sn, 16))])
        rd_k(t + 2, par)
        lg.wait(("v", par))
        half_e(S[1][par], 0, Pp[1], 0,
               ["v_mfma_f32_32x32x16_bf16 %s, %s, %s, %s" % (vr(O[0], 16), vr(VF[par][m], 4), vr(Pp[0] + 4 * m, 4), vr(O[0], 16)) for m in range(2)])
        Sn = S[1][1 - par]
        half_e(S[1][par], 8, Pp[1], 4,
               ["v_mfma_f32_32x32x16_bf16 %s, %s, %s, 0" % (vr(Sn, 16), vr(KA1[1 - par], 4), vr(QB1[1], 4)),
                "v_mfma_f32_32x32x16_bf16 %s, %s, %s, %s" % (vr(Sn, 16), vr(KA2[1 - par], 4), vr(QB2[1], 4), vr(Sn, 16))])
        if kt == 1:
            lg.wait("wr")
            a("s_barrier")
    assert lg.q == [("k", 1)] * 3, lg.q
    a("s_add_u32 %s, %s, 1" % (sr(s_cnt), sr(s_cnt)))
    a("s_cmp_lt_u32 %s, 4" % sr(s_cnt))
    a.flush()
    a("s_cbranch_scc1 %s" % lloop)
    if cfg.get("prof"):
        a("s_memtime s[42:43]")
        a("s_memrealtime s[52:53]")
        a("s_load_dwordx2 s[44:45], s[0:1], 96")
        a("s_waitcnt lgkmcnt(0)")
        a("s_sub_u32 s42, s42, s40")
        a("s_sub_u32 s52, s52, s50")
        a("s_mov_b32 s46, 256")
        a("s_mov_b32 s47, 0x00020000")
        a("v_mov_b32 %s, s42" % vr(t0))
        a("v_lshlrev_b32 %s, 2, s2" % vr(t1))
        a("v_cmp_eq_u32 vcc, 0, v0")
        a("s_and_saveexec_b64 s[48:49], vcc")
        a("buffer_store_dword %s, %s, s[44:47], 0 offen" % (vr(t0), vr(t1)))
        a("v_mov_b32 %s, s52" % vr(t0))
        a("buffer_store_dword %s, %s, s[44:47], 0 offen offset:128" % (vr(t0), vr(t1)))
        a("s_mov_b64 exec, s[48:49]")
    for m in range(2):
        a("v_mfma_f32_32x32x16_bf16 %s, %s, %s, %s" % (vr(O[1], 16), vr(VF[1][m], 4), vr(Pp[1] + 4 * m, 4), vr(O[1], 16)))
    a("s_waitcnt vmcnt(0) lgkmcnt(0)")
    a("s_cmp_lg_u32 %s, 0" % sr(s_mode))
    a("s_cbranch_scc1 %s" % lstore)
    a("s_mov_b64 %s, 0" % sr(st + 10, 2))
    for qt in range(2):
        Ox = O[qt]
        a("v_mul_f32 %s, 0, %s" % (vr(t0), vr(Ox)))
        for r in range(1, 11):
            a("v_fma_f32 %s, %s, 0, %s" % (vr(t0), vr(Ox + r), vr(t0)))
        a("v_cmp_eq_f32 vcc, 0, %s" % vr(t0))
        a("s_andn2_b64 %s, exec, vcc" % sr(st + 12, 2))
        a("s_or_b64 %s, %s, %s" % (sr(st + 10, 2), sr(st + 10, 2), sr(st + 12, 2)))
        a("v_mov_b32 %s, 0x%x" % (vr(t1), 0xff800000 if os.environ.get("AFORCE") else 0x71800000))
        a("v_cmp_lt_f32 vcc, %s, %s" % (vr(Ox + 10), vr(t1)))
        a("s_andn2_b64 %s, exec, vcc" % sr(st + 12, 2))
        a("s_or_b64 %s, %s, %s" % (sr(st + 10, 2), sr(st + 10, 2), sr(st + 12, 2)))
    a("s_cmp_lg_u64 %s, 0" % sr(st + 10, 2))
    a("s_cselect_b32 %s, 1, 0" % sr(st + 10))
    a("v_mov_b32 %s, %s" % (vr(t0), sr(st + 10)))
    a("v_lshrrev_b32 %s, 6, v0" % vr(t1))
    a("v_lshlrev_b32 %s, 2, %s" % (vr(t1), vr(t1)))
    a("ds_write_b32 %s, %s offset:256" % (vr(t1), vr(t0)))
    a("s_waitcnt lgkmcnt(0)")
    a("s_barrier")
    a("v_mov_b32 %s, 0" % vr(t1))
    a("ds_read_b128 %s, %s offset:256" % (vr(S[0][0], 4), vr(t1)))
    a("s_waitcnt lgkmcnt(0)")
    a("v_or_b32 %s, %s, %s" % (vr(t0), vr(S[0][0]), vr(S[0][0] + 1)))
    a("v_or3_b32 %s, %s, %s, %s" % (vr(t0), vr(t0), vr(S[0][0] + 2), vr(S[0][0] + 3)))
    a("v_readfirstlane_b32 %s, %s" % (sr(st + 10), vr(t0)))
    a("s_cmp_lg_u32 %s, 0" % sr(st + 10))
    a("s_cbranch_scc1 %s" % lfall)
    a.flush()
    a.label(lstore)
    a("v_bfe_u32 %s, v0, 5, 1" % vr(t0))
    a("v_lshl_add_u32 %s, %s, 3, %s" % (vr(vOa), vr(t0), vr(vOa)))
    a("s_mul_i32 %s, %s, 36" % (sr(st + 3), sr(s_head)))
    for qt in range(2):
        Ox = O[qt]
        a("v_mov_b32 %s, %s" % (vr(t1), vr(Ox + 10)))
        a("v_mov_b32 %s, %s" % (vr(t2), vr(Ox + 10)))
        a("v_permlane32_swap_b32 %s, %s" % (vr(t1), vr(t2)))
        a("v_rcp_f32 %s, %s" % (vr(t1), vr(t1)))
        for r in range(10):
            a("v_mul_f32 %s, %s, %s" % (vr(Ox + r), vr(t1), vr(Ox + r)))
        for p_ in range(5):
            a("v_cvt_pk_bf16_f32 %s, %s, %s" % (vr(Ox + p_), vr(Ox + 2 * p_), vr(Ox + 2 * p_ + 1)))
        a("buffer_store_dwordx2 %s, %s, %s, %s offen" % (vr(Ox, 2), vr(vOa), sr(sO, 4), sr(st + 3)))
        a("buffer_store_dwordx2 %s, %s, %s, %s offen offset:16" % (vr(Ox + 2, 2), vr(vOa), sr(sO, 4), sr(st + 3)))
        a("s_mov_b64 exec, %s" % sr(s_hm, 2))
        a("buffer_store_dword %s, %s, %s, %s offen offset:32" % (vr(Ox + 4), vr(vOa), sr(sO, 4), sr(st + 3)))
        a("s_mov_b64 exec, -1")
        a("s_add_u32 %s, %s, %d" % (sr(st + 3), sr(st + 3), 32 * 1152))
    a("s_endpgm")
    a.label(lfall)
    lg = VmQ(a, "lgkmcnt")
    a("s_barrier")
    for qt in range(2):
        a("v_mov_b32 %s, 0" % vr(QB2[qt] + 1))
        a("v_mov_b32 %s, 0xff800000" % vr(O[qt]))
    a("s_mov_b32 %s, 0" % sr(s_goff))
    ld_chunk()
    wr_chunk(0)
    ld_chunk()
    a("s_waitcnt lgkmcnt(0)")
    lg.q = []
    a("s_barrier")
    rd_k(0, 0)
    rd_k(1, 1)
    a("s_mov_b32 %s, 0" % sr(s_cnt))
    lml = a.newlabel("AMAX")
    a.flush()
    a.label(lml)
    for t in range(16):
        par, kt, buf = t & 1, t % 4, (t // 4) % 4
        if kt == 0:
            wr_chunk((buf + 1) % 4)
            ld_chunk()
        lg.wait(("k", par))
        for qt in range(2):
            Sx = S[qt][0]
            a("v_mfma_f32_32x32x16_bf16 %s, %s, %s, 0" % (vr(Sx, 16), vr(KA1[par], 4), vr(QB1[qt], 4)))
            a("v_mfma_f32_32x32x16_bf16 %s, %s, %s, %s" % (vr(Sx, 16), vr(KA2[par], 4), vr(QB2[qt], 4), vr(Sx, 16)))
        for qt in range(2):
            Sx = S[qt][0]
            for r in range(0, 16, 2):
                a("v_max3_f32 %s, %s, %s, %s" % (vr(O[qt]), vr(O[qt]), vr(Sx + r), vr(Sx + r + 1)))
        rd_k(t + 2, par)
        if kt == 1:
            lg.wait("wr")
            a("s_barrier")
    a("s_add_u32 %s, %s, 1" % (sr(s_cnt), sr(s_cnt)))
    a("s_cmp_lt_u32 %s, 4" % sr(s_cnt))
    a.flush()
    a("s_cbranch_scc1 %s" % lml)
    a("s_waitcnt vmcnt(0) lgkmcnt(0)")
    for qt in range(2):
        a("v_mov_b32 %s, %s" % (vr(t0), vr(O[qt])))
        a("v_mov_b32 %s, %s" % (vr(t1), vr(O[qt])))
        a("v_permlane32_swap_b32 %s, %s" % (vr(t0), vr(t1)))
        a("v_max_f32 %s, %s, %s" % (vr(t0), vr(t0), vr(t1)))
        set_m(a, QB2[qt] + 1, t0, t1, t2, s_hm)
    a("s_mov_b32 %s, 1" % sr(s_mode))
    a("s_barrier")
    a.flush()
    a("s_branch %s" % lpass2)


def set_m(a, dst, vM, t1, t2, s_hm):
    a("v_cvt_pk_bf16_f32 %s, %s, %s" % (vr(t1), vr(vM), vr(vM)))
    a("v_lshlrev_b32 %s, 16, %s" % (vr(t1), vr(t1)))
    a("v_sub_f32 %s, %s, %s" % (vr(t2), vr(vM), vr(t1)))
    a("v_cvt_pk_bf16_f32 %s, -%s, -%s" % (vr(t2), vr(t1), vr(t2)))
    a("v_cndmask_b32 %s, 0, %s, %s" % (vr(dst), vr(t2), sr(s_hm, 2)))


def kernel_attn(a, name):
    a.raw(".globl %s" % name)
    a.raw(".p2align 8")
    a.raw(".type %s,@function" % name)
    a.label(name)
    lend = a.newlabel("END")
    a("s_cmp_ge_u32 s2, 256")
    a("s_cbranch_scc1 %s" % lend)
    a("s_load_dwordx2 s[24:25], s[0:1], 104")
    a("s_waitcnt lgkmcnt(0)")
    make_srd(a, 4, 24, 1728 * 4096, WS_QKVT)
    make_srd(a, 8, 24, 2048 * 1152, WS_O)
    a("s_and_b32 s26, s2, 7")
    a("s_lshr_b32 s27, s2, 3")
    a("s_and_b32 s27, s27, 3")
    a("s_lshl_b32 s27, s27, 3")
    a("s_add_u32 s26, s26, s27")
    a("s_lshr_b32 s27, s2, 5")
    a("s_lshl_b32 s27, s27, 8")
    c = dict(sW=4, sO=8, s_head=26, s_q0=27, s_tmp=28, prof=PROF)
    a("s_mul_i32 s30, s26, 18")
    a("s_add_u32 s30, s30, 576")
    attn_role(a, c)
    a.label(lend)
    a("s_endpgm")
    return dict(name=name, grid=256, lds=c["lds_bytes"], vgprs=c["vgprs"])


def prep_role(a, cfg):
    s_wg = cfg["s_wg"]
    a("s_load_dwordx2 s[20:21], s[0:1], 0")
    a("s_load_dwordx2 s[22:23], s[0:1], 80")
    a("s_load_dwordx2 s[24:25], s[0:1], 104")
    a("v_lshrrev_b32 v1, 6, v0")
    a("v_readfirstlane_b32 s26, v1")
    a("s_waitcnt lgkmcnt(0)")
    make_srd(a, 4, 20, 2048 * 1152)
    make_srd(a, 8, 24, 576 * 4096, WS_XT)
    make_srd(a, 12, 24, 8192, WS_G)
    a("s_mul_i32 s27, s26, 288")
    a("s_add_u32 s22, s22, s27")
    a("s_addc_u32 s23, s23, 0")
    for i in range(9):
        a("s_load_dwordx8 s[%d:%d], s[22:23], %d" % (28 + 8 * i, 35 + 8 * i, 32 * i))
    a("v_and_b32 v1, 63, v0")
    a("s_lshl_b32 s16, %s, 6" % sr(s_wg))
    a("v_add_u32 v1, s16, v1")
    a("v_mul_u32_u24 v2, 1152, v1")
    a("v_add_u32 v2, s27, v2")
    for i in range(18):
        a("buffer_load_dwordx4 v[%d:%d], v2, s[4:7], 0 offen offset:%d" % (16 + 4 * i, 19 + 4 * i, 16 * i))
    a("s_mul_i32 s17, s26, %d" % (144 * 4096))
    a("v_lshlrev_b32 v3, 1, v1")
    a("v_add_u32 v3, s17, v3")
    a("v_mov_b32 v4, 0")
    a("s_waitcnt lgkmcnt(0)")
    for r in range(72):
        if r % 4 == 0:
            a("s_waitcnt vmcnt(%d)" % (17 - r // 4))
        x = 16 + r
        a("s_mov_b32 s18, 0x%x" % (2 * r * 4096))
        a("buffer_store_short v%d, v3, s[8:11], s18 offen" % x)
        a("s_mov_b32 s19, 0x%x" % ((2 * r + 1) * 4096))
        a("buffer_store_short_d16_hi v%d, v3, s[8:11], s19 offen" % x)
        a("v_lshlrev_b32 v5, 16, v%d" % x)
        a("v_and_b32 v6, 0xffff0000, v%d" % x)
        a("s_lshl_b32 s18, s%d, 16" % (28 + r))
        a("s_and_b32 s19, s%d, 0xffff0000" % (28 + r))
        a("v_mul_f32 v5, s18, v5")
        a("v_mul_f32 v6, s19, v6")
        a("v_cvt_pk_bf16_f32 v7, v5, v6")
        a("v_lshlrev_b32 v5, 16, v7")
        a("v_and_b32 v6, 0xffff0000, v7")
        a("v_add_f32 v4, v4, v5")
        a("v_add_f32 v4, v4, v6")
    a("v_lshlrev_b32 v5, 2, v0")
    a("ds_write_b32 v5, v4")
    a("s_waitcnt lgkmcnt(0)")
    a("s_barrier")
    lskip = a.newlabel("PREPX")
    a("s_cmp_lg_u32 s26, 0")
    a("s_cbranch_scc1 %s" % lskip)
    a("ds_read_b32 v6, v5")
    a("ds_read_b32 v7, v5 offset:256")
    a("ds_read_b32 v8, v5 offset:512")
    a("ds_read_b32 v9, v5 offset:768")
    a("s_waitcnt lgkmcnt(0)")
    a("v_add_f32 v6, v6, v7")
    a("v_add_f32 v8, v8, v9")
    a("v_add_f32 v6, v6, v8")
    a("v_cvt_pk_bf16_f32 v6, v6, v6")
    a("v_and_b32 v6, 0xffff0000, v6")
    a("v_mul_f32 v6, 0xbfb8aa3b, v6")
    a("v_exp_f32 v6, v6")
    a("v_add_f32 v6, 1.0, v6")
    a("v_rcp_f32 v6, v6")
    a("v_cvt_pk_bf16_f32 v6, v6, v6")
    a("v_and_b32 v6, 0xffff0000, v6")
    a("v_lshlrev_b32 v7, 2, v1")
    a("buffer_store_dword v6, v7, s[12:15], 0 offen")
    a.label(lskip)
    a("s_waitcnt vmcnt(0)")
    cfg["vgprs"] = 88
    cfg["lds_bytes"] = 1024


def kernel_prep(a, name):
    a.raw(".globl %s" % name)
    a.raw(".p2align 8")
    a.raw(".type %s,@function" % name)
    a.label(name)
    lend = a.newlabel("END")
    a("s_cmp_ge_u32 s2, 32")
    a("s_cbranch_scc1 %s" % lend)
    c = dict(s_wg=2)
    prep_role(a, c)
    a.label(lend)
    a("s_endpgm")
    return dict(name=name, grid=32, lds=c["lds_bytes"], vgprs=c["vgprs"])


def hi_rows():
    rows = []
    for c in range(2):
        for r in range(8):
            rows.append(128 * c + r)
    for c in (2, 3):
        for r in (0, 2, 4, 6):
            rows.append(128 * c + r)
    for c in (4, 5, 6, 7):
        for r in (0, 4):
            rows.append(128 * c + r)
    for c in range(8, 16):
        rows.append(128 * c)
    rows.append(2048)
    while len(rows) < 48:
        rows.append(0)
    return rows


LOG2E = f32bits(1.4426950408889634)
INV2PI = f32bits(0.15915494309189535)


def kgen_role(a, cfg):
    s_wg = cfg["s_wg"]
    a("s_load_dwordx8 s[20:27], s[0:1], 32")
    a("s_load_dwordx2 s[28:29], s[0:1], 64")
    a("s_load_dwordx2 s[30:31], s[0:1], 104")
    a("v_lshrrev_b32 v3, 6, v0")
    a("v_readfirstlane_b32 s40, v3")
    a("s_lshl_b32 s41, %s, 2" % sr(s_wg))
    a("s_add_u32 s41, s41, s40")
    a("s_waitcnt lgkmcnt(0)")
    for i in range(4):
        make_srd(a, 4 + 4 * i, 20 + 2 * i, 576 * 256)
    a("s_lshr_b32 s32, s41, 1")
    a("s_lshl_b32 s32, s32, 2")
    a("s_load_dword s33, s[28:29], s32")
    a("v_and_b32 v1, 15, v0")
    a("v_bfe_u32 v2, v0, 4, 2")
    a("v_lshlrev_b32 v4, 6, v2")
    a("s_lshl_b32 s34, s41, 8")
    a("v_add_u32 v4, s34, v4")
    IN = 64
    for i in range(4):
        for q in range(4):
            a("buffer_load_dwordx4 v[%d:%d], v4, s[%d:%d], 0 offen offset:%d" % (IN + 16 * i + 4 * q, IN + 16 * i + 4 * q + 3, 4 + 4 * i, 7 + 4 * i, 16 * q))
    a("v_lshrrev_b32 v5, 3, v1")
    a("v_lshlrev_b32 v5, 7, v5")
    a("v_and_b32 v6, 7, v1")
    a("v_add_u32 v5, v5, v6")
    a("v_cvt_f32_u32 v8, v5")
    a("v_lshrrev_b32 v5, 2, v1")
    a("v_add_u32 v5, 2, v5")
    a("v_lshlrev_b32 v5, 7, v5")
    a("v_and_b32 v6, 3, v1")
    a("v_lshl_add_u32 v5, v6, 1, v5")
    a("v_lshrrev_b32 v6, 1, v1")
    a("v_lshlrev_b32 v6, 7, v6")
    a("v_and_b32 v7, 1, v1")
    a("v_lshl_add_u32 v6, v7, 2, v6")
    a("v_cmp_gt_u32 vcc, 8, v1")
    a("v_cndmask_b32 v5, v6, v5, vcc")
    a("v_cvt_f32_u32 v9, v5")
    a("v_add_u32 v5, 8, v1")
    a("v_lshlrev_b32 v5, 7, v5")
    a("v_cmp_ge_u32 vcc, 8, v1")
    a("v_cndmask_b32 v5, 0, v5, vcc")
    a("v_cvt_f32_u32 v10, v5")
    a("v_lshlrev_b32 v5, 3, v1")
    a("v_cvt_f32_u32 v11, v5")
    for mt in range(3):
        for i in range(4):
            a("v_mov_b32 v%d, 0" % (48 + 4 * mt + i))
    a("s_waitcnt lgkmcnt(0)")
    a("s_and_b32 s35, s41, 1")
    a("s_lshl_b32 s36, s33, 16")
    a("s_and_b32 s37, s33, 0xffff0000")
    a("s_cmp_eq_u32 s35, 0")
    a("s_cselect_b32 s36, s36, s37")
    a("v_mov_b32 v12, 0x%x" % LOG2E)
    a("v_mul_f32 v12, s36, v12")
    a("v_exp_f32 v12, v12")
    a("v_cvt_pk_bf16_f32 v12, v12, v12")
    a("v_lshlrev_b32 v12, 16, v12")

    def cexp(p, o):
        a("v_mul_f32 v%d, v40, %s" % (o, p))
        a("v_mul_f32 v%d, v41, %s" % (o + 1, p))
        a("v_exp_f32 v%d, v%d" % (o, o))
        a("v_fract_f32 v%d, v%d" % (o + 1, o + 1))
        a("v_sin_f32 v%d, v%d" % (o + 2, o + 1))
        a("v_cos_f32 v%d, v%d" % (o + 1, o + 1))

    for st_ in range(32):
        if st_ % 8 == 0:
            a("s_waitcnt vmcnt(%d)" % (3 - st_ // 8) if False else "s_waitcnt vmcnt(0)")

        def unpack(dst, base):
            r = base + st_ // 2
            if st_ & 1:
                a("v_and_b32 %s, 0xffff0000, v%d" % (dst, r))
            else:
                a("v_lshlrev_b32 %s, 16, v%d" % (dst, r))
        unpack("v40", IN)
        unpack("v41", IN + 16)
        unpack("v42", IN + 32)
        unpack("v43", IN + 48)
        a("v_mul_f32 v40, 0x%x, v40" % LOG2E)
        a("v_mul_f32 v41, v41, v12")
        a("v_exp_f32 v40, v40")
        a("v_mul_f32 v41, 0x%x, v41" % INV2PI)
        a("v_mul_f32 v42, v42, v12")
        a("v_mul_f32 v43, v43, v12")
        a("v_cvt_pk_bf16_f32 v40, v40, v40")
        a("v_lshlrev_b32 v40, 16, v40")
        a("v_mul_f32 v40, v40, v12")
        a("v_mul_f32 v40, 0x%x, v40" % (LOG2E | 0x80000000))
        cexp("v11", 32)
        for mt in range(3):
            cexp("v%d" % (8 + mt), 20 + 4 * mt)
        a("v_mul_f32 v44, v42, v33")
        a("v_fma_f32 v44, -v43, v34, v44")
        a("v_mul_f32 v44, v44, v32")
        a("v_mul_f32 v45, v42, v34")
        a("v_fma_f32 v45, v43, v33, v45")
        a("v_mul_f32 v45, -v45, v32")
        for mt in range(3):
            o = 20 + 4 * mt
            a("v_mul_f32 v%d, v%d, v%d" % (o + 1, o, o + 1))
            a("v_mul_f32 v%d, v%d, v%d" % (o + 2, o, o + 2))
        for mt in range(3):
            o = 20 + 4 * mt
            D = "v[%d:%d]" % (48 + 4 * mt, 51 + 4 * mt)
            a("v_mfma_f32_16x16x4_f32 %s, v%d, v44, %s" % (D, o + 1, D))
            a("v_mfma_f32_16x16x4_f32 %s, v%d, v45, %s" % (D, o + 2, D))
    a("s_mul_i32 s42, s40, 3072")
    a("v_lshlrev_b32 v5, 8, v2")
    a("v_lshl_add_u32 v5, v1, 2, v5")
    a("v_add_u32 v5, s42, v5")
    for mt in range(3):
        for i in range(4):
            a("v_mul_f32 v%d, 2.0, v%d" % (48 + 4 * mt + i, 48 + 4 * mt + i))
            a("ds_write_b32 v5, v%d offset:%d" % (48 + 4 * mt + i, (16 * mt + i) * 64))
    a("v_and_b32 v13, 63, v0")
    a("v_lshlrev_b32 v5, 3, v13")
    a("v_sub_u32 v5, 2047, v5")
    make_srd(a, 4, 30, 576 * KR_STRIDE, WS_KR)
    a("s_mul_i32 s34, s41, %d" % KR_STRIDE)
    a("v_lshlrev_b32 v14, 4, v13")
    a("s_waitcnt lgkmcnt(0)")
    for it in range(4):
        for e in range(8):
            a("v_subrev_u32 v20, %d, v5" % (e + 512 * it))
            a("v_cvt_f32_u32 v20, v20")
            a("v_cvt_pk_bf16_f32 v20, v20, v20")
            a("v_lshlrev_b32 v20, 16, v20")
            a("v_cvt_u32_f32 v20, v20")
            a("v_or_b32 v23, 1, v20")
            a("v_ffbh_u32 v23, v23")
            a("v_sub_u32 v23, 24, v23")
            a("v_med3_i32 v23, v23, 0, 3")
            a("v_lshrrev_b32 v21, 7, v20")
            a("v_and_b32 v22, 7, v20")
            a("v_lshrrev_b32 v22, v23, v22")
            a("v_sub_u32 v24, 3, v23")
            a("v_lshlrev_b32 v21, v24, v21")
            a("v_lshl_add_u32 v21, v23, 3, v21")
            a("v_add_u32 v21, v21, v22")
            a("v_bfe_u32 v22, v20, 3, 4")
            a("v_lshl_add_u32 v21, v21, 4, v22")
            a("v_lshl_add_u32 v21, v21, 2, s42")
            a("ds_read_b32 v%d, v21" % (64 + 8 * it + e))
    for it in range(4):
        a("s_waitcnt lgkmcnt(%d)" % (8 * (3 - it) if it < 3 else 0) if it >= 2 else "s_waitcnt lgkmcnt(0)")
        for e in range(4):
            a("v_cvt_pk_bf16_f32 v%d, v%d, v%d" % (96 + 4 * it + e, 64 + 8 * it + 2 * e, 65 + 8 * it + 2 * e))
        a("buffer_store_dwordx4 v[%d:%d], v14, s[4:7], s34 offen offset:%d" % (96 + 4 * it, 99 + 4 * it, 1024 * it))
    a("v_mov_b32 v40, 0")
    a("v_mov_b32 v41, 0")
    a("v_mov_b32 v42, 0")
    a("v_mov_b32 v43, 0")
    a("s_add_u32 s34, s34, 4096")
    a("v_cmp_gt_u32 vcc, 8, v13")
    a("s_and_saveexec_b64 s[38:39], vcc")
    a("buffer_store_dwordx4 v[40:43], v14, s[4:7], s34 offen")
    a("s_mov_b64 exec, s[38:39]")
    a("s_waitcnt vmcnt(0)")
    cfg["vgprs"] = 128
    cfg["lds_bytes"] = 4 * 3072


def kernel_kgen(a, name):
    a.raw(".globl %s" % name)
    a.raw(".p2align 8")
    a.raw(".type %s,@function" % name)
    a.label(name)
    lend = a.newlabel("END")
    a("s_cmp_ge_u32 s2, 144")
    a("s_cbranch_scc1 %s" % lend)
    c = dict(s_wg=2)
    kgen_role(a, c)
    a.label(lend)
    a("s_endpgm")
    return dict(name=name, grid=144, lds=c["lds_bytes"], vgprs=c["vgprs"])


CU_ROW = 144
CU_SZ = 33 * CU_ROW
KC = 1312
CW = CU_SZ + 8 * KC


def conv_role(a, cfg):
    s_wg = cfg["s_wg"]
    a("s_load_dwordx2 s[22:23], s[0:1], 72")
    a("s_load_dwordx2 s[24:25], s[0:1], 104")
    a("v_lshrrev_b32 v1, 6, v0")
    a("v_readfirstlane_b32 s26, v1")
    a("s_lshl_b32 s27, %s, 2" % sr(s_wg))
    a("s_add_u32 s27, s27, s26")
    a("s_waitcnt lgkmcnt(0)")
    make_srd(a, 4, 24, 576 * KR_STRIDE, WS_KR)
    make_srd(a, 8, 24, 576 * 4096, WS_XT)
    make_srd(a, 12, 24, 576 * 4096, WS_BT)
    a("s_lshr_b32 s28, s27, 1")
    a("s_lshl_b32 s28, s28, 2")
    a("s_load_dword s29, s[22:23], s28")
    a("s_mul_i32 s30, s27, %d" % KR_STRIDE)
    a("s_lshl_b32 s31, s27, 12")
    a("s_mul_i32 s32, s26, %d" % CW)
    a("v_and_b32 v2, 63, v0")
    a("v_lshlrev_b32 v3, 4, v2")
    SG = 120
    a("v_and_b32 v5, 7, v2")
    a("v_lshlrev_b32 v5, 4, v5")
    a("v_lshrrev_b32 v4, 3, v2")
    a("v_lshl_add_u32 v13, v4, 1, v5")
    a("v_mul_u32_u24 v14, %d, v4" % KC)
    a("v_add3_u32 v14, v14, v5, s32")

    def ld_win(w):
        a("s_add_u32 s33, s30, %d" % (2 * (1536 - 512 * w)))
        for k in range(9):
            a("buffer_load_dwordx4 %s, v13, s[4:7], s33 offen offset:%d" % (vr(SG + 4 * k, 4), 128 * k))

    def wr_win():
        for k in range(9):
            a("ds_write_b128 v14, %s offset:%d" % (vr(SG + 4 * k, 4), CU_SZ + 128 * k))

    for k in range(4):
        a("buffer_load_dwordx4 v[%d:%d], v3, s[8:11], s31 offen offset:%d" % (16 + 4 * k, 19 + 4 * k, 1024 * k))
    ld_win(0)
    a("v_cmp_gt_u32 vcc, 8, v2")
    a("s_mov_b64 s[34:35], vcc")
    a("v_mul_u32_u24 v4, %d, v4" % CU_ROW)
    a("v_add3_u32 v4, v4, v5, s32")
    for r in range(4):
        a("v_mov_b32 v%d, 0" % (56 + r))
    a("s_mov_b64 exec, s[34:35]")
    a("ds_write_b128 v4, v[56:59]")
    a("s_mov_b64 exec, -1")
    a("v_and_b32 v6, 31, v2")
    a("v_bfe_u32 v7, v2, 5, 1")
    a("v_and_b32 v8, 7, v6")
    a("v_sub_u32 v8, 7, v8")
    a("v_mul_u32_u24 v8, %d, v8" % KC)
    a("v_lshrrev_b32 v9, 3, v6")
    a("v_sub_u32 v9, v7, v9")
    a("v_lshl_add_u32 v8, v9, 4, v8")
    a("v_add_u32 v8, s32, v8")
    a("v_add_u32 v8, %d, v8" % (CU_SZ + 48))
    a("v_lshlrev_b32 v10, 4, v7")
    a("v_add_u32 v10, s32, v10")
    a("v_mul_u32_u24 v9, %d, v6" % CU_ROW)
    a("v_add_u32 v9, v9, v10")
    a("v_add_u32 v9, %d, v9" % CU_ROW)
    a("s_waitcnt vmcnt(9)")
    for k in range(4):
        a("ds_write_b128 v4, v[%d:%d] offset:%d" % (16 + 4 * k, 19 + 4 * k, CU_ROW + 8 * CU_ROW * k))
    a("s_waitcnt vmcnt(0)")
    wr_win()
    ld_win(1)
    RING = 10
    F0 = 16
    B0 = 56
    AC = 88
    lg = VmQ(a, "lgkmcnt")
    fr = lambda m: vr(F0 + 4 * (m % RING), 4)
    br = lambda par, s_: vr(B0 + 16 * par + 4 * s_, 4)

    def rd_delta(d):
        w = d // 8
        if d > 0:
            a("v_subrev_u32 v9, %d, v9" % CU_ROW)
        a("v_max_i32 v11, v9, v10")
        if d % 8 == 0 and d > 0:
            a("s_waitcnt vmcnt(0)")
            wr_win()
            if w < 3:
                ld_win(w + 1)
        for m in range(4 * d - 1 - (2 if d == 0 else 0), 4 * d + 3):
            a("ds_read_b128 %s, v8 offset:%d" % (fr(m), 960 - 32 * (m - 32 * w))); lg.push(d)
        for s_ in range(4):
            a("ds_read_b128 %s, v11 offset:%d" % (br(d & 1, s_), 32 * s_)); lg.push(d)

    a("s_waitcnt lgkmcnt(0)")
    rd_delta(0)
    for d in range(32):
        if d + 1 < 32:
            rd_delta(d + 1)
        if (d + 1) % 8 == 0 and d + 1 < 32:
            a("s_waitcnt lgkmcnt(15)")
            a("s_waitcnt lgkmcnt(8)")
            lg.q = [x for x in lg.q if x != d]
        else:
            lg.wait(d)
        for s_ in range(4):
            for t in range(2):
                c = "0" if (d == 0 and s_ == 0) else vr(AC + 16 * t, 16)
                a("v_mfma_f32_32x32x16_bf16 %s, %s, %s, %s" % (vr(AC + 16 * t, 16), fr(4 * d + 2 * t - s_), br(d & 1, s_), c))
    a("v_mul_u32_u24 v9, %d, v6" % CU_ROW)
    a("v_lshl_add_u32 v9, v7, 3, v9")
    a("v_add_u32 v9, s32, v9")
    for t in range(2):
        for q in range(4):
            k = 4 * t + q
            a("ds_read_b64 v[%d:%d], v9 offset:%d" % (16 + 2 * k, 17 + 2 * k, CU_ROW + 64 * t + 16 * q))
    a("v_lshlrev_b32 v12, 7, v6")
    a("v_lshl_add_u32 v12, v7, 3, v12")
    a("s_and_b32 s35, s27, 1")
    a("s_lshl_b32 s36, s29, 16")
    a("s_and_b32 s37, s29, 0xffff0000")
    a("s_cmp_eq_u32 s35, 0")
    a("s_cselect_b32 s36, s36, s37")
    a("s_waitcnt lgkmcnt(0)")
    for t in range(2):
        for q in range(4):
            k = 4 * t + q
            for pp in range(2):
                A = AC + 16 * t + 4 * q + 2 * pp
                U = 16 + 2 * k + pp
                a("v_cvt_pk_bf16_f32 v32, v%d, v%d" % (A, A + 1))
                a("v_lshlrev_b32 v33, 16, v%d" % U)
                a("v_and_b32 v34, 0xffff0000, v%d" % U)
                a("v_mul_f32 v33, s36, v33")
                a("v_mul_f32 v34, s36, v34")
                a("v_cvt_pk_bf16_f32 v33, v33, v34")
                a("v_lshlrev_b32 v34, 16, v32")
                a("v_and_b32 v32, 0xffff0000, v32")
                a("v_lshlrev_b32 v35, 16, v33")
                a("v_and_b32 v33, 0xffff0000, v33")
                a("v_add_f32 v34, v34, v35")
                a("v_add_f32 v32, v32, v33")
                a("v_cvt_pk_bf16_f32 v%d, v34, v32" % (A))
            A = AC + 16 * t + 4 * q
            a("v_mov_b32 v%d, v%d" % (A + 1, A + 2))
            a("buffer_store_dwordx2 v[%d:%d], v12, s[12:15], s31 offen offset:%d" % (A, A + 1, 64 * t + 16 * q))
    a("s_waitcnt vmcnt(0)")
    cfg["vgprs"] = 156
    cfg["lds_bytes"] = 4 * CW


def kernel_conv(a, name):
    a.raw(".globl %s" % name)
    a.raw(".p2align 8")
    a.raw(".type %s,@function" % name)
    a.label(name)
    lend = a.newlabel("END")
    a("s_cmp_ge_u32 s2, 144")
    a("s_cbranch_scc1 %s" % lend)
    c = dict(s_wg=2)
    conv_role(a, c)
    a.label(lend)
    a("s_endpgm")
    return dict(name=name, grid=144, lds=c["lds_bytes"], vgprs=c["vgprs"])


def gemm3_pre(a, ctx):
    cfg = ctx["cfg"]
    tm, tn, wn = ctx["tm"], ctx["tn"], ctx["wn"]
    vt0, vt1, vt2, vt3 = ctx["vt"]
    al = ctx["al"]
    s_m0, s_n0 = cfg["s_m0"], cfg["s_n0"]
    G = [[al.get(4, 4) for q in range(4)] for ti in range(tm)]
    Bv = [[[al.get(2, 2) for q in range(4)] for tj in range(tn)] for ti in range(tm)]
    vo = al.get()
    cfg["G"], cfg["Bv"], cfg["vo"] = G, Bv, vo
    a("v_lshrrev_b32 %s, 6, v0" % vr(vt0))
    if wn == 2:
        a("v_lshrrev_b32 %s, 1, %s" % (vr(vt1), vr(vt0)))
        a("v_and_b32 %s, 1, %s" % (vr(vt0), vr(vt0)))
    else:
        a("v_mov_b32 %s, %s" % (vr(vt1), vr(vt0)))
        a("v_mov_b32 %s, 0" % vr(vt0))
    a("v_mul_u32_u24 %s, %d, %s" % (vr(vt0), tn * 32, vr(vt0)))
    a("v_and_b32 %s, 31, v0" % vr(vt2))
    a("v_add3_u32 %s, %s, %s, %s" % (vr(vt0), vr(vt0), vr(vt2), sr(s_n0)))
    a("v_mul_u32_u24 %s, %d, %s" % (vr(vt1), tm * 32, vr(vt1)))
    a("v_bfe_u32 %s, v0, 5, 1" % vr(vt2))
    a("v_lshl_add_u32 %s, %s, 2, %s" % (vr(vt1), vr(vt2), vr(vt1)))
    a("v_add_u32 %s, %s, %s" % (vr(vt1), sr(s_m0), vr(vt1)))
    a("v_lshlrev_b32 %s, 2, %s" % (vr(vt2), vr(vt1)))
    for ti in range(tm):
        for q in range(4):
            a("buffer_load_dwordx4 %s, %s, %s, 0 offen offset:%d" % (vr(G[ti][q], 4), vr(vt2), sr(cfg["sG"], 4), (ti * 32 + 8 * q) * 4))
    a("v_lshlrev_b32 %s, 12, %s" % (vr(vt2), vr(vt0)))
    a("v_lshl_add_u32 %s, %s, 1, %s" % (vr(vt2), vr(vt1), vr(vt2)))
    for ti in range(tm):
        for tj in range(tn):
            a("s_mov_b32 %s, 0x%x" % (sr(cfg["s_tmp"]), tj * 32 * 4096))
            for q in range(4):
                a("buffer_load_dwordx2 %s, %s, %s, %s offen offset:%d" % (vr(Bv[ti][tj][q], 2), vr(vt2), sr(cfg["sBT"], 4), sr(cfg["s_tmp"]), (ti * 32 + 8 * q) * 2))
    a("v_mul_u32_u24 %s, 1152, %s" % (vr(vo), vr(vt1)))
    a("v_lshl_add_u32 %s, %s, 1, %s" % (vr(vo), vr(vt0), vr(vo)))


def gemm3_epi(a, ctx):
    cfg = ctx["cfg"]
    tm, tn = ctx["tm"], ctx["tn"]
    vt0, vt1, vt2, vt3 = ctx["vt"]
    acc = ctx["acc"]
    G, Bv, vo = cfg["G"], cfg["Bv"], cfg["vo"]
    sO = cfg["sO"]
    st = cfg["s_tmp"]
    for ti in range(tm):
        for tj in range(tn):
            A = acc[ti][tj]
            for q in range(4):
                for i in range(4):
                    r = A + 4 * q + i
                    g = G[ti][q] + i
                    b = Bv[ti][tj][q] + (i >> 1)
                    a("v_cvt_pk_bf16_f32 %s, %s, %s" % (vr(r), vr(r), vr(r)))
                    a("v_sub_f32 %s, 1.0, %s" % (vr(vt0), vr(g)))
                    a("v_and_b32 %s, 0xffff0000, %s" % (vr(r), vr(r)))
                    if i & 1:
                        a("v_and_b32 %s, 0xffff0000, %s" % (vr(vt1), vr(b)))
                    else:
                        a("v_lshlrev_b32 %s, 16, %s" % (vr(vt1), vr(b)))
                    a("v_cvt_pk_bf16_f32 %s, %s, %s" % (vr(vt0), vr(vt0), vr(vt0)))
                    a("v_mul_f32 %s, %s, %s" % (vr(r), vr(g), vr(r)))
                    a("v_and_b32 %s, 0xffff0000, %s" % (vr(vt0), vr(vt0)))
                    a("v_mul_f32 %s, %s, %s" % (vr(vt0), vr(vt0), vr(vt1)))
                    a("v_cvt_pk_bf16_f32 %s, %s, %s" % (vr(r), vr(r), vr(vt0)))
                    a("v_lshlrev_b32 %s, 16, %s" % (vr(vt0), vr(r)))
                    a("v_and_b32 %s, 0xffff0000, %s" % (vr(r), vr(r)))
                    a("v_add_f32 %s, %s, %s" % (vr(r), vr(r), vr(vt0)))
                    a("v_cvt_pk_bf16_f32 %s, %s, %s" % (vr(r), vr(r), vr(r)))
                    off = (ti * 32 + 8 * q + i) * 1152 + tj * 64
                    a("s_mov_b32 %s, 0x%x" % (sr(st + 1), off))
                    a("buffer_store_short %s, %s, %s, %s offen" % (vr(r), vr(vo), sr(sO, 4), sr(st + 1)))


def gemm3_role(a, cfg):
    s_wg = cfg["s_wg"]
    a("s_load_dwordx2 s[20:21], s[0:1], 16")
    a("s_load_dwordx2 s[22:23], s[0:1], 88")
    a("s_load_dwordx2 s[24:25], s[0:1], 104")
    a("s_waitcnt lgkmcnt(0)")
    make_srd(a, 4, 24, 2048 * 1152, WS_O)
    make_srd(a, 8, 20, 576 * 1152)
    make_srd(a, 12, 22, 2048 * 1152)
    make_srd(a, 16, 24, 8192, WS_G)
    make_srd(a, 36, 24, 576 * 4096, WS_BT)
    a("s_and_b32 s26, %s, 31" % sr(s_wg))
    a("s_lshl_b32 s26, s26, 6")
    a("s_lshr_b32 s27, %s, 5" % sr(s_wg))
    a("s_lshl_b32 s27, s27, 6")
    c = dict(wm=2, wn=2, tm=1, tn=1, lda=1152, ldb=1152, K=576, sA=4, sB=8, sO=12, sG=16, sBT=36, s_m0=26, s_n0=27, s_tmp=28,
             epi=gemm3_epi, pre=gemm3_pre)
    gemm(a, c)
    a("s_waitcnt vmcnt(0)")
    cfg["vgprs"] = c["vgprs"]
    cfg["lds_bytes"] = c["lds_bytes"]


def kernel_gemm3(a, name):
    a.raw(".globl %s" % name)
    a.raw(".p2align 8")
    a.raw(".type %s,@function" % name)
    a.label(name)
    lend = a.newlabel("END")
    a("s_cmp_ge_u32 s2, 288")
    a("s_cbranch_scc1 %s" % lend)
    c = dict(s_wg=2)
    gemm3_role(a, c)
    a.label(lend)
    a("s_endpgm")
    return dict(name=name, grid=288, lds=c["lds_bytes"], vgprs=c["vgprs"])


TL = int(os.environ.get("TL", "0"))


def tl_start(a):
    if TL:
        a("s_memrealtime s[100:101]")


def tl_end(a):
    if TL:
        a("s_waitcnt vmcnt(0) lgkmcnt(0)")
        a("s_memrealtime s[98:99]")
        a("s_load_dwordx2 s[4:5], s[0:1], 104")
        a("s_waitcnt lgkmcnt(0)")
        a("s_add_u32 s4, s4, 0x4000000")
        a("s_addc_u32 s5, s5, 0")
        a("s_mov_b32 s6, 0x100000")
        a("s_mov_b32 s7, 0x00020000")
        a("v_mov_b32 v4, s100")
        a("v_mov_b32 v5, s98")
        a("v_mov_b32 v3, s2")
        a("v_lshlrev_b32 v3, 3, v3")
        a("v_cmp_eq_u32 vcc, 0, v0")
        a("s_and_saveexec_b64 s[8:9], vcc")
        a("buffer_store_dwordx2 v[4:5], v3, s[4:7], 0 offen")
        a("s_waitcnt vmcnt(0)")

def kstart(a, name):
    a.raw(".globl %s" % name)
    a.raw(".p2align 8")
    a.raw(".type %s,@function" % name)
    a.label(name)


def kernel_L1(a, name):
    kstart(a, name)
    tl_start(a)
    lend, lprep, lkg, lv = a.newlabel("END"), a.newlabel("PREP"), a.newlabel("KGEN"), a.newlabel("VPART")
    a("s_cmp_ge_u32 s2, 240")
    a("s_cbranch_scc1 %s" % lprep)
    a("s_load_dwordx4 s[20:23], s[0:1], 0")
    a("s_load_dwordx2 s[24:25], s[0:1], 104")
    a("s_waitcnt lgkmcnt(0)")
    make_srd(a, 4, 20, 2048 * 1152)
    make_srd(a, 8, 22, 576 * 3456)
    make_srd(a, 12, 24, 1728 * 4096, WS_QKVT)
    a("s_cmp_ge_u32 s2, 144")
    a("s_cbranch_scc1 %s" % lv)
    a("s_and_b32 s26, s2, 15")
    a("s_lshl_b32 s26, s26, 7")
    a("s_lshr_b32 s27, s2, 4")
    a("s_lshl_b32 s27, s27, 7")
    c1 = dict(wm=2, wn=2, tm=2, tn=2, lda=1152, ldb=3456, K=576, sA=4, sB=8, sO=12, s_m0=26, s_n0=27, s_tmp=28,
              epi=epi_gemm1("qk"))
    gemm(a, c1)
    tl_end(a)
    a("s_endpgm")
    a.label(lv)
    a("s_sub_u32 s27, s2, 144")
    a("s_and_b32 s26, s27, 15")
    a("s_lshl_b32 s26, s26, 7")
    a("s_lshr_b32 s27, s27, 4")
    a("s_mul_i32 s27, s27, 96")
    a("s_add_u32 s27, s27, 1152")
    c2 = dict(wm=4, wn=1, tm=1, tn=3, lda=1152, ldb=3456, K=576, sA=4, sB=8, sO=12, s_m0=26, s_n0=27, s_tmp=28,
              epi=epi_gemm1("v"))
    gemm(a, c2)
    tl_end(a)
    a("s_endpgm")
    a.label(lprep)
    a("s_cmp_ge_u32 s2, 272")
    a("s_cbranch_scc1 %s" % lkg)
    a("s_sub_u32 s3, s2, 240")
    c3 = dict(s_wg=3)
    prep_role(a, c3)
    tl_end(a)
    a("s_endpgm")
    a.label(lkg)
    a("s_cmp_ge_u32 s2, 416")
    a("s_cbranch_scc1 %s" % lend)
    a("s_sub_u32 s3, s2, 272")
    c4 = dict(s_wg=3)
    kgen_role(a, c4)
    tl_end(a)
    a.label(lend)
    a("s_endpgm")
    cs = (c1, c2, c3, c4)
    return dict(name=name, grid=416, lds=max(c["lds_bytes"] for c in cs), vgprs=max(c["vgprs"] for c in cs))


def kernel_L2(a, name):
    kstart(a, name)
    lend, lcv = a.newlabel("END"), a.newlabel("CONV")
    a("s_cmp_ge_u32 s2, 256")
    a("s_cbranch_scc1 %s" % lcv)
    a("s_load_dwordx2 s[24:25], s[0:1], 104")
    a("s_waitcnt lgkmcnt(0)")
    make_srd(a, 4, 24, 1728 * 4096, WS_QKVT)
    make_srd(a, 8, 24, 2048 * 1152, WS_O)
    a("s_and_b32 s26, s2, 7")
    a("s_lshr_b32 s27, s2, 3")
    a("s_and_b32 s27, s27, 3")
    a("s_lshl_b32 s27, s27, 3")
    a("s_add_u32 s26, s26, s27")
    a("s_lshr_b32 s27, s2, 5")
    a("s_lshl_b32 s27, s27, 8")
    c = dict(sW=4, sO=8, s_head=26, s_q0=27, s_tmp=28, prof=PROF)
    a("s_mul_i32 s30, s26, 18")
    a("s_add_u32 s30, s30, 576")
    attn_role(a, c)
    a("s_endpgm")
    a.label(lcv)
    a("s_cmp_ge_u32 s2, 400")
    a("s_cbranch_scc1 %s" % lend)
    a("s_sub_u32 s3, s2, 256")
    c2 = dict(s_wg=3)
    conv_role(a, c2)
    a.label(lend)
    a("s_endpgm")
    return dict(name=name, grid=400, lds=max(c["lds_bytes"], c2["lds_bytes"]), vgprs=max(c["vgprs"], c2["vgprs"]))


HEADER = open("gated_mix__mha_block__ssm_conv_s4d__prompt.s.ref").read().split("; @launch")[0]


def build(kfuncs):
    a = Asm()
    infos = []
    body = Asm()
    for f, nm in kfuncs:
        infos.append(f(body, nm))
    out = HEADER
    for k in infos:
        out += "; @launch kernel=%s grid=(%d,1,1) block=(256,1,1) lds=%d\n" % (k["name"], k["grid"], k["lds"])
    out += '.amdgcn_target "amdgcn-amd-amdhsa--gfx950"\n.text\n'
    out += body.text()
    out += '.section .rodata,"a"\n'
    for k in infos:
        v = (k["vgprs"] + 3) // 4 * 4
        out += ".p2align 6\n.amdhsa_kernel %s\n" % k["name"]
        out += "  .amdhsa_next_free_vgpr %d\n  .amdhsa_next_free_sgpr 102\n  .amdhsa_accum_offset %d\n" % (v, v)
        out += "  .amdhsa_group_segment_fixed_size 0\n  .amdhsa_kernarg_size 112\n  .amdhsa_user_sgpr_count 2\n"
        out += "  .amdhsa_user_sgpr_kernarg_segment_ptr 1\n  .amdhsa_system_sgpr_workgroup_id_x 1\n.end_amdhsa_kernel\n"
    return out


if __name__ == "__main__":
    path = sys.argv[1]
    mode = sys.argv[2] if len(sys.argv) > 2 else "all"
    if mode == "gemm1":
        s = build([(kernel_gemm1, "gemm1_kernel")])
    elif mode == "prep":
        s = build([(kernel_prep, "prep_kernel")])
    elif mode == "kgen":
        s = build([(kernel_kgen, "kgen_kernel")])
    elif mode == "conv":
        s = build([(kernel_prep, "prep_kernel"), (kernel_kgen, "kgen_kernel"), (kernel_conv, "conv_kernel")])
    elif mode == "six":
        s = build([(kernel_gemm1, "gemm1_kernel"), (kernel_prep, "prep_kernel"), (kernel_kgen, "kgen_kernel"), (kernel_attn, "attn_kernel"), (kernel_conv, "conv_kernel"), (kernel_gemm3, "gemm3_kernel")])
    elif mode == "all":
        s = build([(kernel_L1, "l1_kernel"), (kernel_L2, "l2_kernel"), (kernel_gemm3, "l3_kernel")])
    elif mode == "attn":
        s = build([(kernel_gemm1, "gemm1_kernel"), (kernel_attn, "attn_kernel")])
    open(path, "w").write(s)
```

```python
import sys, os
sys.path.insert(0, os.path.dirname(os.path.abspath(__file__)))
from fw import Asm, vr, sr, Alloc

WS_QKVT = 0
WS_O = 8 << 20
WS_XT = 12 << 20
WS_G = 16 << 20
WS_KR = 17 << 20
WS_BT = 20 << 20
KR_STRIDE = 4224

PROF = int(os.environ.get("PROF", "0"))
QSCALE = 0x3EAE1A3D
import struct
def f32bits(x):
    return struct.unpack("<I", struct.pack("<f", x))[0]
QSCALE = f32bits((18 ** -0.5) * 1.4426950408889634)


class VmQ:
    def __init__(self, asm, name):
        self.q = []
        self.asm = asm
        self.name = name

    def push(self, tag):
        self.q.append(tag)

    def wait(self, tag):
        idx = max(i for i, t in enumerate(self.q) if t == tag) if tag in self.q else -1
        if idx < 0:
            return
        n = len(self.q) - 1 - idx
        self.asm("s_waitcnt %s(%d)" % (self.name, n))
        self.q = self.q[idx + 1:]

    def wait_all(self):
        self.asm("s_waitcnt %s(0)" % self.name)
        self.q = []


def make_srd(a, s, ptr_s, size, off=0):
    if off:
        a("s_add_u32 s%d, s%d, 0x%x" % (s, ptr_s, off))
        a("s_addc_u32 s%d, s%d, 0" % (s + 1, ptr_s + 1))
    else:
        a("s_mov_b32 s%d, s%d" % (s, ptr_s))
        a("s_mov_b32 s%d, s%d" % (s + 1, ptr_s + 1))
    a("s_mov_b32 s%d, 0x%x" % (s + 2, size))
    a("s_mov_b32 s%d, 0x00020000" % (s + 3))


def div_small(a, vq, vrem, vc, d, vtmp):
    m = -(-(1 << 16) // d)
    for c in range(0, 1024):
        assert (c * m) >> 16 == c // d
    a("v_mul_u32_u24 %s, %d, %s" % (vr(vq), m, vr(vc)))
    a("v_lshrrev_b32 %s, 16, %s" % (vr(vq), vr(vq)))
    a("v_mul_u32_u24 %s, %d, %s" % (vr(vtmp), d, vr(vq)))
    a("v_sub_u32 %s, %s, %s" % (vr(vrem), vr(vc), vr(vtmp)))


def gemm(a, cfg):
    wm, wn, tm, tn = cfg["wm"], cfg["wn"], cfg["tm"], cfg["tn"]
    Mt, Nt = wm * tm * 32, wn * tn * 32
    lda, ldb, K = cfg["lda"], cfg["ldb"], cfg["K"]
    sA, sB = cfg["sA"], cfg["sB"]
    s_m0, s_n0 = cfg["s_m0"], cfg["s_n0"]
    st = cfg["s_tmp"]
    s_boff, s_mask = st, st + 2
    assert s_mask % 2 == 0
    KS = cfg.get("KS", 32)
    nk = KS // 16
    csh = (KS // 8).bit_length() - 1
    nst = K // KS
    P = int(os.environ.get("GP", cfg.get("P", 4)))
    SA = 2 * KS + 16
    SB = {128: 320, 96: 192, 64: 192}[Nt]
    bufsz = Mt * SA + KS * SB
    LB = Mt * SA
    cfg["lds_bytes"] = 3 * bufsz
    nchA = Mt * KS // 8
    cprB = Nt // 8
    nchB = KS * cprB
    nA = -(-nchA // 256)
    nB = -(-nchB // 256)
    al = Alloc(cfg.get("v_start", 1), cfg.get("v_limit", 256))
    vAg = [al.get() for _ in range(nA)]
    vAl = [al.get() for _ in range(nA)]
    vBg = [al.get() for _ in range(nB)]
    vBl = [al.get() for _ in range(nB)]
    vAf = al.get()
    vBf = al.get()
    vt0, vt1, vt2, vt3 = [al.get() for _ in range(4)]
    FA = [[al.get(4, 4) for _ in range(tm)] for _ in range(2)]
    FB = [[al.get(4, 4) for _ in range(tn)] for _ in range(2)]
    acc = [[al.get(16, 4) for _ in range(tn)] for _ in range(tm)]
    stg = [([al.get(4, 4) for _ in range(nA)], [al.get(4, 4) for _ in range(nB)]) for _ in range(P)]
    cfg["vgprs"] = al.hi

    a.comment("gemm address setup Mt=%d Nt=%d" % (Mt, Nt))
    for i in range(nA):
        a("v_lshrrev_b32 %s, %d, v0" % (vr(vt0), csh))
        if i:
            a("v_add_u32 %s, %d, %s" % (vr(vt0), (256 >> csh) * i, vr(vt0)))
        a("v_and_b32 %s, %d, v0" % (vr(vt1), KS // 8 - 1))
        a("v_lshlrev_b32 %s, 4, %s" % (vr(vt1), vr(vt1)))
        a("v_mul_u32_u24 %s, %d, %s" % (vr(vAl[i]), SA, vr(vt0)))
        a("v_add_u32 %s, %s, %s" % (vr(vAl[i]), vr(vAl[i]), vr(vt1)))
        a("v_add_u32 %s, %s, %s" % (vr(vt0), sr(s_m0), vr(vt0)))
        a("v_mul_u32_u24 %s, %d, %s" % (vr(vAg[i]), lda, vr(vt0)))
        a("v_add_u32 %s, %s, %s" % (vr(vAg[i]), vr(vAg[i]), vr(vt1)))
    for i in range(nB):
        a("v_add_u32 %s, %d, v0" % (vr(vt2), 256 * i))
        if cprB & (cprB - 1) == 0:
            sh = cprB.bit_length() - 1
            a("v_lshrrev_b32 %s, %d, %s" % (vr(vt0), sh, vr(vt2)))
            a("v_and_b32 %s, %d, %s" % (vr(vt1), cprB - 1, vr(vt2)))
        else:
            div_small(a, vt0, vt1, vt2, cprB, vt3)
        a("v_lshlrev_b32 %s, 4, %s" % (vr(vt1), vr(vt1)))
        a("v_mul_u32_u24 %s, %d, %s" % (vr(vBl[i]), SB, vr(vt0)))
        a("v_add_u32 %s, %s, %s" % (vr(vBl[i]), vr(vBl[i]), vr(vt1)))
        a("v_mul_u32_u24 %s, %d, %s" % (vr(vBg[i]), ldb, vr(vt0)))
        a("v_add_u32 %s, %s, %s" % (vr(vBg[i]), vr(vBg[i]), vr(vt1)))
        a("v_add_u32 %s, %s, %s" % (vr(vBg[i]), sr(s_n0), vr(vBg[i])))
        a("v_add_u32 %s, %s, %s" % (vr(vBg[i]), sr(s_n0), vr(vBg[i])))
    partB = (nchB % 256) != 0
    if partB:
        a("v_cmp_gt_u32 vcc, %d, v0" % (nchB % 256))
        a("s_mov_b64 %s, vcc" % sr(s_mask, 2))
    a("v_lshrrev_b32 %s, 6, v0" % vr(vt0))
    if wn == 2:
        a("v_lshrrev_b32 %s, 1, %s" % (vr(vt1), vr(vt0)))
        a("v_and_b32 %s, 1, %s" % (vr(vt0), vr(vt0)))
    else:
        a("v_mov_b32 %s, %s" % (vr(vt1), vr(vt0)))
        a("v_mov_b32 %s, 0" % vr(vt0))
    a("v_mul_u32_u24 %s, %d, %s" % (vr(vt1), tm * 32, vr(vt1)))
    a("v_and_b32 %s, 31, v0" % vr(vt2))
    a("v_add_u32 %s, %s, %s" % (vr(vt1), vr(vt1), vr(vt2)))
    a("v_mul_u32_u24 %s, %d, %s" % (vr(vAf), SA, vr(vt1)))
    a("v_bfe_u32 %s, v0, 5, 1" % vr(vt2))
    a("v_lshl_add_u32 %s, %s, 4, %s" % (vr(vAf), vr(vt2), vr(vAf)))
    a("v_bfe_u32 %s, v0, 2, 2" % vr(vt1))
    a("v_lshl_add_u32 %s, %s, 3, %s" % (vr(vt1), vr(vt2), vr(vt1)))
    a("v_mul_u32_u24 %s, %d, %s" % (vr(vBf), SB, vr(vt1)))
    a("v_mul_u32_u24 %s, %d, %s" % (vr(vt0), tn * 64, vr(vt0)))
    a("v_add_u32 %s, %s, %s" % (vr(vBf), vr(vBf), vr(vt0)))
    a("v_bfe_u32 %s, v0, 4, 1" % vr(vt0))
    a("v_lshl_add_u32 %s, %s, 5, %s" % (vr(vBf), vr(vt0), vr(vBf)))
    a("v_and_b32 %s, 3, v0" % vr(vt0))
    a("v_lshl_add_u32 %s, %s, 3, %s" % (vr(vBf), vr(vt0), vr(vBf)))
    a("v_add_u32 %s, %d, %s" % (vr(vBf), LB, vr(vBf)))

    vm = VmQ(a, "vmcnt")
    lg = VmQ(a, "lgkmcnt")

    def issue_loads(s):
        A_, B_ = stg[s % P]
        for i in range(nA):
            a("buffer_load_dwordx4 %s, %s, %s, 0 offen offset:%d" % (vr(A_[i], 4), vr(vAg[i]), sr(sA, 4), 2 * KS * s))
            vm.push(("ld", s))
        a("s_mov_b32 %s, 0x%x" % (sr(s_boff), KS * s * ldb))
        for i in range(nB):
            last_part = partB and i == nB - 1
            if last_part:
                a("s_mov_b64 exec, %s" % sr(s_mask, 2))
            a("buffer_load_dwordx4 %s, %s, %s, %s offen" % (vr(B_[i], 4), vr(vBg[i]), sr(sB, 4), sr(s_boff)))
            vm.push(("ld", s))
            if last_part:
                a("s_mov_b64 exec, -1")

    def write_lds(s):
        A_, B_ = stg[s % P]
        base = (s % 3) * bufsz
        vm.wait(("ld", s))
        for i in range(nA):
            a("ds_write_b128 %s, %s offset:%d" % (vr(vAl[i]), vr(A_[i], 4), base))
            lg.push(("wr", s))
        for i in range(nB):
            last_part = partB and i == nB - 1
            if last_part:
                a("s_mov_b64 exec, %s" % sr(s_mask, 2))
            a("ds_write_b128 %s, %s offset:%d" % (vr(vBl[i]), vr(B_[i], 4), base + LB))
            lg.push(("wr", s))
            if last_part:
                a("s_mov_b64 exec, -1")

    def read_frags(s, kk):
        base = (s % 3) * bufsz
        for t in range(tm):
            a("ds_read_b128 %s, %s offset:%d" % (vr(FA[kk & 1][t], 4), vr(vAf), base + t * 32 * SA + kk * 32))
            lg.push(("fr", s, kk))
        for t in range(tn):
            for hf in range(2):
                a("ds_read_b64_tr_b16 %s, %s offset:%d" % (vr(FB[kk & 1][t] + 2 * hf, 2), vr(vBf),
                                                           base + (kk * 16 + 4 * hf) * SB + t * 64))
                lg.push(("fr", s, kk))

    def mfmas(s, kk):
        lg.wait(("fr", s, kk))
        for ti in range(tm):
            for tj in range(tn):
                c = "0" if (s == 0 and kk == 0) else vr(acc[ti][tj], 16)
                a("v_mfma_f32_32x32x16_bf16 %s, %s, %s, %s" % (vr(acc[ti][tj], 16), vr(FA[kk & 1][ti], 4), vr(FB[kk & 1][tj], 4), c))

    if PROF:
        a("s_memtime s[40:41]")
    if cfg.get("pre"):
        cfg["pre"](a, dict(cfg=cfg, vt=[vt0, vt1, vt2, vt3], tm=tm, tn=tn, wm=wm, wn=wn, al=al))
        cfg["vgprs"] = al.hi
    for s in range(P):
        issue_loads(s)
    write_lds(0)
    issue_loads(P) if P < nst else None
    lg.wait_all()
    a("s_barrier")
    if PROF:
        a("s_memtime s[42:43]")
    read_frags(0, 0)
    for s in range(nst):
        if s + 1 < nst:
            write_lds(s + 1)
            if s + 1 + P < nst:
                issue_loads(s + 1 + P)
        for kk in range(nk - 1):
            read_frags(s, kk + 1)
            mfmas(s, kk)
        if s + 1 < nst:
            lg.wait_all()
            a("s_barrier")
            read_frags(s + 1, 0)
        mfmas(s, nk - 1)
    if PROF:
        a("s_memtime s[44:45]")
    ctx = dict(cfg=cfg, acc=acc, vt=[vt0, vt1, vt2, vt3], tm=tm, tn=tn, wm=wm, wn=wn, al=al,
               free=[r for st_ in stg for r in st_[0] + st_[1]])
    cfg["epi"](a, ctx)
    if PROF:
        a("s_waitcnt vmcnt(0)")
        a("s_memtime s[46:47]")
        a("s_load_dwordx2 s[48:49], s[0:1], 96")
        a("s_waitcnt lgkmcnt(0)")
        a("s_mov_b32 s50, 256")
        a("s_mov_b32 s51, 0x00020000")
        a("v_lshlrev_b32 %s, 4, s2" % vr(vt1))
        a("v_cmp_eq_u32 vcc, 0, v0")
        a("s_and_saveexec_b64 s[52:53], vcc")
        for i, r in enumerate((40, 42, 44, 46)):
            a("v_mov_b32 %s, s%d" % (vr(vt0), r))
            a("buffer_store_dword %s, %s, s[48:51], 0 offen offset:%d" % (vr(vt0), vr(vt1), 4 * i))
        a("s_mov_b64 exec, s[52:53]")


def epi_gemm1(kind):
    def epi(a, ctx):
        cfg = ctx["cfg"]
        tm, tn, wn = ctx["tm"], ctx["tn"], ctx["wn"]
        vt0, vt1, vt2, vt3 = ctx["vt"]
        acc = ctx["acc"]
        sO = cfg["sO"]
        s_m0, s_n0 = cfg["s_m0"], cfg["s_n0"]
        st = cfg["s_tmp"]
        a("v_lshrrev_b32 %s, 6, v0" % vr(vt0))
        if wn == 2:
            a("v_lshrrev_b32 %s, 1, %s" % (vr(vt1), vr(vt0)))
            a("v_and_b32 %s, 1, %s" % (vr(vt0), vr(vt0)))
        else:
            a("v_mov_b32 %s, %s" % (vr(vt1), vr(vt0)))
            a("v_mov_b32 %s, 0" % vr(vt0))
        a("v_mul_u32_u24 %s, %d, %s" % (vr(vt0), tn * 32, vr(vt0)))
        a("v_and_b32 %s, 31, v0" % vr(vt2))
        a("v_add3_u32 %s, %s, %s, %s" % (vr(vt0), vr(vt0), vr(vt2), sr(s_n0)))
        if kind == "qk":
            a("v_readfirstlane_b32 %s, %s" % (sr(st), vr(vt0)))
            a("s_cmp_lt_u32 %s, 576" % sr(st))
            a("s_cselect_b32 %s, 0x%x, 1.0" % (sr(st), QSCALE))
        a("v_lshlrev_b32 %s, 12, %s" % (vr(vt0), vr(vt0)))
        a("v_mul_u32_u24 %s, %d, %s" % (vr(vt1), tm * 32, vr(vt1)))
        a("v_bfe_u32 %s, v0, 5, 1" % vr(vt2))
        a("v_lshl_add_u32 %s, %s, %d, %s" % (vr(vt1), vr(vt2), 2 if kind == "qk" else 3, vr(vt1)))
        a("v_add_u32 %s, %s, %s" % (vr(vt1), sr(s_m0), vr(vt1)))
        a("v_lshl_add_u32 %s, %s, 1, %s" % (vr(vt0), vr(vt1), vr(vt0)))
        for ti in range(tm):
            for tj in range(tn):
                A = acc[ti][tj]
                if kind == "qk":
                    for r in range(16):
                        a("v_mul_f32 %s, %s, %s" % (vr(A + r), sr(st), vr(A + r)))
                for p in range(8):
                    a("v_cvt_pk_bf16_f32 %s, %s, %s" % (vr(A + p), vr(A + 2 * p), vr(A + 2 * p + 1)))
                a("s_mov_b32 %s, 0x%x" % (sr(st + 1), tj * 32 * 4096))
                if kind == "qk":
                    for i in range(4):
                        a("buffer_store_dwordx2 %s, %s, %s, %s offen offset:%d" % (vr(A + 2 * i, 2), vr(vt0), sr(sO, 4), sr(st + 1), ti * 64 + 16 * i))
                else:
                    for m in range(2):
                        a("buffer_store_dwordx4 %s, %s, %s, %s offen offset:%d" % (vr(A + 4 * m, 4), vr(vt0), sr(sO, 4), sr(st + 1), ti * 64 + 32 * m))
    return epi


def kernel_gemm1(a, name):
    a.raw(".globl %s" % name)
    a.raw(".p2align 8")
    a.raw(".type %s,@function" % name)
    a.label(name)
    lend = a.newlabel("END")
    lv = a.newlabel("VPART")
    a("s_cmp_ge_u32 s2, 240")
    a("s_cbranch_scc1 %s" % lend)
    a("s_load_dwordx4 s[20:23], s[0:1], 0")
    a("s_load_dwordx2 s[24:25], s[0:1], 104")
    a("s_waitcnt lgkmcnt(0)")
    make_srd(a, 4, 20, 2048 * 1152)
    make_srd(a, 8, 22, 576 * 3456)
    make_srd(a, 12, 24, 1728 * 4096, WS_QKVT)
    a("s_cmp_ge_u32 s2, 144")
    a("s_cbranch_scc1 %s" % lv)
    a("s_and_b32 s26, s2, 15")
    a("s_lshl_b32 s26, s26, 7")
    a("s_lshr_b32 s27, s2, 4")
    a("s_lshl_b32 s27, s27, 7")
    c1 = dict(wm=2, wn=2, tm=2, tn=2, lda=1152, ldb=3456, K=576, sA=4, sB=8, sO=12, s_m0=26, s_n0=27, s_tmp=28,
              epi=epi_gemm1("qk"))
    gemm(a, c1)
    a("s_endpgm")
    a.label(lv)
    a("s_sub_u32 s27, s2, 144")
    a("s_and_b32 s26, s27, 15")
    a("s_lshl_b32 s26, s26, 7")
    a("s_lshr_b32 s27, s27, 4")
    a("s_mul_i32 s27, s27, 96")
    a("s_add_u32 s27, s27, 1152")
    c2 = dict(wm=4, wn=1, tm=1, tn=3, lda=1152, ldb=3456, K=576, sA=4, sB=8, sO=12, s_m0=26, s_n0=27, s_tmp=28,
              epi=epi_gemm1("v"))
    gemm(a, c2)
    a.label(lend)
    a("s_endpgm")
    return dict(name=name, grid=240, lds=max(c1["lds_bytes"], c2["lds_bytes"]), vgprs=max(c1["vgprs"], c2["vgprs"]))


SK, SV = 320, 272
K_IMG, V_IMG = 0, 20 * 320
ABUF = 20 * 320 + 20 * 272
ONES = 0x3F803F80


def attn_role(a, cfg):
    sW, sO = cfg["sW"], cfg["sO"]
    s_head, s_qb = cfg["s_head"], cfg["s_q0"]
    st = cfg["s_tmp"]
    s_goff, s_cnt, s_r0 = st, st + 1, st + 2
    s_hm = st + 4
    s_m16 = st + 6
    al = Alloc(1, 256)
    vK1, vK2, vV = al.get(), al.get(), al.get()
    sg = [al.get() for _ in range(3)]
    sl = [al.get() for _ in range(3)]
    vt = [al.get() for _ in range(6)]
    vOa = al.get()
    stg = [al.get(4, 4) for _ in range(3)]
    QB1 = [al.get(4, 4) for _ in range(2)]
    QB2 = [al.get(4, 4) for _ in range(2)]
    KA1 = [al.get(4, 4) for _ in range(2)]
    KA2 = [al.get(4, 4) for _ in range(2)]
    VF = [[al.get(4, 4) for _ in range(2)] for _ in range(2)]
    S = [[al.get(16, 4) for _ in range(2)] for _ in range(2)]
    Pp = [al.get(8, 4) for _ in range(2)]
    O = [al.get(16, 4) for _ in range(2)]
    cfg["vgprs"] = al.hi
    cfg["lds_bytes"] = 4 * ABUF
    t0, t1, t2, t3, t4, t5 = vt
    lg = VmQ(a, "lgkmcnt")

    a("v_lshrrev_b32 %s, 6, v0" % vr(t0))
    a("v_and_b32 %s, 1, %s" % (vr(t1), vr(t0)))
    a("v_lshrrev_b32 %s, 1, %s" % (vr(t2), vr(t0)))
    a("v_bfe_u32 %s, v0, 4, 2" % vr(t3))
    a("v_mad_u32_u24 %s, %s, 9, %s" % (vr(t3), vr(t1), vr(t3)))
    a("v_and_b32 %s, 15, v0" % vr(t4))
    a("v_lshlrev_b32 %s, 4, %s" % (vr(t4), vr(t4)))
    a("v_mul_u32_u24 %s, %d, %s" % (vr(t5), SK - SV, vr(t2)))
    a("v_sub_u32 %s, %d, %s" % (vr(t5), SK, vr(t5)))
    a("v_mul_u32_u24 %s, %d, %s" % (vr(t0), V_IMG, vr(t2)))
    a("v_add_u32 %s, %s, %s" % (vr(t0), vr(t0), vr(t4)))
    a("v_mul_u32_u24 %s, 576, %s" % (vr(t2), vr(t2)))
    a("v_add_u32 %s, %s, %s" % (vr(t2), sr(s_r0), vr(t2)))
    for i in range(3):
        a("v_add_u32 %s, %d, %s" % (vr(t1), 4 * i, vr(t3)))
        a("v_mul_u32_u24 %s, %s, %s" % (vr(sl[i]), vr(t1), vr(t5)))
        a("v_add_u32 %s, %s, %s" % (vr(sl[i]), vr(sl[i]), vr(t0)))
        a("v_add_u32 %s, %s, %s" % (vr(sg[i]), vr(t1), vr(t2)))
        a("v_lshlrev_b32 %s, 12, %s" % (vr(sg[i]), vr(sg[i])))
        a("v_add_u32 %s, %s, %s" % (vr(sg[i]), vr(sg[i]), vr(t4)))
    a("v_bfe_u32 %s, v0, 5, 1" % vr(t0))
    a("v_bfe_u32 %s, v0, 2, 2" % vr(t1))
    a("v_bfe_u32 %s, v0, 4, 1" % vr(t2))
    a("v_and_b32 %s, 3, v0" % vr(t3))
    a("v_lshlrev_b32 %s, 3, %s" % (vr(t3), vr(t3)))
    a("v_lshl_add_u32 %s, %s, 5, %s" % (vr(t3), vr(t2), vr(t3)))
    a("v_lshl_add_u32 %s, %s, 3, %s" % (vr(t4), vr(t0), vr(t1)))
    a("v_mul_u32_u24 %s, %d, %s" % (vr(vK1), SK, vr(t4)))
    a("v_add_u32 %s, %s, %s" % (vr(vK1), vr(vK1), vr(t3)))
    a("v_add_u32 %s, 16, %s" % (vr(t4), vr(t1)))
    a("v_mul_u32_u24 %s, %d, %s" % (vr(vK2), SK, vr(t4)))
    a("v_add_u32 %s, %s, %s" % (vr(vK2), vr(vK2), vr(t3)))
    a("v_and_b32 %s, 31, v0" % vr(t4))
    a("v_min_u32 %s, 19, %s" % (vr(t4), vr(t4)))
    a("v_mul_u32_u24 %s, %d, %s" % (vr(vV), SV, vr(t4)))
    a("v_lshl_add_u32 %s, %s, 4, %s" % (vr(vV), vr(t0), vr(vV)))
    a("v_add_u32 %s, %d, %s" % (vr(vV), V_IMG, vr(vV)))
    a("v_cmp_eq_u32 vcc, 0, %s" % vr(t0))
    a("s_mov_b64 %s, vcc" % sr(s_hm, 2))
    a("v_and_b32 %s, 63, v0" % vr(t1))
    a("v_cmp_gt_u32 vcc, 16, %s" % vr(t1))
    a("s_mov_b64 %s, vcc" % sr(s_m16, 2))

    def ld_chunk():
        for i in range(3):
            if i == 2:
                a("s_mov_b64 exec, %s" % sr(s_m16, 2))
            a("buffer_load_dwordx4 %s, %s, %s, %s offen" % (vr(stg[i], 4), vr(sg[i]), sr(sW, 4), sr(s_goff)))
            if i == 2:
                a("s_mov_b64 exec, -1")
        a("s_add_u32 %s, %s, 256" % (sr(s_goff), sr(s_goff)))

    def wr_chunk(buf):
        a("s_waitcnt vmcnt(0)")
        for i in range(3):
            if i == 2:
                a("s_mov_b64 exec, %s" % sr(s_m16, 2))
            a("ds_write_b128 %s, %s offset:%d" % (vr(sl[i]), vr(stg[i], 4), buf * ABUF))
            lg.push("wr")
            if i == 2:
                a("s_mov_b64 exec, -1")

    def rd_k(tile, par):
        buf, kt = (tile // 4) % 4, tile % 4
        off = buf * ABUF + K_IMG + kt * 64
        a("ds_read_b64_tr_b16 %s, %s offset:%d" % (vr(KA1[par], 2), vr(vK1), off)); lg.push(("k", par))
        a("ds_read_b64_tr_b16 %s, %s offset:%d" % (vr(KA1[par] + 2, 2), vr(vK1), off + 4 * SK)); lg.push(("k", par))
        a("ds_read_b64_tr_b16 %s, %s offset:%d" % (vr(KA2[par], 2), vr(vK2), off)); lg.push(("k", par))

    def rd_v(tile, par):
        buf, kt = (tile // 4) % 4, tile % 4
        off = buf * ABUF + kt * 64
        for m in range(2):
            a("ds_read_b128 %s, %s offset:%d" % (vr(VF[par][m], 4), vr(vV), off + 32 * m)); lg.push(("v", par))

    s_mode = st + 8
    lp1, lpass2, lfall, lstore, lskipm = [a.newlabel(x) for x in ("AP1", "APASS2", "AFALL", "ASTORE", "ASKIPM")]
    a("s_mov_b32 %s, 0" % sr(s_mode))
    a("s_mov_b32 %s, 0" % sr(s_goff))
    ld_chunk()
    a("v_lshrrev_b32 %s, 6, v0" % vr(t1))
    a("v_lshlrev_b32 %s, 6, %s" % (vr(t1), vr(t1)))
    a("v_and_b32 %s, 31, v0" % vr(t2))
    a("v_add3_u32 %s, %s, %s, %s" % (vr(t1), vr(t1), vr(t2), sr(s_qb)))
    a("v_mul_u32_u24 %s, 1152, %s" % (vr(vOa), vr(t1)))
    a("v_lshlrev_b32 %s, 1, %s" % (vr(t1), vr(t1)))
    a("v_lshl_add_u32 %s, %s, 15, %s" % (vr(t2), vr(t0), vr(t1)))
    a("s_sub_u32 %s, %s, 576" % (sr(s_cnt), sr(s_r0)))
    a("s_lshl_b32 %s, %s, 12" % (sr(s_cnt), sr(s_cnt)))
    QT = [S[0][1], S[1][1]]
    for qt in range(2):
        for j in range(8):
            a("s_add_u32 %s, %s, %d" % (sr(st + 3), sr(s_cnt), j * 4096 + qt * 64))
            a("buffer_load_ushort %s, %s, %s, %s offen" % (vr(QT[qt] + j), vr(t2), sr(sW, 4), sr(st + 3)))
        for j in range(2):
            a("s_add_u32 %s, %s, %d" % (sr(st + 3), sr(s_cnt), (16 + j) * 4096 + qt * 64))
            a("buffer_load_ushort %s, %s, %s, %s offen" % (vr(QT[qt] + 8 + j), vr(t1), sr(sW, 4), sr(st + 3)))
        for r in range(1, 4):
            a("v_mov_b32 %s, 0" % vr(QB2[qt] + r))
    for p_ in range(2):
        a("v_mov_b32 %s, 0" % vr(KA2[p_] + 2))
        a("v_mov_b32 %s, 0" % vr(KA2[p_] + 3))
    a("v_bfe_u32 %s, v0, 4, 2" % vr(t3))
    a("v_lshrrev_b32 %s, 1, %s" % (vr(t4), vr(t3)))
    a("v_and_b32 %s, 1, %s" % (vr(t3), vr(t3)))
    a("v_add_u32 %s, 18, %s" % (vr(t5), vr(t3)))
    a("v_mul_u32_u24 %s, %d, %s" % (vr(t2), SK, vr(t5)))
    a("v_mul_u32_u24 %s, %d, %s" % (vr(t5), SV, vr(t5)))
    a("v_add_u32 %s, %d, %s" % (vr(t5), V_IMG, vr(t5)))
    a("v_cmp_eq_u32 vcc, 1, %s" % vr(t4))
    a("v_cndmask_b32 %s, %s, %s, vcc" % (vr(t2), vr(t2), vr(t5)))
    a("v_and_b32 %s, 15, v0" % vr(t5))
    a("v_lshl_add_u32 %s, %s, 4, %s" % (vr(t2), vr(t5), vr(t2)))
    a("v_lshrrev_b32 %s, 6, v0" % vr(t5))
    a("v_mul_u32_u24 %s, %d, %s" % (vr(t5), ABUF, vr(t5)))
    a("v_add_u32 %s, %s, %s" % (vr(t2), vr(t2), vr(t5)))
    a("v_and_b32 %s, %s, %s" % (vr(t3), vr(t3), vr(t4)))
    a("v_cmp_eq_u32 vcc, 0, %s" % vr(t3))
    a("v_mov_b32 %s, 0x%x" % (vr(t3), ONES))
    a("v_cndmask_b32 %s, 0, %s, vcc" % (vr(t3), vr(t3)))
    a("v_mov_b32 %s, %s" % (vr(S[0][0]), vr(t3)))
    a("v_mov_b32 %s, %s" % (vr(S[0][0] + 1), vr(t3)))
    a("v_mov_b32 %s, %s" % (vr(S[0][0] + 2), vr(t3)))
    a("v_mov_b32 %s, %s" % (vr(S[0][0] + 3), vr(t3)))
    a("ds_write_b128 %s, %s" % (vr(t2), vr(S[0][0], 4)))
    wr_chunk(0)
    ld_chunk()
    for qt in range(2):
        for j in range(4):
            a("v_lshl_or_b32 %s, %s, 16, %s" % (vr(QB1[qt] + j), vr(QT[qt] + 2 * j + 1), vr(QT[qt] + 2 * j)))
        a("v_lshl_or_b32 %s, %s, 16, %s" % (vr(QB2[qt]), vr(QT[qt] + 9), vr(QT[qt] + 8)))
        a("v_cndmask_b32 %s, 0, %s, %s" % (vr(QB2[qt]), vr(QB2[qt]), sr(s_hm, 2)))
    a.flush()
    a("s_branch %s" % lp1)
    a.label(lpass2)
    a("s_mov_b32 %s, 0" % sr(s_goff))
    ld_chunk()
    wr_chunk(0)
    ld_chunk()
    a.label(lp1)
    a("s_waitcnt lgkmcnt(0)")
    lg.q = []
    a("s_barrier")
    rd_k(0, 0)
    rd_k(1, 1)
    lg.wait(("k", 0))
    a("s_cmp_lg_u32 %s, 0" % sr(s_mode))
    a("s_cbranch_scc1 %s" % lskipm)
    for qt in range(2):
        Sx = S[qt][0]
        a("v_mfma_f32_32x32x16_bf16 %s, %s, %s, 0" % (vr(Sx, 16), vr(KA1[0], 4), vr(QB1[qt], 4)))
        a("v_mfma_f32_32x32x16_bf16 %s, %s, %s, %s" % (vr(Sx, 16), vr(KA2[0], 4), vr(QB2[qt], 4), vr(Sx, 16)))
    for qt in range(2):
        Sx = S[qt][0]
        a("v_max3_f32 %s, %s, %s, %s" % (vr(t0), vr(Sx), vr(Sx + 1), vr(Sx + 2)))
        for r in range(3, 15, 2):
            a("v_max3_f32 %s, %s, %s, %s" % (vr(t0), vr(t0), vr(Sx + r), vr(Sx + r + 1)))
        a("v_max_f32 %s, %s, %s" % (vr(t0), vr(t0), vr(Sx + 15)))
        a("v_mov_b32 %s, %s" % (vr(t1), vr(t0)))
        a("v_permlane32_swap_b32 %s, %s" % (vr(t0), vr(t1)))
        a("v_max_f32 %s, %s, %s" % (vr(t0), vr(t0), vr(t1)))
        set_m(a, QB2[qt] + 1, t0, t1, t2, s_hm)
    a.flush()
    a.label(lskipm)
    for qt in range(2):
        Sx = S[qt][0]
        a("v_mfma_f32_32x32x16_bf16 %s, %s, %s, 0" % (vr(Sx, 16), vr(KA1[0], 4), vr(QB1[qt], 4)))
        a("v_mfma_f32_32x32x16_bf16 %s, %s, %s, %s" % (vr(Sx, 16), vr(KA2[0], 4), vr(QB2[qt], 4), vr(Sx, 16)))
    for qt in range(2):
        for r in range(16):
            a("v_mov_b32 %s, 0" % vr(O[qt] + r))
    for r in range(8):
        a("v_mov_b32 %s, 0" % vr(Pp[1] + r))
    for m in range(2):
        for r in range(4):
            a("v_mov_b32 %s, 0" % vr(VF[1][m] + r))
    a("s_mov_b32 %s, 0" % sr(s_cnt))
    assert lg.q == [("k", 1)] * 3, lg.q

    def half_e(Sb, r0, Pb, p0, mf):
        e = lambda r: a("v_exp_f32 %s, %s" % (vr(Sb + r), vr(Sb + r)))
        c = lambda k: a("v_cvt_pk_bf16_f32 %s, %s, %s" % (vr(Pb + p0 + k), vr(Sb + r0 + 2 * k), vr(Sb + r0 + 2 * k + 1)))
        VAR = os.environ.get("AVAR", "")
        if "m" in VAR:
            mf = ["s_nop 0", "s_nop 0"]
        if "e" in VAR:
            e = lambda r: None
        if "c" in VAR:
            c = lambda k: None
        a(mf[0])
        e(r0); e(r0 + 1); e(r0 + 2); e(r0 + 3); c(0)
        a(mf[1])
        e(r0 + 4); c(1); e(r0 + 5); e(r0 + 6); e(r0 + 7); c(2); c(3)

    if cfg.get("prof"):
        a("s_memtime s[40:41]")
        a("s_memrealtime s[50:51]")
        a("s_waitcnt lgkmcnt(0)")
    lloop = a.newlabel("ALOOP")
    a.flush()
    a.label(lloop)
    for t in range(16):
        par = t & 1
        kt = t % 4
        buf = (t // 4) % 4
        if kt == 0:
            wr_chunk((buf + 1) % 4)
            ld_chunk()
        rd_v(t, par)
        half_e(S[0][par], 0, Pp[0], 0,
               ["v_mfma_f32_32x32x16_bf16 %s, %s, %s, %s" % (vr(O[1], 16), vr(VF[1 - par][m], 4), vr(Pp[1] + 4 * m, 4), vr(O[1], 16)) for m in range(2)])
        lg.wait(("k", 1 - par))
        Sn = S[0][1 - par]
        half_e(S[0][par], 8, Pp[0], 4,
               ["v_mfma_f32_32x32x16_bf16 %s, %s, %s, 0" % (vr(Sn, 16), vr(KA1[1 - par], 4), vr(QB1[0], 4)),
                "v_mfma_f32_32x32x16_bf16 %s, %s, %s, %s" % (vr(Sn, 16), vr(KA2[1 - par], 4), vr(QB2[0], 4), vr(Sn, 16))])
        rd_k(t + 2, par)
        lg.wait(("v", par))
        half_e(S[1][par], 0, Pp[1], 0,
               ["v_mfma_f32_32x32x16_bf16 %s, %s, %s, %s" % (vr(O[0], 16), vr(VF[par][m], 4), vr(Pp[0] + 4 * m, 4), vr(O[0], 16)) for m in range(2)])
        Sn = S[1][1 - par]
        half_e(S[1][par], 8, Pp[1], 4,
               ["v_mfma_f32_32x32x16_bf16 %s, %s, %s, 0" % (vr(Sn, 16), vr(KA1[1 - par], 4), vr(QB1[1], 4)),
                "v_mfma_f32_32x32x16_bf16 %s, %s, %s, %s" % (vr(Sn, 16), vr(KA2[1 - par], 4), vr(QB2[1], 4), vr(Sn, 16))])
        if kt == 1:
            lg.wait("wr")
            a("s_barrier")
    assert lg.q == [("k", 1)] * 3, lg.q
    a("s_add_u32 %s, %s, 1" % (sr(s_cnt), sr(s_cnt)))
    a("s_cmp_lt_u32 %s, 4" % sr(s_cnt))
    a.flush()
    a("s_cbranch_scc1 %s" % lloop)
    if cfg.get("prof"):
        a("s_memtime s[42:43]")
        a("s_memrealtime s[52:53]")
        a("s_load_dwordx2 s[44:45], s[0:1], 96")
        a("s_waitcnt lgkmcnt(0)")
        a("s_sub_u32 s42, s42, s40")
        a("s_sub_u32 s52, s52, s50")
        a("s_mov_b32 s46, 256")
        a("s_mov_b32 s47, 0x00020000")
        a("v_mov_b32 %s, s42" % vr(t0))
        a("v_lshlrev_b32 %s, 2, s2" % vr(t1))
        a("v_cmp_eq_u32 vcc, 0, v0")
        a("s_and_saveexec_b64 s[48:49], vcc")
        a("buffer_store_dword %s, %s, s[44:47], 0 offen" % (vr(t0), vr(t1)))
        a("v_mov_b32 %s, s52" % vr(t0))
        a("buffer_store_dword %s, %s, s[44:47], 0 offen offset:128" % (vr(t0), vr(t1)))
        a("s_mov_b64 exec, s[48:49]")
    for m in range(2):
        a("v_mfma_f32_32x32x16_bf16 %s, %s, %s, %s" % (vr(O[1], 16), vr(VF[1][m], 4), vr(Pp[1] + 4 * m, 4), vr(O[1], 16)))
    a("s_waitcnt vmcnt(0) lgkmcnt(0)")
    a("s_cmp_lg_u32 %s, 0" % sr(s_mode))
    a("s_cbranch_scc1 %s" % lstore)
    a("s_mov_b64 %s, 0" % sr(st + 10, 2))
    for qt in range(2):
        Ox = O[qt]
        a("v_mul_f32 %s, 0, %s" % (vr(t0), vr(Ox)))
        for r in range(1, 11):
            a("v_fma_f32 %s, %s, 0, %s" % (vr(t0), vr(Ox + r), vr(t0)))
        a("v_cmp_eq_f32 vcc, 0, %s" % vr(t0))
        a("s_andn2_b64 %s, exec, vcc" % sr(st + 12, 2))
        a("s_or_b64 %s, %s, %s" % (sr(st + 10, 2), sr(st + 10, 2), sr(st + 12, 2)))
        a("v_mov_b32 %s, 0x%x" % (vr(t1), 0xff800000 if os.environ.get("AFORCE") else 0x71800000))
        a("v_cmp_lt_f32 vcc, %s, %s" % (vr(Ox + 10), vr(t1)))
        a("s_andn2_b64 %s, exec, vcc" % sr(st + 12, 2))
        a("s_or_b64 %s, %s, %s" % (sr(st + 10, 2), sr(st + 10, 2), sr(st + 12, 2)))
    a("s_cmp_lg_u64 %s, 0" % sr(st + 10, 2))
    a("s_cselect_b32 %s, 1, 0" % sr(st + 10))
    a("v_mov_b32 %s, %s" % (vr(t0), sr(st + 10)))
    a("v_lshrrev_b32 %s, 6, v0" % vr(t1))
    a("v_lshlrev_b32 %s, 2, %s" % (vr(t1), vr(t1)))
    a("ds_write_b32 %s, %s offset:256" % (vr(t1), vr(t0)))
    a("s_waitcnt lgkmcnt(0)")
    a("s_barrier")
    a("v_mov_b32 %s, 0" % vr(t1))
    a("ds_read_b128 %s, %s offset:256" % (vr(S[0][0], 4), vr(t1)))
    a("s_waitcnt lgkmcnt(0)")
    a("v_or_b32 %s, %s, %s" % (vr(t0), vr(S[0][0]), vr(S[0][0] + 1)))
    a("v_or3_b32 %s, %s, %s, %s" % (vr(t0), vr(t0), vr(S[0][0] + 2), vr(S[0][0] + 3)))
    a("v_readfirstlane_b32 %s, %s" % (sr(st + 10), vr(t0)))
    a("s_cmp_lg_u32 %s, 0" % sr(st + 10))
    a("s_cbranch_scc1 %s" % lfall)
    a.flush()
    a.label(lstore)
    a("v_bfe_u32 %s, v0, 5, 1" % vr(t0))
    a("v_lshl_add_u32 %s, %s, 3, %s" % (vr(vOa), vr(t0), vr(vOa)))
    a("s_mul_i32 %s, %s, 36" % (sr(st + 3), sr(s_head)))
    for qt in range(2):
        Ox = O[qt]
        a("v_mov_b32 %s, %s" % (vr(t1), vr(Ox + 10)))
        a("v_mov_b32 %s, %s" % (vr(t2), vr(Ox + 10)))
        a("v_permlane32_swap_b32 %s, %s" % (vr(t1), vr(t2)))
        a("v_rcp_f32 %s, %s" % (vr(t1), vr(t1)))
        for r in range(10):
            a("v_mul_f32 %s, %s, %s" % (vr(Ox + r), vr(t1), vr(Ox + r)))
        for p_ in range(5):
            a("v_cvt_pk_bf16_f32 %s, %s, %s" % (vr(Ox + p_), vr(Ox + 2 * p_), vr(Ox + 2 * p_ + 1)))
        a("buffer_store_dwordx2 %s, %s, %s, %s offen" % (vr(Ox, 2), vr(vOa), sr(sO, 4), sr(st + 3)))
        a("buffer_store_dwordx2 %s, %s, %s, %s offen offset:16" % (vr(Ox + 2, 2), vr(vOa), sr(sO, 4), sr(st + 3)))
        a("s_mov_b64 exec, %s" % sr(s_hm, 2))
        a("buffer_store_dword %s, %s, %s, %s offen offset:32" % (vr(Ox + 4), vr(vOa), sr(sO, 4), sr(st + 3)))
        a("s_mov_b64 exec, -1")
        a("s_add_u32 %s, %s, %d" % (sr(st + 3), sr(st + 3), 32 * 1152))
    tl_end(a)
    a("s_endpgm")
    a.label(lfall)
    lg = VmQ(a, "lgkmcnt")
    a("s_barrier")
    for qt in range(2):
        a("v_mov_b32 %s, 0" % vr(QB2[qt] + 1))
        a("v_mov_b32 %s, 0xff800000" % vr(O[qt]))
    a("s_mov_b32 %s, 0" % sr(s_goff))
    ld_chunk()
    wr_chunk(0)
    ld_chunk()
    a("s_waitcnt lgkmcnt(0)")
    lg.q = []
    a("s_barrier")
    rd_k(0, 0)
    rd_k(1, 1)
    a("s_mov_b32 %s, 0" % sr(s_cnt))
    lml = a.newlabel("AMAX")
    a.flush()
    a.label(lml)
    for t in range(16):
        par, kt, buf = t & 1, t % 4, (t // 4) % 4
        if kt == 0:
            wr_chunk((buf + 1) % 4)
            ld_chunk()
        lg.wait(("k", par))
        for qt in range(2):
            Sx = S[qt][0]
            a("v_mfma_f32_32x32x16_bf16 %s, %s, %s, 0" % (vr(Sx, 16), vr(KA1[par], 4), vr(QB1[qt], 4)))
            a("v_mfma_f32_32x32x16_bf16 %s, %s, %s, %s" % (vr(Sx, 16), vr(KA2[par], 4), vr(QB2[qt], 4), vr(Sx, 16)))
        for qt in range(2):
            Sx = S[qt][0]
            for r in range(0, 16, 2):
                a("v_max3_f32 %s, %s, %s, %s" % (vr(O[qt]), vr(O[qt]), vr(Sx + r), vr(Sx + r + 1)))
        rd_k(t + 2, par)
        if kt == 1:
            lg.wait("wr")
            a("s_barrier")
    a("s_add_u32 %s, %s, 1" % (sr(s_cnt), sr(s_cnt)))
    a("s_cmp_lt_u32 %s, 4" % sr(s_cnt))
    a.flush()
    a("s_cbranch_scc1 %s" % lml)
    a("s_waitcnt vmcnt(0) lgkmcnt(0)")
    for qt in range(2):
        a("v_mov_b32 %s, %s" % (vr(t0), vr(O[qt])))
        a("v_mov_b32 %s, %s" % (vr(t1), vr(O[qt])))
        a("v_permlane32_swap_b32 %s, %s" % (vr(t0), vr(t1)))
        a("v_max_f32 %s, %s, %s" % (vr(t0), vr(t0), vr(t1)))
        set_m(a, QB2[qt] + 1, t0, t1, t2, s_hm)
    a("s_mov_b32 %s, 1" % sr(s_mode))
    a("s_barrier")
    a.flush()
    a("s_branch %s" % lpass2)


def set_m(a, dst, vM, t1, t2, s_hm):
    a("v_cvt_pk_bf16_f32 %s, %s, %s" % (vr(t1), vr(vM), vr(vM)))
    a("v_lshlrev_b32 %s, 16, %s" % (vr(t1), vr(t1)))
    a("v_sub_f32 %s, %s, %s" % (vr(t2), vr(vM), vr(t1)))
    a("v_cvt_pk_bf16_f32 %s, -%s, -%s" % (vr(t2), vr(t1), vr(t2)))
    a("v_cndmask_b32 %s, 0, %s, %s" % (vr(dst), vr(t2), sr(s_hm, 2)))


def kernel_attn(a, name):
    a.raw(".globl %s" % name)
    a.raw(".p2align 8")
    a.raw(".type %s,@function" % name)
    a.label(name)
    lend = a.newlabel("END")
    a("s_cmp_ge_u32 s2, 256")
    a("s_cbranch_scc1 %s" % lend)
    a("s_load_dwordx2 s[24:25], s[0:1], 104")
    a("s_waitcnt lgkmcnt(0)")
    make_srd(a, 4, 24, 1728 * 4096, WS_QKVT)
    make_srd(a, 8, 24, 2048 * 1152, WS_O)
    a("s_and_b32 s26, s2, 7")
    a("s_lshr_b32 s27, s2, 3")
    a("s_and_b32 s27, s27, 3")
    a("s_lshl_b32 s27, s27, 3")
    a("s_add_u32 s26, s26, s27")
    a("s_lshr_b32 s27, s2, 5")
    a("s_lshl_b32 s27, s27, 8")
    c = dict(sW=4, sO=8, s_head=26, s_q0=27, s_tmp=28, prof=PROF)
    a("s_mul_i32 s30, s26, 18")
    a("s_add_u32 s30, s30, 576")
    attn_role(a, c)
    a.label(lend)
    a("s_endpgm")
    return dict(name=name, grid=256, lds=c["lds_bytes"], vgprs=c["vgprs"])


def prep_role(a, cfg):
    s_wg = cfg["s_wg"]
    a("s_load_dwordx2 s[20:21], s[0:1], 0")
    a("s_load_dwordx2 s[22:23], s[0:1], 80")
    a("s_load_dwordx2 s[24:25], s[0:1], 104")
    a("v_lshrrev_b32 v1, 6, v0")
    a("v_readfirstlane_b32 s26, v1")
    a("s_waitcnt lgkmcnt(0)")
    make_srd(a, 4, 20, 2048 * 1152)
    make_srd(a, 8, 24, 576 * 4096, WS_XT)
    make_srd(a, 12, 24, 8192, WS_G)
    a("s_mul_i32 s27, s26, 288")
    a("s_add_u32 s22, s22, s27")
    a("s_addc_u32 s23, s23, 0")
    for i in range(9):
        a("s_load_dwordx8 s[%d:%d], s[22:23], %d" % (28 + 8 * i, 35 + 8 * i, 32 * i))
    a("v_and_b32 v1, 63, v0")
    a("s_lshl_b32 s16, %s, 6" % sr(s_wg))
    a("v_add_u32 v1, s16, v1")
    a("v_mul_u32_u24 v2, 1152, v1")
    a("v_add_u32 v2, s27, v2")
    for i in range(18):
        a("buffer_load_dwordx4 v[%d:%d], v2, s[4:7], 0 offen offset:%d" % (16 + 4 * i, 19 + 4 * i, 16 * i))
    a("s_mul_i32 s17, s26, %d" % (144 * 4096))
    a("v_lshlrev_b32 v3, 1, v1")
    a("v_add_u32 v3, s17, v3")
    a("v_mov_b32 v4, 0")
    a("s_waitcnt lgkmcnt(0)")
    for r in range(72):
        if r % 4 == 0:
            a("s_waitcnt vmcnt(%d)" % (17 - r // 4))
        x = 16 + r
        a("s_mov_b32 s18, 0x%x" % (2 * r * 4096))
        a("buffer_store_short v%d, v3, s[8:11], s18 offen" % x)
        a("s_mov_b32 s19, 0x%x" % ((2 * r + 1) * 4096))
        a("buffer_store_short_d16_hi v%d, v3, s[8:11], s19 offen" % x)
        a("v_lshlrev_b32 v5, 16, v%d" % x)
        a("v_and_b32 v6, 0xffff0000, v%d" % x)
        a("s_lshl_b32 s18, s%d, 16" % (28 + r))
        a("s_and_b32 s19, s%d, 0xffff0000" % (28 + r))
        a("v_mul_f32 v5, s18, v5")
        a("v_mul_f32 v6, s19, v6")
        a("v_cvt_pk_bf16_f32 v7, v5, v6")
        a("v_lshlrev_b32 v5, 16, v7")
        a("v_and_b32 v6, 0xffff0000, v7")
        a("v_add_f32 v4, v4, v5")
        a("v_add_f32 v4, v4, v6")
    a("v_lshlrev_b32 v5, 2, v0")
    a("ds_write_b32 v5, v4")
    a("s_waitcnt lgkmcnt(0)")
    a("s_barrier")
    lskip = a.newlabel("PREPX")
    a("s_cmp_lg_u32 s26, 0")
    a("s_cbranch_scc1 %s" % lskip)
    a("ds_read_b32 v6, v5")
    a("ds_read_b32 v7, v5 offset:256")
    a("ds_read_b32 v8, v5 offset:512")
    a("ds_read_b32 v9, v5 offset:768")
    a("s_waitcnt lgkmcnt(0)")
    a("v_add_f32 v6, v6, v7")
    a("v_add_f32 v8, v8, v9")
    a("v_add_f32 v6, v6, v8")
    a("v_cvt_pk_bf16_f32 v6, v6, v6")
    a("v_and_b32 v6, 0xffff0000, v6")
    a("v_mul_f32 v6, 0xbfb8aa3b, v6")
    a("v_exp_f32 v6, v6")
    a("v_add_f32 v6, 1.0, v6")
    a("v_rcp_f32 v6, v6")
    a("v_cvt_pk_bf16_f32 v6, v6, v6")
    a("v_and_b32 v6, 0xffff0000, v6")
    a("v_lshlrev_b32 v7, 2, v1")
    a("buffer_store_dword v6, v7, s[12:15], 0 offen")
    a.label(lskip)
    a("s_waitcnt vmcnt(0)")
    cfg["vgprs"] = 88
    cfg["lds_bytes"] = 1024


def kernel_prep(a, name):
    a.raw(".globl %s" % name)
    a.raw(".p2align 8")
    a.raw(".type %s,@function" % name)
    a.label(name)
    lend = a.newlabel("END")
    a("s_cmp_ge_u32 s2, 32")
    a("s_cbranch_scc1 %s" % lend)
    c = dict(s_wg=2)
    prep_role(a, c)
    a.label(lend)
    a("s_endpgm")
    return dict(name=name, grid=32, lds=c["lds_bytes"], vgprs=c["vgprs"])


def hi_rows():
    rows = []
    for c in range(2):
        for r in range(8):
            rows.append(128 * c + r)
    for c in (2, 3):
        for r in (0, 2, 4, 6):
            rows.append(128 * c + r)
    for c in (4, 5, 6, 7):
        for r in (0, 4):
            rows.append(128 * c + r)
    for c in range(8, 16):
        rows.append(128 * c)
    rows.append(2048)
    while len(rows) < 48:
        rows.append(0)
    return rows


LOG2E = f32bits(1.4426950408889634)
INV2PI = f32bits(0.15915494309189535)


def kgen_role(a, cfg):
    s_wg = cfg["s_wg"]
    if os.environ.get("KPRIO"):
        a("s_setprio %s" % os.environ["KPRIO"])
    a("s_load_dwordx8 s[20:27], s[0:1], 32")
    a("s_load_dwordx2 s[28:29], s[0:1], 64")
    a("s_load_dwordx2 s[30:31], s[0:1], 104")
    a("v_lshrrev_b32 v3, 6, v0")
    a("v_readfirstlane_b32 s40, v3")
    a("s_lshl_b32 s41, %s, 2" % sr(s_wg))
    a("s_add_u32 s41, s41, s40")
    a("s_waitcnt lgkmcnt(0)")
    for i in range(4):
        make_srd(a, 4 + 4 * i, 20 + 2 * i, 576 * 256)
    a("s_lshr_b32 s32, s41, 1")
    a("s_lshl_b32 s32, s32, 2")
    a("s_load_dword s33, s[28:29], s32")
    a("v_and_b32 v1, 15, v0")
    a("v_bfe_u32 v2, v0, 4, 2")
    a("v_lshlrev_b32 v4, 6, v2")
    a("s_lshl_b32 s34, s41, 8")
    a("v_add_u32 v4, s34, v4")
    X, Y = 64, 80

    def ld_y():
        for i in range(4):
            a("buffer_load_dwordx4 v[%d:%d], v4, s[%d:%d], s43 offen" % (Y + 4 * i, Y + 4 * i + 3, 4 + 4 * i, 7 + 4 * i))
    a("s_mov_b32 s43, 0")
    ld_y()
    a("v_lshrrev_b32 v5, 3, v1")
    a("v_lshlrev_b32 v5, 7, v5")
    a("v_and_b32 v6, 7, v1")
    a("v_add_u32 v5, v5, v6")
    a("v_cvt_f32_u32 v8, v5")
    a("v_lshrrev_b32 v5, 2, v1")
    a("v_add_u32 v5, 2, v5")
    a("v_lshlrev_b32 v5, 7, v5")
    a("v_and_b32 v6, 3, v1")
    a("v_lshl_add_u32 v5, v6, 1, v5")
    a("v_lshrrev_b32 v6, 1, v1")
    a("v_lshlrev_b32 v6, 7, v6")
    a("v_and_b32 v7, 1, v1")
    a("v_lshl_add_u32 v6, v7, 2, v6")
    a("v_cmp_gt_u32 vcc, 8, v1")
    a("v_cndmask_b32 v5, v6, v5, vcc")
    a("v_cvt_f32_u32 v9, v5")
    a("v_add_u32 v5, 8, v1")
    a("v_lshlrev_b32 v5, 7, v5")
    a("v_cmp_ge_u32 vcc, 8, v1")
    a("v_cndmask_b32 v5, 0, v5, vcc")
    a("v_cvt_f32_u32 v10, v5")
    a("v_lshlrev_b32 v5, 3, v1")
    a("v_cvt_f32_u32 v11, v5")
    for mt in range(3):
        for i in range(4):
            a("v_mov_b32 v%d, 0" % (48 + 4 * mt + i))
    a("s_waitcnt lgkmcnt(0)")
    a("s_and_b32 s35, s41, 1")
    a("s_lshl_b32 s36, s33, 16")
    a("s_and_b32 s37, s33, 0xffff0000")
    a("s_cmp_eq_u32 s35, 0")
    a("s_cselect_b32 s36, s36, s37")
    a("v_mov_b32 v12, 0x%x" % LOG2E)
    a("v_mul_f32 v12, s36, v12")
    a("v_exp_f32 v12, v12")
    a("v_cvt_pk_bf16_f32 v12, v12, v12")
    a("v_lshlrev_b32 v12, 16, v12")

    def cexp(p, o):
        a("v_mul_f32 v%d, v40, %s" % (o, p))
        a("v_mul_f32 v%d, v41, %s" % (o + 1, p))
        a("v_exp_f32 v%d, v%d" % (o, o))
        a("v_fract_f32 v%d, v%d" % (o + 1, o + 1))
        a("v_sin_f32 v%d, v%d" % (o + 2, o + 1))
        a("v_cos_f32 v%d, v%d" % (o + 1, o + 1))

    lk = a.newlabel("KLOOP")
    a.flush()
    a.label(lk)
    a("s_waitcnt vmcnt(0)")
    for r in range(16):
        a("v_mov_b32 v%d, v%d" % (X + r, Y + r))
    a("s_add_u32 s43, s43, 16")
    ld_y()
    for st_ in range(8):
        def unpack(dst, base):
            r = base + st_ // 2
            if st_ & 1:
                a("v_and_b32 %s, 0xffff0000, v%d" % (dst, r))
            else:
                a("v_lshlrev_b32 %s, 16, v%d" % (dst, r))
        unpack("v40", X)
        unpack("v41", X + 4)
        unpack("v42", X + 8)
        unpack("v43", X + 12)
        a("v_mul_f32 v40, 0x%x, v40" % LOG2E)
        a("v_mul_f32 v41, v41, v12")
        a("v_exp_f32 v40, v40")
        a("v_mul_f32 v41, 0x%x, v41" % INV2PI)
        a("v_mul_f32 v42, v42, v12")
        a("v_mul_f32 v43, v43, v12")
        a("v_cvt_pk_bf16_f32 v40, v40, v40")
        a("v_lshlrev_b32 v40, 16, v40")
        a("v_mul_f32 v40, v40, v12")
        a("v_mul_f32 v40, 0x%x, v40" % (LOG2E | 0x80000000))
        cexp("v11", 32)
        for mt in range(3):
            cexp("v%d" % (8 + mt), 20 + 4 * mt)
        a("v_mul_f32 v44, v42, v33")
        a("v_fma_f32 v44, -v43, v34, v44")
        a("v_mul_f32 v44, v44, v32")
        a("v_mul_f32 v45, v42, v34")
        a("v_fma_f32 v45, v43, v33, v45")
        a("v_mul_f32 v45, -v45, v32")
        for mt in range(3):
            o = 20 + 4 * mt
            a("v_mul_f32 v%d, v%d, v%d" % (o + 1, o, o + 1))
            a("v_mul_f32 v%d, v%d, v%d" % (o + 2, o, o + 2))
        for mt in range(3):
            o = 20 + 4 * mt
            D = "v[%d:%d]" % (48 + 4 * mt, 51 + 4 * mt)
            a("v_mfma_f32_16x16x4_f32 %s, v%d, v44, %s" % (D, o + 1, D))
            a("v_mfma_f32_16x16x4_f32 %s, v%d, v45, %s" % (D, o + 2, D))
    a("s_cmp_lt_u32 s43, 64")
    a.flush()
    a("s_cbranch_scc1 %s" % lk)
    a("s_mul_i32 s42, s40, 3072")
    a("v_lshlrev_b32 v5, 8, v2")
    a("v_lshl_add_u32 v5, v1, 2, v5")
    a("v_add_u32 v5, s42, v5")
    for mt in range(3):
        for i in range(4):
            a("v_mul_f32 v%d, 2.0, v%d" % (48 + 4 * mt + i, 48 + 4 * mt + i))
            a("ds_write_b32 v5, v%d offset:%d" % (48 + 4 * mt + i, (16 * mt + i) * 64))
    a("v_and_b32 v13, 63, v0")
    a("v_lshlrev_b32 v5, 3, v13")
    a("v_sub_u32 v5, 2047, v5")
    make_srd(a, 4, 30, 576 * KR_STRIDE, WS_KR)
    a("s_mul_i32 s34, s41, %d" % KR_STRIDE)
    a("s_add_u32 s44, s34, 4096")
    a("v_lshlrev_b32 v14, 4, v13")
    a("s_waitcnt vmcnt(0) lgkmcnt(0)")
    le = a.newlabel("KEXP")
    a.flush()
    a.label(le)
    for e in range(8):
        a("v_subrev_u32 v20, %d, v5" % e)
        a("v_cvt_f32_u32 v20, v20")
        a("v_cvt_pk_bf16_f32 v20, v20, v20")
        a("v_lshlrev_b32 v20, 16, v20")
        a("v_cvt_u32_f32 v20, v20")
        a("v_or_b32 v23, 1, v20")
        a("v_ffbh_u32 v23, v23")
        a("v_sub_u32 v23, 24, v23")
        a("v_med3_i32 v23, v23, 0, 3")
        a("v_lshrrev_b32 v21, 7, v20")
        a("v_and_b32 v22, 7, v20")
        a("v_lshrrev_b32 v22, v23, v22")
        a("v_sub_u32 v24, 3, v23")
        a("v_lshlrev_b32 v21, v24, v21")
        a("v_lshl_add_u32 v21, v23, 3, v21")
        a("v_add_u32 v21, v21, v22")
        a("v_bfe_u32 v22, v20, 3, 4")
        a("v_lshl_add_u32 v21, v21, 4, v22")
        a("v_lshl_add_u32 v21, v21, 2, s42")
        a("ds_read_b32 v%d, v21" % (64 + e))
    a("v_subrev_u32 v5, 512, v5")
    a("s_waitcnt lgkmcnt(0)")
    for e in range(4):
        a("v_cvt_pk_bf16_f32 v%d, v%d, v%d" % (72 + e, 64 + 2 * e, 65 + 2 * e))
    a("buffer_store_dwordx4 v[72:75], v14, s[4:7], s34 offen")
    a("s_add_u32 s34, s34, 1024")
    a("s_cmp_lt_u32 s34, s44")
    a.flush()
    a("s_cbranch_scc1 %s" % le)
    a("v_mov_b32 v40, 0")
    a("v_mov_b32 v41, 0")
    a("v_mov_b32 v42, 0")
    a("v_mov_b32 v43, 0")
    a("v_cmp_gt_u32 vcc, 8, v13")
    a("s_and_saveexec_b64 s[38:39], vcc")
    a("buffer_store_dwordx4 v[40:43], v14, s[4:7], s34 offen")
    a("s_mov_b64 exec, s[38:39]")
    a("s_waitcnt vmcnt(0)")
    cfg["vgprs"] = 96
    cfg["lds_bytes"] = 4 * 3072


def kgen_role2(a, cfg):
    s_wg = cfg["s_wg"]
    a("s_load_dwordx8 s[20:27], s[0:1], 32")
    a("s_load_dwordx2 s[28:29], s[0:1], 64")
    a("s_load_dwordx2 s[30:31], s[0:1], 104")
    a("v_lshrrev_b32 v3, 6, v0")
    a("v_readfirstlane_b32 s40, v3")
    a("s_lshr_b32 s43, s40, 1")
    a("s_and_b32 s44, s40, 1")
    a("s_lshl_b32 s41, %s, 1" % sr(s_wg))
    a("s_add_u32 s41, s41, s43")
    a("s_waitcnt lgkmcnt(0)")
    for i in range(4):
        make_srd(a, 4 + 4 * i, 20 + 2 * i, 576 * 256)
    a("s_lshr_b32 s32, s41, 1")
    a("s_lshl_b32 s32, s32, 2")
    a("s_load_dword s33, s[28:29], s32")
    a("v_and_b32 v1, 15, v0")
    a("v_bfe_u32 v2, v0, 4, 2")
    a("v_lshlrev_b32 v4, 6, v2")
    a("s_lshl_b32 s34, s41, 8")
    a("s_lshl_b32 s45, s44, 5")
    a("s_add_u32 s34, s34, s45")
    a("v_add_u32 v4, s34, v4")
    IN = 64
    for q in range(2):
        for i in range(4):
            a("buffer_load_dwordx4 v[%d:%d], v4, s[%d:%d], 0 offen offset:%d" % (IN + 8 * i + 4 * q, IN + 8 * i + 4 * q + 3, 4 + 4 * i, 7 + 4 * i, 16 * q))
    a("v_lshrrev_b32 v5, 3, v1")
    a("v_lshlrev_b32 v5, 7, v5")
    a("v_and_b32 v6, 7, v1")
    a("v_add_u32 v5, v5, v6")
    a("v_cvt_f32_u32 v8, v5")
    a("v_lshrrev_b32 v5, 2, v1")
    a("v_add_u32 v5, 2, v5")
    a("v_lshlrev_b32 v5, 7, v5")
    a("v_and_b32 v6, 3, v1")
    a("v_lshl_add_u32 v5, v6, 1, v5")
    a("v_lshrrev_b32 v6, 1, v1")
    a("v_lshlrev_b32 v6, 7, v6")
    a("v_and_b32 v7, 1, v1")
    a("v_lshl_add_u32 v6, v7, 2, v6")
    a("v_cmp_gt_u32 vcc, 8, v1")
    a("v_cndmask_b32 v5, v6, v5, vcc")
    a("v_cvt_f32_u32 v9, v5")
    a("v_add_u32 v5, 8, v1")
    a("v_lshlrev_b32 v5, 7, v5")
    a("v_cmp_ge_u32 vcc, 8, v1")
    a("v_cndmask_b32 v5, 0, v5, vcc")
    a("v_cvt_f32_u32 v10, v5")
    a("v_lshlrev_b32 v5, 3, v1")
    a("v_cvt_f32_u32 v11, v5")
    for mt in range(3):
        for i in range(4):
            a("v_mov_b32 v%d, 0" % (48 + 4 * mt + i))
    a("s_waitcnt lgkmcnt(0)")
    a("s_and_b32 s35, s41, 1")
    a("s_lshl_b32 s36, s33, 16")
    a("s_and_b32 s37, s33, 0xffff0000")
    a("s_cmp_eq_u32 s35, 0")
    a("s_cselect_b32 s36, s36, s37")
    a("v_mov_b32 v12, 0x%x" % LOG2E)
    a("v_mul_f32 v12, s36, v12")
    a("v_exp_f32 v12, v12")
    a("v_cvt_pk_bf16_f32 v12, v12, v12")
    a("v_lshlrev_b32 v12, 16, v12")

    def cexp(p, o):
        a("v_mul_f32 v%d, v40, %s" % (o, p))
        a("v_mul_f32 v%d, v41, %s" % (o + 1, p))
        a("v_exp_f32 v%d, v%d" % (o, o))
        a("v_fract_f32 v%d, v%d" % (o + 1, o + 1))
        a("v_sin_f32 v%d, v%d" % (o + 2, o + 1))
        a("v_cos_f32 v%d, v%d" % (o + 1, o + 1))

    for st_ in range(16):
        if st_ % 8 == 0:
            a("s_waitcnt vmcnt(%d)" % (4 if st_ == 0 else 0))

        def unpack(dst, base):
            r = base + st_ // 2
            if st_ & 1:
                a("v_and_b32 %s, 0xffff0000, v%d" % (dst, r))
            else:
                a("v_lshlrev_b32 %s, 16, v%d" % (dst, r))
        unpack("v40", IN)
        unpack("v41", IN + 8)
        unpack("v42", IN + 16)
        unpack("v43", IN + 24)
        a("v_mul_f32 v40, 0x%x, v40" % LOG2E)
        a("v_mul_f32 v41, v41, v12")
        a("v_exp_f32 v40, v40")
        a("v_mul_f32 v41, 0x%x, v41" % INV2PI)
        a("v_mul_f32 v42, v42, v12")
        a("v_mul_f32 v43, v43, v12")
        a("v_cvt_pk_bf16_f32 v40, v40, v40")
        a("v_lshlrev_b32 v40, 16, v40")
        a("v_mul_f32 v40, v40, v12")
        a("v_mul_f32 v40, 0x%x, v40" % (LOG2E | 0x80000000))
        cexp("v11", 32)
        for mt in range(3):
            cexp("v%d" % (8 + mt), 20 + 4 * mt)
        a("v_mul_f32 v44, v42, v33")
        a("v_fma_f32 v44, -v43, v34, v44")
        a("v_mul_f32 v44, v44, v32")
        a("v_mul_f32 v45, v42, v34")
        a("v_fma_f32 v45, v43, v33, v45")
        a("v_mul_f32 v45, -v45, v32")
        for mt in range(3):
            o = 20 + 4 * mt
            a("v_mul_f32 v%d, v%d, v%d" % (o + 1, o, o + 1))
            a("v_mul_f32 v%d, v%d, v%d" % (o + 2, o, o + 2))
        for mt in range(3):
            o = 20 + 4 * mt
            D = "v[%d:%d]" % (48 + 4 * mt, 51 + 4 * mt)
            a("v_mfma_f32_16x16x4_f32 %s, v%d, v44, %s" % (D, o + 1, D))
            a("v_mfma_f32_16x16x4_f32 %s, v%d, v45, %s" % (D, o + 2, D))
    a("s_mul_i32 s42, s40, 3072")
    a("v_lshlrev_b32 v5, 8, v2")
    a("v_lshl_add_u32 v5, v1, 2, v5")
    a("v_add_u32 v6, s42, v5")
    for mt in range(3):
        for i in range(4):
            a("ds_write_b32 v6, v%d offset:%d" % (48 + 4 * mt + i, (16 * mt + i) * 64))
    a("v_and_b32 v13, 63, v0")
    a("v_lshlrev_b32 v7, 3, v13")
    a("s_lshl_b32 s45, s44, 10")
    a("v_sub_u32 v7, 2047, v7")
    a("v_subrev_u32 v7, s45, v7")
    make_srd(a, 4, 30, 576 * KR_STRIDE, WS_KR)
    a("s_mul_i32 s34, s41, %d" % KR_STRIDE)
    a("s_lshl_b32 s45, s44, 11")
    a("s_add_u32 s34, s34, s45")
    a("v_lshlrev_b32 v14, 4, v13")
    a("s_add_u32 s46, s42, %d" % (4 * 3072))
    for it in range(2):
        for e in range(8):
            a("v_subrev_u32 v20, %d, v7" % (e + 512 * it))
            a("v_cvt_f32_u32 v20, v20")
            a("v_cvt_pk_bf16_f32 v20, v20, v20")
            a("v_lshlrev_b32 v20, 16, v20")
            a("v_cvt_u32_f32 v20, v20")
            a("v_or_b32 v23, 1, v20")
            a("v_ffbh_u32 v23, v23")
            a("v_sub_u32 v23, 24, v23")
            a("v_med3_i32 v23, v23, 0, 3")
            a("v_lshrrev_b32 v21, 7, v20")
            a("v_and_b32 v22, 7, v20")
            a("v_lshrrev_b32 v22, v23, v22")
            a("v_sub_u32 v24, 3, v23")
            a("v_lshlrev_b32 v21, v24, v21")
            a("v_lshl_add_u32 v21, v23, 3, v21")
            a("v_add_u32 v21, v21, v22")
            a("v_bfe_u32 v22, v20, 3, 4")
            a("v_lshl_add_u32 v21, v21, 4, v22")
            a("v_lshl_add_u32 v%d, v21, 2, s46" % (96 + 8 * it + e))
    a("s_waitcnt lgkmcnt(0)")
    a("s_barrier")
    a("s_xor_b32 s47, s42, 3072")
    a("s_cmp_lt_u32 s40, 2")
    a("s_cselect_b32 s47, s47, s47")
    a("s_xor_b32 s48, s40, 1")
    a("s_mul_i32 s47, s48, 3072")
    a("v_add_u32 v6, s47, v5")
    for mt in range(3):
        for i in range(4):
            a("ds_read_b32 v%d, v6 offset:%d" % (64 + 4 * mt + i, (16 * mt + i) * 64))
    a("v_add_u32 v6, s46, v5")
    a("s_waitcnt lgkmcnt(0)")
    for mt in range(3):
        for i in range(4):
            a("v_add_f32 v%d, v%d, v%d" % (48 + 4 * mt + i, 48 + 4 * mt + i, 64 + 4 * mt + i))
            a("v_mul_f32 v%d, 2.0, v%d" % (48 + 4 * mt + i, 48 + 4 * mt + i))
            a("ds_write_b32 v6, v%d offset:%d" % (48 + 4 * mt + i, (16 * mt + i) * 64))
    a("s_waitcnt lgkmcnt(0)")
    for it in range(2):
        for e in range(8):
            a("ds_read_b32 v%d, v%d" % (64 + 8 * it + e, 96 + 8 * it + e))
    for it in range(2):
        a("s_waitcnt lgkmcnt(%d)" % (8 if it == 0 else 0))
        for e in range(4):
            a("v_cvt_pk_bf16_f32 v%d, v%d, v%d" % (112 + 4 * it + e, 64 + 8 * it + 2 * e, 65 + 8 * it + 2 * e))
        a("buffer_store_dwordx4 v[%d:%d], v14, s[4:7], s34 offen offset:%d" % (112 + 4 * it, 115 + 4 * it, 1024 * it))
    a("s_cmp_lg_u32 s44, 0")
    lsk = a.newlabel("KGSK")
    a("s_cbranch_scc1 %s" % lsk)
    a("v_mov_b32 v40, 0")
    a("v_mov_b32 v41, 0")
    a("v_mov_b32 v42, 0")
    a("v_mov_b32 v43, 0")
    a("s_add_u32 s34, s34, 4096")
    a("v_cmp_gt_u32 vcc, 8, v13")
    a("s_and_saveexec_b64 s[38:39], vcc")
    a("buffer_store_dwordx4 v[40:43], v14, s[4:7], s34 offen")
    a("s_mov_b64 exec, s[38:39]")
    a.flush()
    a.label(lsk)
    a("s_waitcnt vmcnt(0)")
    cfg["vgprs"] = 128
    cfg["lds_bytes"] = 8 * 3072


def kernel_kgen(a, name):
    a.raw(".globl %s" % name)
    a.raw(".p2align 8")
    a.raw(".type %s,@function" % name)
    a.label(name)
    lend = a.newlabel("END")
    a("s_cmp_ge_u32 s2, 144")
    a("s_cbranch_scc1 %s" % lend)
    c = dict(s_wg=2)
    kgen_role(a, c)
    a.label(lend)
    a("s_endpgm")
    return dict(name=name, grid=288, lds=c["lds_bytes"], vgprs=c["vgprs"])


CU_ROW = 144
CU_SZ = 33 * CU_ROW
KC = 1312
CW = CU_SZ + 8 * KC


def conv_role(a, cfg):
    s_wg = cfg["s_wg"]
    a("s_load_dwordx2 s[22:23], s[0:1], 72")
    a("s_load_dwordx2 s[24:25], s[0:1], 104")
    a("v_lshrrev_b32 v1, 6, v0")
    a("v_readfirstlane_b32 s26, v1")
    a("s_lshl_b32 s27, %s, 2" % sr(s_wg))
    a("s_add_u32 s27, s27, s26")
    a("s_waitcnt lgkmcnt(0)")
    make_srd(a, 4, 24, 576 * KR_STRIDE, WS_KR)
    make_srd(a, 8, 24, 576 * 4096, WS_XT)
    make_srd(a, 12, 24, 576 * 4096, WS_BT)
    a("s_lshr_b32 s28, s27, 1")
    a("s_lshl_b32 s28, s28, 2")
    a("s_load_dword s29, s[22:23], s28")
    a("s_mul_i32 s30, s27, %d" % KR_STRIDE)
    a("s_lshl_b32 s31, s27, 12")
    a("s_mul_i32 s32, s26, %d" % CW)
    a("v_and_b32 v2, 63, v0")
    a("v_lshlrev_b32 v3, 4, v2")
    SG = 120
    a("v_and_b32 v5, 7, v2")
    a("v_lshlrev_b32 v5, 4, v5")
    a("v_lshrrev_b32 v4, 3, v2")
    a("v_lshl_add_u32 v13, v4, 1, v5")
    a("v_mul_u32_u24 v14, %d, v4" % KC)
    a("v_add3_u32 v14, v14, v5, s32")

    def ld_win(w):
        a("s_add_u32 s33, s30, %d" % (2 * (1536 - 512 * w)))
        for k in range(9):
            a("buffer_load_dwordx4 %s, v13, s[4:7], s33 offen offset:%d" % (vr(SG + 4 * k, 4), 128 * k))

    def wr_win():
        for k in range(9):
            a("ds_write_b128 v14, %s offset:%d" % (vr(SG + 4 * k, 4), CU_SZ + 128 * k))

    for k in range(4):
        a("buffer_load_dwordx4 v[%d:%d], v3, s[8:11], s31 offen offset:%d" % (16 + 4 * k, 19 + 4 * k, 1024 * k))
    ld_win(0)
    a("v_cmp_gt_u32 vcc, 8, v2")
    a("s_mov_b64 s[34:35], vcc")
    a("v_mul_u32_u24 v4, %d, v4" % CU_ROW)
    a("v_add3_u32 v4, v4, v5, s32")
    for r in range(4):
        a("v_mov_b32 v%d, 0" % (56 + r))
    a("s_mov_b64 exec, s[34:35]")
    a("ds_write_b128 v4, v[56:59]")
    a("s_mov_b64 exec, -1")
    a("v_and_b32 v6, 31, v2")
    a("v_bfe_u32 v7, v2, 5, 1")
    a("v_and_b32 v8, 7, v6")
    a("v_sub_u32 v8, 7, v8")
    a("v_mul_u32_u24 v8, %d, v8" % KC)
    a("v_lshrrev_b32 v9, 3, v6")
    a("v_sub_u32 v9, v7, v9")
    a("v_lshl_add_u32 v8, v9, 4, v8")
    a("v_add_u32 v8, s32, v8")
    a("v_add_u32 v8, %d, v8" % (CU_SZ + 48))
    a("v_lshlrev_b32 v10, 4, v7")
    a("v_add_u32 v10, s32, v10")
    a("v_mul_u32_u24 v9, %d, v6" % CU_ROW)
    a("v_add_u32 v9, v9, v10")
    a("v_add_u32 v9, %d, v9" % CU_ROW)
    a("s_waitcnt vmcnt(9)")
    for k in range(4):
        a("ds_write_b128 v4, v[%d:%d] offset:%d" % (16 + 4 * k, 19 + 4 * k, CU_ROW + 8 * CU_ROW * k))
    a("s_waitcnt vmcnt(0)")
    wr_win()
    ld_win(1)
    RING = 10
    F0 = 16
    B0 = 56
    AC = 88
    lg = VmQ(a, "lgkmcnt")
    fr = lambda m: vr(F0 + 4 * (m % RING), 4)
    br = lambda par, s_: vr(B0 + 16 * par + 4 * s_, 4)

    def rd_delta(d):
        w = d // 8
        if d > 0:
            a("v_subrev_u32 v9, %d, v9" % CU_ROW)
        a("v_max_i32 v11, v9, v10")
        if d % 8 == 0 and d > 0:
            a("s_waitcnt vmcnt(0)")
            wr_win()
            if w < 3:
                ld_win(w + 1)
        for m in range(4 * d - 1 - (2 if d == 0 else 0), 4 * d + 3):
            a("ds_read_b128 %s, v8 offset:%d" % (fr(m), 960 - 32 * (m - 32 * w))); lg.push(d)
        for s_ in range(4):
            a("ds_read_b128 %s, v11 offset:%d" % (br(d & 1, s_), 32 * s_)); lg.push(d)

    a("s_waitcnt lgkmcnt(0)")
    rd_delta(0)
    for d in range(32):
        if d + 1 < 32:
            rd_delta(d + 1)
        if (d + 1) % 8 == 0 and d + 1 < 32:
            a("s_waitcnt lgkmcnt(15)")
            a("s_waitcnt lgkmcnt(8)")
            lg.q = [x for x in lg.q if x != d]
        else:
            lg.wait(d)
        for s_ in range(4):
            for t in range(2):
                c = "0" if (d == 0 and s_ == 0) else vr(AC + 16 * t, 16)
                a("v_mfma_f32_32x32x16_bf16 %s, %s, %s, %s" % (vr(AC + 16 * t, 16), fr(4 * d + 2 * t - s_), br(d & 1, s_), c))
    a("v_mul_u32_u24 v9, %d, v6" % CU_ROW)
    a("v_lshl_add_u32 v9, v7, 3, v9")
    a("v_add_u32 v9, s32, v9")
    for t in range(2):
        for q in range(4):
            k = 4 * t + q
            a("ds_read_b64 v[%d:%d], v9 offset:%d" % (16 + 2 * k, 17 + 2 * k, CU_ROW + 64 * t + 16 * q))
    a("v_lshlrev_b32 v12, 7, v6")
    a("v_lshl_add_u32 v12, v7, 3, v12")
    a("s_and_b32 s35, s27, 1")
    a("s_lshl_b32 s36, s29, 16")
    a("s_and_b32 s37, s29, 0xffff0000")
    a("s_cmp_eq_u32 s35, 0")
    a("s_cselect_b32 s36, s36, s37")
    a("s_waitcnt lgkmcnt(0)")
    for t in range(2):
        for q in range(4):
            k = 4 * t + q
            for pp in range(2):
                A = AC + 16 * t + 4 * q + 2 * pp
                U = 16 + 2 * k + pp
                a("v_cvt_pk_bf16_f32 v32, v%d, v%d" % (A, A + 1))
                a("v_lshlrev_b32 v33, 16, v%d" % U)
                a("v_and_b32 v34, 0xffff0000, v%d" % U)
                a("v_mul_f32 v33, s36, v33")
                a("v_mul_f32 v34, s36, v34")
                a("v_cvt_pk_bf16_f32 v33, v33, v34")
                a("v_lshlrev_b32 v34, 16, v32")
                a("v_and_b32 v32, 0xffff0000, v32")
                a("v_lshlrev_b32 v35, 16, v33")
                a("v_and_b32 v33, 0xffff0000, v33")
                a("v_add_f32 v34, v34, v35")
                a("v_add_f32 v32, v32, v33")
                a("v_cvt_pk_bf16_f32 v%d, v34, v32" % (A))
            A = AC + 16 * t + 4 * q
            a("v_mov_b32 v%d, v%d" % (A + 1, A + 2))
            a("buffer_store_dwordx2 v[%d:%d], v12, s[12:15], s31 offen offset:%d" % (A, A + 1, 64 * t + 16 * q))
    a("s_waitcnt vmcnt(0)")
    cfg["vgprs"] = 156
    cfg["lds_bytes"] = 4 * CW


def kernel_conv(a, name):
    a.raw(".globl %s" % name)
    a.raw(".p2align 8")
    a.raw(".type %s,@function" % name)
    a.label(name)
    lend = a.newlabel("END")
    a("s_cmp_ge_u32 s2, 144")
    a("s_cbranch_scc1 %s" % lend)
    c = dict(s_wg=2)
    conv_role(a, c)
    a.label(lend)
    a("s_endpgm")
    return dict(name=name, grid=288, lds=c["lds_bytes"], vgprs=c["vgprs"])


def gemm3_pre(a, ctx):
    cfg = ctx["cfg"]
    tm, tn, wn = ctx["tm"], ctx["tn"], ctx["wn"]
    vt0, vt1, vt2, vt3 = ctx["vt"]
    al = ctx["al"]
    s_m0, s_n0 = cfg["s_m0"], cfg["s_n0"]
    G = [[al.get(4, 4) for q in range(4)] for ti in range(tm)]
    Bv = [[[al.get(2, 2) for q in range(4)] for tj in range(tn)] for ti in range(tm)]
    vo = al.get()
    cfg["G"], cfg["Bv"], cfg["vo"] = G, Bv, vo
    a("v_lshrrev_b32 %s, 6, v0" % vr(vt0))
    if wn == 2:
        a("v_lshrrev_b32 %s, 1, %s" % (vr(vt1), vr(vt0)))
        a("v_and_b32 %s, 1, %s" % (vr(vt0), vr(vt0)))
    else:
        a("v_mov_b32 %s, %s" % (vr(vt1), vr(vt0)))
        a("v_mov_b32 %s, 0" % vr(vt0))
    a("v_mul_u32_u24 %s, %d, %s" % (vr(vt0), tn * 32, vr(vt0)))
    a("v_and_b32 %s, 31, v0" % vr(vt2))
    a("v_add3_u32 %s, %s, %s, %s" % (vr(vt0), vr(vt0), vr(vt2), sr(s_n0)))
    a("v_mul_u32_u24 %s, %d, %s" % (vr(vt1), tm * 32, vr(vt1)))
    a("v_bfe_u32 %s, v0, 5, 1" % vr(vt2))
    a("v_lshl_add_u32 %s, %s, 2, %s" % (vr(vt1), vr(vt2), vr(vt1)))
    a("v_add_u32 %s, %s, %s" % (vr(vt1), sr(s_m0), vr(vt1)))
    a("v_lshlrev_b32 %s, 2, %s" % (vr(vt2), vr(vt1)))
    for ti in range(tm):
        for q in range(4):
            a("buffer_load_dwordx4 %s, %s, %s, 0 offen offset:%d" % (vr(G[ti][q], 4), vr(vt2), sr(cfg["sG"], 4), (ti * 32 + 8 * q) * 4))
    a("v_lshlrev_b32 %s, 12, %s" % (vr(vt2), vr(vt0)))
    a("v_lshl_add_u32 %s, %s, 1, %s" % (vr(vt2), vr(vt1), vr(vt2)))
    for ti in range(tm):
        for tj in range(tn):
            a("s_mov_b32 %s, 0x%x" % (sr(cfg["s_tmp"]), tj * 32 * 4096))
            for q in range(4):
                a("buffer_load_dwordx2 %s, %s, %s, %s offen offset:%d" % (vr(Bv[ti][tj][q], 2), vr(vt2), sr(cfg["sBT"], 4), sr(cfg["s_tmp"]), (ti * 32 + 8 * q) * 2))
    a("v_mul_u32_u24 %s, 1152, %s" % (vr(vo), vr(vt1)))
    a("v_lshl_add_u32 %s, %s, 1, %s" % (vr(vo), vr(vt0), vr(vo)))


def gemm3_epi(a, ctx):
    cfg = ctx["cfg"]
    tm, tn = ctx["tm"], ctx["tn"]
    vt0, vt1, vt2, vt3 = ctx["vt"]
    acc = ctx["acc"]
    G, Bv, vo = cfg["G"], cfg["Bv"], cfg["vo"]
    sO = cfg["sO"]
    st = cfg["s_tmp"]
    for ti in range(tm):
        for tj in range(tn):
            A = acc[ti][tj]
            for q in range(4):
                for i in range(4):
                    r = A + 4 * q + i
                    g = G[ti][q] + i
                    b = Bv[ti][tj][q] + (i >> 1)
                    a("v_cvt_pk_bf16_f32 %s, %s, %s" % (vr(r), vr(r), vr(r)))
                    a("v_sub_f32 %s, 1.0, %s" % (vr(vt0), vr(g)))
                    a("v_and_b32 %s, 0xffff0000, %s" % (vr(r), vr(r)))
                    if i & 1:
                        a("v_and_b32 %s, 0xffff0000, %s" % (vr(vt1), vr(b)))
                    else:
                        a("v_lshlrev_b32 %s, 16, %s" % (vr(vt1), vr(b)))
                    a("v_cvt_pk_bf16_f32 %s, %s, %s" % (vr(vt0), vr(vt0), vr(vt0)))
                    a("v_mul_f32 %s, %s, %s" % (vr(r), vr(g), vr(r)))
                    a("v_and_b32 %s, 0xffff0000, %s" % (vr(vt0), vr(vt0)))
                    a("v_mul_f32 %s, %s, %s" % (vr(vt0), vr(vt0), vr(vt1)))
                    a("v_cvt_pk_bf16_f32 %s, %s, %s" % (vr(r), vr(r), vr(vt0)))
                    a("v_lshlrev_b32 %s, 16, %s" % (vr(vt0), vr(r)))
                    a("v_and_b32 %s, 0xffff0000, %s" % (vr(r), vr(r)))
                    a("v_add_f32 %s, %s, %s" % (vr(r), vr(r), vr(vt0)))
                    a("v_cvt_pk_bf16_f32 %s, %s, %s" % (vr(r), vr(r), vr(r)))
                    off = (ti * 32 + 8 * q + i) * 1152 + tj * 64
                    a("s_mov_b32 %s, 0x%x" % (sr(st + 1), off))
                    a("buffer_store_short %s, %s, %s, %s offen" % (vr(r), vr(vo), sr(sO, 4), sr(st + 1)))


def gemm3_role(a, cfg):
    s_wg = cfg["s_wg"]
    a("s_load_dwordx2 s[20:21], s[0:1], 16")
    a("s_load_dwordx2 s[22:23], s[0:1], 88")
    a("s_load_dwordx2 s[24:25], s[0:1], 104")
    a("s_waitcnt lgkmcnt(0)")
    make_srd(a, 4, 24, 2048 * 1152, WS_O)
    make_srd(a, 8, 20, 576 * 1152)
    make_srd(a, 12, 22, 2048 * 1152)
    make_srd(a, 16, 24, 8192, WS_G)
    make_srd(a, 36, 24, 576 * 4096, WS_BT)
    a("s_and_b32 s26, %s, 31" % sr(s_wg))
    a("s_lshl_b32 s26, s26, 6")
    a("s_lshr_b32 s27, %s, 5" % sr(s_wg))
    a("s_lshl_b32 s27, s27, 6")
    c = dict(wm=2, wn=2, tm=1, tn=1, lda=1152, ldb=1152, K=576, sA=4, sB=8, sO=12, sG=16, sBT=36, s_m0=26, s_n0=27, s_tmp=28,
             epi=gemm3_epi, pre=gemm3_pre, P=int(os.environ.get("GP3", "3")), KS=int(os.environ.get("KS3", "64")))
    gemm(a, c)
    a("s_waitcnt vmcnt(0)")
    cfg["vgprs"] = c["vgprs"]
    cfg["lds_bytes"] = c["lds_bytes"]


def kernel_gemm3(a, name):
    a.raw(".globl %s" % name)
    a.raw(".p2align 8")
    a.raw(".type %s,@function" % name)
    a.label(name)
    lend = a.newlabel("END")
    a("s_cmp_ge_u32 s2, 288")
    a("s_cbranch_scc1 %s" % lend)
    c = dict(s_wg=2)
    gemm3_role(a, c)
    a.label(lend)
    a("s_endpgm")
    return dict(name=name, grid=288, lds=c["lds_bytes"], vgprs=c["vgprs"])


TL = int(os.environ.get("TL", "0"))


def tl_start(a):
    if TL:
        a("s_memrealtime s[100:101]")


def tl_end(a):
    if TL:
        a("s_waitcnt vmcnt(0) lgkmcnt(0)")
        a("s_memrealtime s[98:99]")
        a("s_load_dwordx2 s[4:5], s[0:1], 104")
        a("s_waitcnt lgkmcnt(0)")
        a("s_add_u32 s4, s4, 0x4000000")
        a("s_addc_u32 s5, s5, 0")
        a("s_mov_b32 s6, 0x100000")
        a("s_mov_b32 s7, 0x00020000")
        a("v_mov_b32 v4, s100")
        a("v_mov_b32 v5, s98")
        a("v_mov_b32 v3, s2")
        a("v_lshlrev_b32 v3, 3, v3")
        a("v_cmp_eq_u32 vcc, 0, v0")
        a("s_and_saveexec_b64 s[8:9], vcc")
        a("buffer_store_dwordx2 v[4:5], v3, s[4:7], 0 offen")
        a("s_waitcnt vmcnt(0)")

def kstart(a, name):
    a.raw(".globl %s" % name)
    a.raw(".p2align 8")
    a.raw(".type %s,@function" % name)
    a.label(name)


def kernel_L1(a, name):
    kstart(a, name)
    tl_start(a)
    lend, lprep, lkg, lv = a.newlabel("END"), a.newlabel("PREP"), a.newlabel("KGEN"), a.newlabel("VPART")
    a("s_cmp_ge_u32 s2, 240")
    a("s_cbranch_scc1 %s" % lprep)
    a("s_load_dwordx4 s[20:23], s[0:1], 0")
    a("s_load_dwordx2 s[24:25], s[0:1], 104")
    a("s_waitcnt lgkmcnt(0)")
    make_srd(a, 4, 20, 2048 * 1152)
    make_srd(a, 8, 22, 576 * 3456)
    make_srd(a, 12, 24, 1728 * 4096, WS_QKVT)
    a("s_cmp_ge_u32 s2, 144")
    a("s_cbranch_scc1 %s" % lv)
    a("s_and_b32 s26, s2, 15")
    a("s_lshl_b32 s26, s26, 7")
    a("s_lshr_b32 s27, s2, 4")
    a("s_lshl_b32 s27, s27, 7")
    c1 = dict(wm=2, wn=2, tm=2, tn=2, lda=1152, ldb=3456, K=576, sA=4, sB=8, sO=12, s_m0=26, s_n0=27, s_tmp=28,
              epi=epi_gemm1("qk"))
    gemm(a, c1)
    tl_end(a)
    a("s_endpgm")
    a.label(lv)
    a("s_sub_u32 s27, s2, 144")
    a("s_and_b32 s26, s27, 15")
    a("s_lshl_b32 s26, s26, 7")
    a("s_lshr_b32 s27, s27, 4")
    a("s_mul_i32 s27, s27, 96")
    a("s_add_u32 s27, s27, 1152")
    c2 = dict(wm=4, wn=1, tm=1, tn=3, lda=1152, ldb=3456, K=576, sA=4, sB=8, sO=12, s_m0=26, s_n0=27, s_tmp=28,
              epi=epi_gemm1("v"))
    gemm(a, c2)
    tl_end(a)
    a("s_endpgm")
    a.label(lprep)
    a("s_cmp_ge_u32 s2, 272")
    a("s_cbranch_scc1 %s" % lkg)
    a("s_sub_u32 s3, s2, 240")
    c3 = dict(s_wg=3)
    prep_role(a, c3)
    tl_end(a)
    a("s_endpgm")
    a.label(lkg)
    a("s_cmp_ge_u32 s2, 416")
    a("s_cbranch_scc1 %s" % lend)
    a("s_sub_u32 s3, s2, 272")
    c4 = dict(s_wg=3)
    kgen_role(a, c4)
    tl_end(a)
    a.label(lend)
    a("s_endpgm")
    cs = (c1, c2, c3, c4)
    return dict(name=name, grid=416, lds=max(c["lds_bytes"] for c in cs), vgprs=max(c["vgprs"] for c in cs))


def kernel_L2(a, name):
    kstart(a, name)
    tl_start(a)
    lend, lcv = a.newlabel("END"), a.newlabel("CONV")
    a("s_cmp_ge_u32 s2, 256")
    a("s_cbranch_scc1 %s" % lcv)
    a("s_load_dwordx2 s[24:25], s[0:1], 104")
    a("s_waitcnt lgkmcnt(0)")
    make_srd(a, 4, 24, 1728 * 4096, WS_QKVT)
    make_srd(a, 8, 24, 2048 * 1152, WS_O)
    a("s_and_b32 s26, s2, 7")
    a("s_lshr_b32 s27, s2, 3")
    a("s_and_b32 s27, s27, 3")
    a("s_lshl_b32 s27, s27, 3")
    a("s_add_u32 s26, s26, s27")
    a("s_lshr_b32 s27, s2, 5")
    a("s_lshl_b32 s27, s27, 8")
    c = dict(sW=4, sO=8, s_head=26, s_q0=27, s_tmp=28, prof=PROF)
    a("s_mul_i32 s30, s26, 18")
    a("s_add_u32 s30, s30, 576")
    attn_role(a, c)
    tl_end(a)
    a("s_endpgm")
    a.label(lcv)
    a("s_cmp_ge_u32 s2, 400")
    a("s_cbranch_scc1 %s" % lend)
    a("s_sub_u32 s3, s2, 256")
    c2 = dict(s_wg=3)
    conv_role(a, c2)
    tl_end(a)
    a.label(lend)
    a("s_endpgm")
    return dict(name=name, grid=400, lds=max(c["lds_bytes"], c2["lds_bytes"]), vgprs=max(c["vgprs"], c2["vgprs"]))


HEADER = open("gated_mix__mha_block__ssm_conv_s4d__prompt.s.ref").read().split("; @launch")[0]


def build(kfuncs):
    a = Asm()
    infos = []
    body = Asm()
    for f, nm in kfuncs:
        infos.append(f(body, nm))
    out = HEADER
    for k in infos:
        out += "; @launch kernel=%s grid=(%d,1,1) block=(256,1,1) lds=%d\n" % (k["name"], k["grid"], k["lds"])
    out += '.amdgcn_target "amdgcn-amd-amdhsa--gfx950"\n.text\n'
    out += body.text()
    out += '.section .rodata,"a"\n'
    for k in infos:
        v = (k["vgprs"] + 3) // 4 * 4
        out += ".p2align 6\n.amdhsa_kernel %s\n" % k["name"]
        out += "  .amdhsa_next_free_vgpr %d\n  .amdhsa_next_free_sgpr 102\n  .amdhsa_accum_offset %d\n" % (v, v)
        out += "  .amdhsa_group_segment_fixed_size 0\n  .amdhsa_kernarg_size 112\n  .amdhsa_user_sgpr_count 2\n"
        out += "  .amdhsa_user_sgpr_kernarg_segment_ptr 1\n  .amdhsa_system_sgpr_workgroup_id_x 1\n.end_amdhsa_kernel\n"
    return out


if __name__ == "__main__":
    path = sys.argv[1]
    mode = sys.argv[2] if len(sys.argv) > 2 else "all"
    if mode == "gemm1":
        s = build([(kernel_gemm1, "gemm1_kernel")])
    elif mode == "prep":
        s = build([(kernel_prep, "prep_kernel")])
    elif mode == "kgen":
        s = build([(kernel_kgen, "kgen_kernel")])
    elif mode == "conv":
        s = build([(kernel_prep, "prep_kernel"), (kernel_kgen, "kgen_kernel"), (kernel_conv, "conv_kernel")])
    elif mode == "six":
        s = build([(kernel_gemm1, "gemm1_kernel"), (kernel_prep, "prep_kernel"), (kernel_kgen, "kgen_kernel"), (kernel_attn, "attn_kernel"), (kernel_conv, "conv_kernel"), (kernel_gemm3, "gemm3_kernel")])
    elif mode == "all":
        s = build([(kernel_L1, "l1_kernel"), (kernel_L2, "l2_kernel"), (kernel_gemm3, "l3_kernel")])
    elif mode == "attn":
        s = build([(kernel_gemm1, "gemm1_kernel"), (kernel_attn, "attn_kernel")])
    open(path, "w").write(s)
```

```python
import sys, os
sys.path.insert(0, os.path.dirname(os.path.abspath(__file__)))
from fw import Asm, vr, sr, Alloc

WS_QKVT = 0
WS_O = 8 << 20
WS_XT = 12 << 20
WS_G = 16 << 20
WS_KR = 17 << 20
WS_BT = 20 << 20
KR_STRIDE = 4224

PROF = int(os.environ.get("PROF", "0"))
QSCALE = 0x3EAE1A3D
import struct
def f32bits(x):
    return struct.unpack("<I", struct.pack("<f", x))[0]
QSCALE = f32bits((18 ** -0.5) * 1.4426950408889634)


class VmQ:
    def __init__(self, asm, name):
        self.q = []
        self.asm = asm
        self.name = name

    def push(self, tag):
        self.q.append(tag)

    def wait(self, tag):
        idx = max(i for i, t in enumerate(self.q) if t == tag) if tag in self.q else -1
        if idx < 0:
            return
        n = len(self.q) - 1 - idx
        self.asm("s_waitcnt %s(%d)" % (self.name, n))
        self.q = self.q[idx + 1:]

    def wait_all(self):
        self.asm("s_waitcnt %s(0)" % self.name)
        self.q = []


def make_srd(a, s, ptr_s, size, off=0):
    if off:
        a("s_add_u32 s%d, s%d, 0x%x" % (s, ptr_s, off))
        a("s_addc_u32 s%d, s%d, 0" % (s + 1, ptr_s + 1))
    else:
        a("s_mov_b32 s%d, s%d" % (s, ptr_s))
        a("s_mov_b32 s%d, s%d" % (s + 1, ptr_s + 1))
    a("s_mov_b32 s%d, 0x%x" % (s + 2, size))
    a("s_mov_b32 s%d, 0x00020000" % (s + 3))


def div_small(a, vq, vrem, vc, d, vtmp):
    m = -(-(1 << 16) // d)
    for c in range(0, 1024):
        assert (c * m) >> 16 == c // d
    a("v_mul_u32_u24 %s, %d, %s" % (vr(vq), m, vr(vc)))
    a("v_lshrrev_b32 %s, 16, %s" % (vr(vq), vr(vq)))
    a("v_mul_u32_u24 %s, %d, %s" % (vr(vtmp), d, vr(vq)))
    a("v_sub_u32 %s, %s, %s" % (vr(vrem), vr(vc), vr(vtmp)))


def gemm(a, cfg):
    wm, wn, tm, tn = cfg["wm"], cfg["wn"], cfg["tm"], cfg["tn"]
    Mt, Nt = wm * tm * 32, wn * tn * 32
    lda, ldb, K = cfg["lda"], cfg["ldb"], cfg["K"]
    sA, sB = cfg["sA"], cfg["sB"]
    s_m0, s_n0 = cfg["s_m0"], cfg["s_n0"]
    st = cfg["s_tmp"]
    s_boff, s_mask = st, st + 2
    assert s_mask % 2 == 0
    KS = cfg.get("KS", 32)
    nk = KS // 16
    csh = (KS // 8).bit_length() - 1
    nst = K // KS
    P = int(os.environ.get("GP", cfg.get("P", 4)))
    SA = 2 * KS + 16
    SB = {128: 320, 96: 192, 64: 192}[Nt]
    bufsz = Mt * SA + KS * SB
    LB = Mt * SA
    cfg["lds_bytes"] = 3 * bufsz
    nchA = Mt * KS // 8
    cprB = Nt // 8
    nchB = KS * cprB
    nA = -(-nchA // 256)
    nB = -(-nchB // 256)
    al = Alloc(cfg.get("v_start", 1), cfg.get("v_limit", 256))
    vAg = [al.get() for _ in range(nA)]
    vAl = [al.get() for _ in range(nA)]
    vBg = [al.get() for _ in range(nB)]
    vBl = [al.get() for _ in range(nB)]
    vAf = al.get()
    vBf = al.get()
    vt0, vt1, vt2, vt3 = [al.get() for _ in range(4)]
    FA = [[al.get(4, 4) for _ in range(tm)] for _ in range(2)]
    FB = [[al.get(4, 4) for _ in range(tn)] for _ in range(2)]
    acc = [[al.get(16, 4) for _ in range(tn)] for _ in range(tm)]
    stg = [([al.get(4, 4) for _ in range(nA)], [al.get(4, 4) for _ in range(nB)]) for _ in range(P)]
    cfg["vgprs"] = al.hi

    a.comment("gemm address setup Mt=%d Nt=%d" % (Mt, Nt))
    for i in range(nA):
        a("v_lshrrev_b32 %s, %d, v0" % (vr(vt0), csh))
        if i:
            a("v_add_u32 %s, %d, %s" % (vr(vt0), (256 >> csh) * i, vr(vt0)))
        a("v_and_b32 %s, %d, v0" % (vr(vt1), KS // 8 - 1))
        a("v_lshlrev_b32 %s, 4, %s" % (vr(vt1), vr(vt1)))
        a("v_mul_u32_u24 %s, %d, %s" % (vr(vAl[i]), SA, vr(vt0)))
        a("v_add_u32 %s, %s, %s" % (vr(vAl[i]), vr(vAl[i]), vr(vt1)))
        a("v_add_u32 %s, %s, %s" % (vr(vt0), sr(s_m0), vr(vt0)))
        a("v_mul_u32_u24 %s, %d, %s" % (vr(vAg[i]), lda, vr(vt0)))
        a("v_add_u32 %s, %s, %s" % (vr(vAg[i]), vr(vAg[i]), vr(vt1)))
    for i in range(nB):
        a("v_add_u32 %s, %d, v0" % (vr(vt2), 256 * i))
        if cprB & (cprB - 1) == 0:
            sh = cprB.bit_length() - 1
            a("v_lshrrev_b32 %s, %d, %s" % (vr(vt0), sh, vr(vt2)))
            a("v_and_b32 %s, %d, %s" % (vr(vt1), cprB - 1, vr(vt2)))
        else:
            div_small(a, vt0, vt1, vt2, cprB, vt3)
        a("v_lshlrev_b32 %s, 4, %s" % (vr(vt1), vr(vt1)))
        a("v_mul_u32_u24 %s, %d, %s" % (vr(vBl[i]), SB, vr(vt0)))
        a("v_add_u32 %s, %s, %s" % (vr(vBl[i]), vr(vBl[i]), vr(vt1)))
        a("v_mul_u32_u24 %s, %d, %s" % (vr(vBg[i]), ldb, vr(vt0)))
        a("v_add_u32 %s, %s, %s" % (vr(vBg[i]), vr(vBg[i]), vr(vt1)))
        a("v_add_u32 %s, %s, %s" % (vr(vBg[i]), sr(s_n0), vr(vBg[i])))
        a("v_add_u32 %s, %s, %s" % (vr(vBg[i]), sr(s_n0), vr(vBg[i])))
    partB = (nchB % 256) != 0
    if partB:
        a("v_cmp_gt_u32 vcc, %d, v0" % (nchB % 256))
        a("s_mov_b64 %s, vcc" % sr(s_mask, 2))
    a("v_lshrrev_b32 %s, 6, v0" % vr(vt0))
    if wn == 2:
        a("v_lshrrev_b32 %s, 1, %s" % (vr(vt1), vr(vt0)))
        a("v_and_b32 %s, 1, %s" % (vr(vt0), vr(vt0)))
    else:
        a("v_mov_b32 %s, %s" % (vr(vt1), vr(vt0)))
        a("v_mov_b32 %s, 0" % vr(vt0))
    a("v_mul_u32_u24 %s, %d, %s" % (vr(vt1), tm * 32, vr(vt1)))
    a("v_and_b32 %s, 31, v0" % vr(vt2))
    a("v_add_u32 %s, %s, %s" % (vr(vt1), vr(vt1), vr(vt2)))
    a("v_mul_u32_u24 %s, %d, %s" % (vr(vAf), SA, vr(vt1)))
    a("v_bfe_u32 %s, v0, 5, 1" % vr(vt2))
    a("v_lshl_add_u32 %s, %s, 4, %s" % (vr(vAf), vr(vt2), vr(vAf)))
    a("v_bfe_u32 %s, v0, 2, 2" % vr(vt1))
    a("v_lshl_add_u32 %s, %s, 3, %s" % (vr(vt1), vr(vt2), vr(vt1)))
    a("v_mul_u32_u24 %s, %d, %s" % (vr(vBf), SB, vr(vt1)))
    a("v_mul_u32_u24 %s, %d, %s" % (vr(vt0), tn * 64, vr(vt0)))
    a("v_add_u32 %s, %s, %s" % (vr(vBf), vr(vBf), vr(vt0)))
    a("v_bfe_u32 %s, v0, 4, 1" % vr(vt0))
    a("v_lshl_add_u32 %s, %s, 5, %s" % (vr(vBf), vr(vt0), vr(vBf)))
    a("v_and_b32 %s, 3, v0" % vr(vt0))
    a("v_lshl_add_u32 %s, %s, 3, %s" % (vr(vBf), vr(vt0), vr(vBf)))
    a("v_add_u32 %s, %d, %s" % (vr(vBf), LB, vr(vBf)))

    vm = VmQ(a, "vmcnt")
    lg = VmQ(a, "lgkmcnt")

    def issue_loads(s):
        A_, B_ = stg[s % P]
        for i in range(nA):
            a("buffer_load_dwordx4 %s, %s, %s, 0 offen offset:%d" % (vr(A_[i], 4), vr(vAg[i]), sr(sA, 4), 2 * KS * s))
            vm.push(("ld", s))
        a("s_mov_b32 %s, 0x%x" % (sr(s_boff), KS * s * ldb))
        for i in range(nB):
            last_part = partB and i == nB - 1
            if last_part:
                a("s_mov_b64 exec, %s" % sr(s_mask, 2))
            a("buffer_load_dwordx4 %s, %s, %s, %s offen" % (vr(B_[i], 4), vr(vBg[i]), sr(sB, 4), sr(s_boff)))
            vm.push(("ld", s))
            if last_part:
                a("s_mov_b64 exec, -1")

    def write_lds(s):
        A_, B_ = stg[s % P]
        base = (s % 3) * bufsz
        vm.wait(("ld", s))
        for i in range(nA):
            a("ds_write_b128 %s, %s offset:%d" % (vr(vAl[i]), vr(A_[i], 4), base))
            lg.push(("wr", s))
        for i in range(nB):
            last_part = partB and i == nB - 1
            if last_part:
                a("s_mov_b64 exec, %s" % sr(s_mask, 2))
            a("ds_write_b128 %s, %s offset:%d" % (vr(vBl[i]), vr(B_[i], 4), base + LB))
            lg.push(("wr", s))
            if last_part:
                a("s_mov_b64 exec, -1")

    def read_frags(s, kk):
        base = (s % 3) * bufsz
        for t in range(tm):
            a("ds_read_b128 %s, %s offset:%d" % (vr(FA[kk & 1][t], 4), vr(vAf), base + t * 32 * SA + kk * 32))
            lg.push(("fr", s, kk))
        for t in range(tn):
            for hf in range(2):
                a("ds_read_b64_tr_b16 %s, %s offset:%d" % (vr(FB[kk & 1][t] + 2 * hf, 2), vr(vBf),
                                                           base + (kk * 16 + 4 * hf) * SB + t * 64))
                lg.push(("fr", s, kk))

    def mfmas(s, kk):
        lg.wait(("fr", s, kk))
        for ti in range(tm):
            for tj in range(tn):
                c = "0" if (s == 0 and kk == 0) else vr(acc[ti][tj], 16)
                a("v_mfma_f32_32x32x16_bf16 %s, %s, %s, %s" % (vr(acc[ti][tj], 16), vr(FA[kk & 1][ti], 4), vr(FB[kk & 1][tj], 4), c))

    if PROF:
        a("s_memtime s[40:41]")
    if cfg.get("pre"):
        cfg["pre"](a, dict(cfg=cfg, vt=[vt0, vt1, vt2, vt3], tm=tm, tn=tn, wm=wm, wn=wn, al=al))
        cfg["vgprs"] = al.hi
    for s in range(P):
        issue_loads(s)
    write_lds(0)
    issue_loads(P) if P < nst else None
    lg.wait_all()
    a("s_barrier")
    if PROF:
        a("s_memtime s[42:43]")
    read_frags(0, 0)
    for s in range(nst):
        if s + 1 < nst:
            write_lds(s + 1)
            if s + 1 + P < nst:
                issue_loads(s + 1 + P)
        for kk in range(nk - 1):
            read_frags(s, kk + 1)
            mfmas(s, kk)
        if s + 1 < nst:
            lg.wait_all()
            a("s_barrier")
            read_frags(s + 1, 0)
        mfmas(s, nk - 1)
    if PROF:
        a("s_memtime s[44:45]")
    ctx = dict(cfg=cfg, acc=acc, vt=[vt0, vt1, vt2, vt3], tm=tm, tn=tn, wm=wm, wn=wn, al=al,
               free=[r for st_ in stg for r in st_[0] + st_[1]])
    cfg["epi"](a, ctx)
    if PROF:
        a("s_waitcnt vmcnt(0)")
        a("s_memtime s[46:47]")
        a("s_load_dwordx2 s[48:49], s[0:1], 96")
        a("s_waitcnt lgkmcnt(0)")
        a("s_mov_b32 s50, 256")
        a("s_mov_b32 s51, 0x00020000")
        a("v_lshlrev_b32 %s, 4, s2" % vr(vt1))
        a("v_cmp_eq_u32 vcc, 0, v0")
        a("s_and_saveexec_b64 s[52:53], vcc")
        for i, r in enumerate((40, 42, 44, 46)):
            a("v_mov_b32 %s, s%d" % (vr(vt0), r))
            a("buffer_store_dword %s, %s, s[48:51], 0 offen offset:%d" % (vr(vt0), vr(vt1), 4 * i))
        a("s_mov_b64 exec, s[52:53]")


def epi_gemm1(kind):
    def epi(a, ctx):
        cfg = ctx["cfg"]
        tm, tn, wn = ctx["tm"], ctx["tn"], ctx["wn"]
        vt0, vt1, vt2, vt3 = ctx["vt"]
        acc = ctx["acc"]
        sO = cfg["sO"]
        s_m0, s_n0 = cfg["s_m0"], cfg["s_n0"]
        st = cfg["s_tmp"]
        a("v_lshrrev_b32 %s, 6, v0" % vr(vt0))
        if wn == 2:
            a("v_lshrrev_b32 %s, 1, %s" % (vr(vt1), vr(vt0)))
            a("v_and_b32 %s, 1, %s" % (vr(vt0), vr(vt0)))
        else:
            a("v_mov_b32 %s, %s" % (vr(vt1), vr(vt0)))
            a("v_mov_b32 %s, 0" % vr(vt0))
        a("v_mul_u32_u24 %s, %d, %s" % (vr(vt0), tn * 32, vr(vt0)))
        a("v_and_b32 %s, 31, v0" % vr(vt2))
        a("v_add3_u32 %s, %s, %s, %s" % (vr(vt0), vr(vt0), vr(vt2), sr(s_n0)))
        if kind == "qk":
            a("v_readfirstlane_b32 %s, %s" % (sr(st), vr(vt0)))
            a("s_cmp_lt_u32 %s, 576" % sr(st))
            a("s_cselect_b32 %s, 0x%x, 1.0" % (sr(st), QSCALE))
        a("v_lshlrev_b32 %s, 12, %s" % (vr(vt0), vr(vt0)))
        a("v_mul_u32_u24 %s, %d, %s" % (vr(vt1), tm * 32, vr(vt1)))
        a("v_bfe_u32 %s, v0, 5, 1" % vr(vt2))
        a("v_lshl_add_u32 %s, %s, %d, %s" % (vr(vt1), vr(vt2), 2 if kind == "qk" else 3, vr(vt1)))
        a("v_add_u32 %s, %s, %s" % (vr(vt1), sr(s_m0), vr(vt1)))
        a("v_lshl_add_u32 %s, %s, 1, %s" % (vr(vt0), vr(vt1), vr(vt0)))
        for ti in range(tm):
            for tj in range(tn):
                A = acc[ti][tj]
                if kind == "qk":
                    for r in range(16):
                        a("v_mul_f32 %s, %s, %s" % (vr(A + r), sr(st), vr(A + r)))
                for p in range(8):
                    a("v_cvt_pk_bf16_f32 %s, %s, %s" % (vr(A + p), vr(A + 2 * p), vr(A + 2 * p + 1)))
                a("s_mov_b32 %s, 0x%x" % (sr(st + 1), tj * 32 * 4096))
                if kind == "qk":
                    for i in range(4):
                        a("buffer_store_dwordx2 %s, %s, %s, %s offen offset:%d" % (vr(A + 2 * i, 2), vr(vt0), sr(sO, 4), sr(st + 1), ti * 64 + 16 * i))
                else:
                    for m in range(2):
                        a("buffer_store_dwordx4 %s, %s, %s, %s offen offset:%d" % (vr(A + 4 * m, 4), vr(vt0), sr(sO, 4), sr(st + 1), ti * 64 + 32 * m))
    return epi


def kernel_gemm1(a, name):
    a.raw(".globl %s" % name)
    a.raw(".p2align 8")
    a.raw(".type %s,@function" % name)
    a.label(name)
    lend = a.newlabel("END")
    lv = a.newlabel("VPART")
    a("s_cmp_ge_u32 s2, 240")
    a("s_cbranch_scc1 %s" % lend)
    a("s_load_dwordx4 s[20:23], s[0:1], 0")
    a("s_load_dwordx2 s[24:25], s[0:1], 104")
    a("s_waitcnt lgkmcnt(0)")
    make_srd(a, 4, 20, 2048 * 1152)
    make_srd(a, 8, 22, 576 * 3456)
    make_srd(a, 12, 24, 1728 * 4096, WS_QKVT)
    a("s_cmp_ge_u32 s2, 144")
    a("s_cbranch_scc1 %s" % lv)
    a("s_and_b32 s26, s2, 15")
    a("s_lshl_b32 s26, s26, 7")
    a("s_lshr_b32 s27, s2, 4")
    a("s_lshl_b32 s27, s27, 7")
    c1 = dict(wm=2, wn=2, tm=2, tn=2, lda=1152, ldb=3456, K=576, sA=4, sB=8, sO=12, s_m0=26, s_n0=27, s_tmp=28,
              epi=epi_gemm1("qk"))
    gemm(a, c1)
    a("s_endpgm")
    a.label(lv)
    a("s_sub_u32 s27, s2, 144")
    a("s_and_b32 s26, s27, 15")
    a("s_lshl_b32 s26, s26, 7")
    a("s_lshr_b32 s27, s27, 4")
    a("s_mul_i32 s27, s27, 96")
    a("s_add_u32 s27, s27, 1152")
    c2 = dict(wm=4, wn=1, tm=1, tn=3, lda=1152, ldb=3456, K=576, sA=4, sB=8, sO=12, s_m0=26, s_n0=27, s_tmp=28,
              epi=epi_gemm1("v"))
    gemm(a, c2)
    a.label(lend)
    a("s_endpgm")
    return dict(name=name, grid=240, lds=max(c1["lds_bytes"], c2["lds_bytes"]), vgprs=max(c1["vgprs"], c2["vgprs"]))


SK, SV = 320, 272
K_IMG, V_IMG = 0, 20 * 320
ABUF = 20 * 320 + 20 * 272
ONES = 0x3F803F80


def attn_role(a, cfg):
    sW, sO = cfg["sW"], cfg["sO"]
    s_head, s_qb = cfg["s_head"], cfg["s_q0"]
    st = cfg["s_tmp"]
    s_goff, s_cnt, s_r0 = st, st + 1, st + 2
    s_hm = st + 4
    s_m16 = st + 6
    al = Alloc(1, 256)
    vK1, vK2, vV = al.get(), al.get(), al.get()
    sg = [al.get() for _ in range(3)]
    sl = [al.get() for _ in range(3)]
    vt = [al.get() for _ in range(6)]
    vOa = al.get()
    stg = [al.get(4, 4) for _ in range(3)]
    QB1 = [al.get(4, 4) for _ in range(2)]
    QB2 = [al.get(4, 4) for _ in range(2)]
    KA1 = [al.get(4, 4) for _ in range(2)]
    KA2 = [al.get(4, 4) for _ in range(2)]
    VF = [[al.get(4, 4) for _ in range(2)] for _ in range(2)]
    S = [[al.get(16, 4) for _ in range(2)] for _ in range(2)]
    Pp = [al.get(8, 4) for _ in range(2)]
    O = [al.get(16, 4) for _ in range(2)]
    cfg["vgprs"] = al.hi
    cfg["lds_bytes"] = 4 * ABUF
    t0, t1, t2, t3, t4, t5 = vt
    lg = VmQ(a, "lgkmcnt")

    a("v_lshrrev_b32 %s, 6, v0" % vr(t0))
    a("v_and_b32 %s, 1, %s" % (vr(t1), vr(t0)))
    a("v_lshrrev_b32 %s, 1, %s" % (vr(t2), vr(t0)))
    a("v_bfe_u32 %s, v0, 4, 2" % vr(t3))
    a("v_mad_u32_u24 %s, %s, 9, %s" % (vr(t3), vr(t1), vr(t3)))
    a("v_and_b32 %s, 15, v0" % vr(t4))
    a("v_lshlrev_b32 %s, 4, %s" % (vr(t4), vr(t4)))
    a("v_mul_u32_u24 %s, %d, %s" % (vr(t5), SK - SV, vr(t2)))
    a("v_sub_u32 %s, %d, %s" % (vr(t5), SK, vr(t5)))
    a("v_mul_u32_u24 %s, %d, %s" % (vr(t0), V_IMG, vr(t2)))
    a("v_add_u32 %s, %s, %s" % (vr(t0), vr(t0), vr(t4)))
    a("v_mul_u32_u24 %s, 576, %s" % (vr(t2), vr(t2)))
    a("v_add_u32 %s, %s, %s" % (vr(t2), sr(s_r0), vr(t2)))
    for i in range(3):
        a("v_add_u32 %s, %d, %s" % (vr(t1), 4 * i, vr(t3)))
        a("v_mul_u32_u24 %s, %s, %s" % (vr(sl[i]), vr(t1), vr(t5)))
        a("v_add_u32 %s, %s, %s" % (vr(sl[i]), vr(sl[i]), vr(t0)))
        a("v_add_u32 %s, %s, %s" % (vr(sg[i]), vr(t1), vr(t2)))
        a("v_lshlrev_b32 %s, 12, %s" % (vr(sg[i]), vr(sg[i])))
        a("v_add_u32 %s, %s, %s" % (vr(sg[i]), vr(sg[i]), vr(t4)))
    a("v_bfe_u32 %s, v0, 5, 1" % vr(t0))
    a("v_bfe_u32 %s, v0, 2, 2" % vr(t1))
    a("v_bfe_u32 %s, v0, 4, 1" % vr(t2))
    a("v_and_b32 %s, 3, v0" % vr(t3))
    a("v_lshlrev_b32 %s, 3, %s" % (vr(t3), vr(t3)))
    a("v_lshl_add_u32 %s, %s, 5, %s" % (vr(t3), vr(t2), vr(t3)))
    a("v_lshl_add_u32 %s, %s, 3, %s" % (vr(t4), vr(t0), vr(t1)))
    a("v_mul_u32_u24 %s, %d, %s" % (vr(vK1), SK, vr(t4)))
    a("v_add_u32 %s, %s, %s" % (vr(vK1), vr(vK1), vr(t3)))
    a("v_add_u32 %s, 16, %s" % (vr(t4), vr(t1)))
    a("v_mul_u32_u24 %s, %d, %s" % (vr(vK2), SK, vr(t4)))
    a("v_add_u32 %s, %s, %s" % (vr(vK2), vr(vK2), vr(t3)))
    a("v_and_b32 %s, 31, v0" % vr(t4))
    a("v_min_u32 %s, 19, %s" % (vr(t4), vr(t4)))
    a("v_mul_u32_u24 %s, %d, %s" % (vr(vV), SV, vr(t4)))
    a("v_lshl_add_u32 %s, %s, 4, %s" % (vr(vV), vr(t0), vr(vV)))
    a("v_add_u32 %s, %d, %s" % (vr(vV), V_IMG, vr(vV)))
    a("v_cmp_eq_u32 vcc, 0, %s" % vr(t0))
    a("s_mov_b64 %s, vcc" % sr(s_hm, 2))
    a("v_and_b32 %s, 63, v0" % vr(t1))
    a("v_cmp_gt_u32 vcc, 16, %s" % vr(t1))
    a("s_mov_b64 %s, vcc" % sr(s_m16, 2))

    def ld_chunk():
        for i in range(3):
            if i == 2:
                a("s_mov_b64 exec, %s" % sr(s_m16, 2))
            a("buffer_load_dwordx4 %s, %s, %s, %s offen" % (vr(stg[i], 4), vr(sg[i]), sr(sW, 4), sr(s_goff)))
            if i == 2:
                a("s_mov_b64 exec, -1")
        a("s_add_u32 %s, %s, 256" % (sr(s_goff), sr(s_goff)))

    def wr_chunk(buf):
        a("s_waitcnt vmcnt(0)")
        for i in range(3):
            if i == 2:
                a("s_mov_b64 exec, %s" % sr(s_m16, 2))
            a("ds_write_b128 %s, %s offset:%d" % (vr(sl[i]), vr(stg[i], 4), buf * ABUF))
            lg.push("wr")
            if i == 2:
                a("s_mov_b64 exec, -1")

    def rd_k(tile, par):
        buf, kt = (tile // 4) % 4, tile % 4
        off = buf * ABUF + K_IMG + kt * 64
        a("ds_read_b64_tr_b16 %s, %s offset:%d" % (vr(KA1[par], 2), vr(vK1), off)); lg.push(("k", par))
        a("ds_read_b64_tr_b16 %s, %s offset:%d" % (vr(KA1[par] + 2, 2), vr(vK1), off + 4 * SK)); lg.push(("k", par))
        a("ds_read_b64_tr_b16 %s, %s offset:%d" % (vr(KA2[par], 2), vr(vK2), off)); lg.push(("k", par))

    def rd_v(tile, par):
        buf, kt = (tile // 4) % 4, tile % 4
        off = buf * ABUF + kt * 64
        for m in range(2):
            a("ds_read_b128 %s, %s offset:%d" % (vr(VF[par][m], 4), vr(vV), off + 32 * m)); lg.push(("v", par))

    s_mode = st + 8
    lp1, lpass2, lfall, lstore, lskipm = [a.newlabel(x) for x in ("AP1", "APASS2", "AFALL", "ASTORE", "ASKIPM")]
    a("s_mov_b32 %s, 0" % sr(s_mode))
    a("s_mov_b32 %s, 0" % sr(s_goff))
    ld_chunk()
    a("v_lshrrev_b32 %s, 6, v0" % vr(t1))
    a("v_lshlrev_b32 %s, 6, %s" % (vr(t1), vr(t1)))
    a("v_and_b32 %s, 31, v0" % vr(t2))
    a("v_add3_u32 %s, %s, %s, %s" % (vr(t1), vr(t1), vr(t2), sr(s_qb)))
    a("v_mul_u32_u24 %s, 1152, %s" % (vr(vOa), vr(t1)))
    a("v_lshlrev_b32 %s, 1, %s" % (vr(t1), vr(t1)))
    a("v_lshl_add_u32 %s, %s, 15, %s" % (vr(t2), vr(t0), vr(t1)))
    a("s_sub_u32 %s, %s, 576" % (sr(s_cnt), sr(s_r0)))
    a("s_lshl_b32 %s, %s, 12" % (sr(s_cnt), sr(s_cnt)))
    QT = [S[0][1], S[1][1]]
    for qt in range(2):
        for j in range(8):
            a("s_add_u32 %s, %s, %d" % (sr(st + 3), sr(s_cnt), j * 4096 + qt * 64))
            a("buffer_load_ushort %s, %s, %s, %s offen" % (vr(QT[qt] + j), vr(t2), sr(sW, 4), sr(st + 3)))
        for j in range(2):
            a("s_add_u32 %s, %s, %d" % (sr(st + 3), sr(s_cnt), (16 + j) * 4096 + qt * 64))
            a("buffer_load_ushort %s, %s, %s, %s offen" % (vr(QT[qt] + 8 + j), vr(t1), sr(sW, 4), sr(st + 3)))
        for r in range(1, 4):
            a("v_mov_b32 %s, 0" % vr(QB2[qt] + r))
    for p_ in range(2):
        a("v_mov_b32 %s, 0" % vr(KA2[p_] + 2))
        a("v_mov_b32 %s, 0" % vr(KA2[p_] + 3))
    a("v_bfe_u32 %s, v0, 4, 2" % vr(t3))
    a("v_lshrrev_b32 %s, 1, %s" % (vr(t4), vr(t3)))
    a("v_and_b32 %s, 1, %s" % (vr(t3), vr(t3)))
    a("v_add_u32 %s, 18, %s" % (vr(t5), vr(t3)))
    a("v_mul_u32_u24 %s, %d, %s" % (vr(t2), SK, vr(t5)))
    a("v_mul_u32_u24 %s, %d, %s" % (vr(t5), SV, vr(t5)))
    a("v_add_u32 %s, %d, %s" % (vr(t5), V_IMG, vr(t5)))
    a("v_cmp_eq_u32 vcc, 1, %s" % vr(t4))
    a("v_cndmask_b32 %s, %s, %s, vcc" % (vr(t2), vr(t2), vr(t5)))
    a("v_and_b32 %s, 15, v0" % vr(t5))
    a("v_lshl_add_u32 %s, %s, 4, %s" % (vr(t2), vr(t5), vr(t2)))
    a("v_lshrrev_b32 %s, 6, v0" % vr(t5))
    a("v_mul_u32_u24 %s, %d, %s" % (vr(t5), ABUF, vr(t5)))
    a("v_add_u32 %s, %s, %s" % (vr(t2), vr(t2), vr(t5)))
    a("v_and_b32 %s, %s, %s" % (vr(t3), vr(t3), vr(t4)))
    a("v_cmp_eq_u32 vcc, 0, %s" % vr(t3))
    a("v_mov_b32 %s, 0x%x" % (vr(t3), ONES))
    a("v_cndmask_b32 %s, 0, %s, vcc" % (vr(t3), vr(t3)))
    a("v_mov_b32 %s, %s" % (vr(S[0][0]), vr(t3)))
    a("v_mov_b32 %s, %s" % (vr(S[0][0] + 1), vr(t3)))
    a("v_mov_b32 %s, %s" % (vr(S[0][0] + 2), vr(t3)))
    a("v_mov_b32 %s, %s" % (vr(S[0][0] + 3), vr(t3)))
    a("ds_write_b128 %s, %s" % (vr(t2), vr(S[0][0], 4)))
    wr_chunk(0)
    ld_chunk()
    for qt in range(2):
        for j in range(4):
            a("v_lshl_or_b32 %s, %s, 16, %s" % (vr(QB1[qt] + j), vr(QT[qt] + 2 * j + 1), vr(QT[qt] + 2 * j)))
        a("v_lshl_or_b32 %s, %s, 16, %s" % (vr(QB2[qt]), vr(QT[qt] + 9), vr(QT[qt] + 8)))
        a("v_cndmask_b32 %s, 0, %s, %s" % (vr(QB2[qt]), vr(QB2[qt]), sr(s_hm, 2)))
    a.flush()
    a("s_branch %s" % lp1)
    a.label(lpass2)
    a("s_mov_b32 %s, 0" % sr(s_goff))
    ld_chunk()
    wr_chunk(0)
    ld_chunk()
    a.label(lp1)
    a("s_waitcnt lgkmcnt(0)")
    lg.q = []
    a("s_barrier")
    rd_k(0, 0)
    rd_k(1, 1)
    lg.wait(("k", 0))
    a("s_cmp_lg_u32 %s, 0" % sr(s_mode))
    a("s_cbranch_scc1 %s" % lskipm)
    for qt in range(2):
        Sx = S[qt][0]
        a("v_mfma_f32_32x32x16_bf16 %s, %s, %s, 0" % (vr(Sx, 16), vr(KA1[0], 4), vr(QB1[qt], 4)))
        a("v_mfma_f32_32x32x16_bf16 %s, %s, %s, %s" % (vr(Sx, 16), vr(KA2[0], 4), vr(QB2[qt], 4), vr(Sx, 16)))
    for qt in range(2):
        Sx = S[qt][0]
        a("v_max3_f32 %s, %s, %s, %s" % (vr(t0), vr(Sx), vr(Sx + 1), vr(Sx + 2)))
        for r in range(3, 15, 2):
            a("v_max3_f32 %s, %s, %s, %s" % (vr(t0), vr(t0), vr(Sx + r), vr(Sx + r + 1)))
        a("v_max_f32 %s, %s, %s" % (vr(t0), vr(t0), vr(Sx + 15)))
        a("v_mov_b32 %s, %s" % (vr(t1), vr(t0)))
        a("v_permlane32_swap_b32 %s, %s" % (vr(t0), vr(t1)))
        a("v_max_f32 %s, %s, %s" % (vr(t0), vr(t0), vr(t1)))
        set_m(a, QB2[qt] + 1, t0, t1, t2, s_hm)
    a.flush()
    a.label(lskipm)
    for qt in range(2):
        Sx = S[qt][0]
        a("v_mfma_f32_32x32x16_bf16 %s, %s, %s, 0" % (vr(Sx, 16), vr(KA1[0], 4), vr(QB1[qt], 4)))
        a("v_mfma_f32_32x32x16_bf16 %s, %s, %s, %s" % (vr(Sx, 16), vr(KA2[0], 4), vr(QB2[qt], 4), vr(Sx, 16)))
    for qt in range(2):
        for r in range(16):
            a("v_mov_b32 %s, 0" % vr(O[qt] + r))
    for r in range(8):
        a("v_mov_b32 %s, 0" % vr(Pp[1] + r))
    for m in range(2):
        for r in range(4):
            a("v_mov_b32 %s, 0" % vr(VF[1][m] + r))
    a("s_mov_b32 %s, 0" % sr(s_cnt))
    assert lg.q == [("k", 1)] * 3, lg.q

    def half_e(Sb, r0, Pb, p0, mf):
        e = lambda r: a("v_exp_f32 %s, %s" % (vr(Sb + r), vr(Sb + r)))
        c = lambda k: a("v_cvt_pk_bf16_f32 %s, %s, %s" % (vr(Pb + p0 + k), vr(Sb + r0 + 2 * k), vr(Sb + r0 + 2 * k + 1)))
        VAR = os.environ.get("AVAR", "")
        if "m" in VAR:
            mf = ["s_nop 0", "s_nop 0"]
        if "e" in VAR:
            e = lambda r: None
        if "c" in VAR:
            c = lambda k: None
        a(mf[0])
        e(r0); e(r0 + 1); e(r0 + 2); e(r0 + 3); c(0)
        a(mf[1])
        e(r0 + 4); c(1); e(r0 + 5); e(r0 + 6); e(r0 + 7); c(2); c(3)

    if cfg.get("prof"):
        a("s_memtime s[40:41]")
        a("s_memrealtime s[50:51]")
        a("s_waitcnt lgkmcnt(0)")
    lloop = a.newlabel("ALOOP")
    a.flush()
    a.label(lloop)
    for t in range(16):
        par = t & 1
        kt = t % 4
        buf = (t // 4) % 4
        if kt == 0:
            wr_chunk((buf + 1) % 4)
            ld_chunk()
        rd_v(t, par)
        half_e(S[0][par], 0, Pp[0], 0,
               ["v_mfma_f32_32x32x16_bf16 %s, %s, %s, %s" % (vr(O[1], 16), vr(VF[1 - par][m], 4), vr(Pp[1] + 4 * m, 4), vr(O[1], 16)) for m in range(2)])
        lg.wait(("k", 1 - par))
        Sn = S[0][1 - par]
        half_e(S[0][par], 8, Pp[0], 4,
               ["v_mfma_f32_32x32x16_bf16 %s, %s, %s, 0" % (vr(Sn, 16), vr(KA1[1 - par], 4), vr(QB1[0], 4)),
                "v_mfma_f32_32x32x16_bf16 %s, %s, %s, %s" % (vr(Sn, 16), vr(KA2[1 - par], 4), vr(QB2[0], 4), vr(Sn, 16))])
        rd_k(t + 2, par)
        lg.wait(("v", par))
        half_e(S[1][par], 0, Pp[1], 0,
               ["v_mfma_f32_32x32x16_bf16 %s, %s, %s, %s" % (vr(O[0], 16), vr(VF[par][m], 4), vr(Pp[0] + 4 * m, 4), vr(O[0], 16)) for m in range(2)])
        Sn = S[1][1 - par]
        half_e(S[1][par], 8, Pp[1], 4,
               ["v_mfma_f32_32x32x16_bf16 %s, %s, %s, 0" % (vr(Sn, 16), vr(KA1[1 - par], 4), vr(QB1[1], 4)),
                "v_mfma_f32_32x32x16_bf16 %s, %s, %s, %s" % (vr(Sn, 16), vr(KA2[1 - par], 4), vr(QB2[1], 4), vr(Sn, 16))])
        if kt == 1:
            lg.wait("wr")
            a("s_barrier")
    assert lg.q == [("k", 1)] * 3, lg.q
    a("s_add_u32 %s, %s, 1" % (sr(s_cnt), sr(s_cnt)))
    a("s_cmp_lt_u32 %s, 4" % sr(s_cnt))
    a.flush()
    a("s_cbranch_scc1 %s" % lloop)
    if cfg.get("prof"):
        a("s_memtime s[42:43]")
        a("s_memrealtime s[52:53]")
        a("s_load_dwordx2 s[44:45], s[0:1], 96")
        a("s_waitcnt lgkmcnt(0)")
        a("s_sub_u32 s42, s42, s40")
        a("s_sub_u32 s52, s52, s50")
        a("s_mov_b32 s46, 256")
        a("s_mov_b32 s47, 0x00020000")
        a("v_mov_b32 %s, s42" % vr(t0))
        a("v_lshlrev_b32 %s, 2, s2" % vr(t1))
        a("v_cmp_eq_u32 vcc, 0, v0")
        a("s_and_saveexec_b64 s[48:49], vcc")
        a("buffer_store_dword %s, %s, s[44:47], 0 offen" % (vr(t0), vr(t1)))
        a("v_mov_b32 %s, s52" % vr(t0))
        a("buffer_store_dword %s, %s, s[44:47], 0 offen offset:128" % (vr(t0), vr(t1)))
        a("s_mov_b64 exec, s[48:49]")
    for m in range(2):
        a("v_mfma_f32_32x32x16_bf16 %s, %s, %s, %s" % (vr(O[1], 16), vr(VF[1][m], 4), vr(Pp[1] + 4 * m, 4), vr(O[1], 16)))
    a("s_waitcnt vmcnt(0) lgkmcnt(0)")
    a("s_cmp_lg_u32 %s, 0" % sr(s_mode))
    a("s_cbranch_scc1 %s" % lstore)
    a("s_mov_b64 %s, 0" % sr(st + 10, 2))
    for qt in range(2):
        Ox = O[qt]
        a("v_mul_f32 %s, 0, %s" % (vr(t0), vr(Ox)))
        for r in range(1, 11):
            a("v_fma_f32 %s, %s, 0, %s" % (vr(t0), vr(Ox + r), vr(t0)))
        a("v_cmp_eq_f32 vcc, 0, %s" % vr(t0))
        a("s_andn2_b64 %s, exec, vcc" % sr(st + 12, 2))
        a("s_or_b64 %s, %s, %s" % (sr(st + 10, 2), sr(st + 10, 2), sr(st + 12, 2)))
        a("v_mov_b32 %s, 0x%x" % (vr(t1), 0xff800000 if os.environ.get("AFORCE") else 0x71800000))
        a("v_cmp_lt_f32 vcc, %s, %s" % (vr(Ox + 10), vr(t1)))
        a("s_andn2_b64 %s, exec, vcc" % sr(st + 12, 2))
        a("s_or_b64 %s, %s, %s" % (sr(st + 10, 2), sr(st + 10, 2), sr(st + 12, 2)))
    a("s_cmp_lg_u64 %s, 0" % sr(st + 10, 2))
    a("s_cselect_b32 %s, 1, 0" % sr(st + 10))
    a("v_mov_b32 %s, %s" % (vr(t0), sr(st + 10)))
    a("v_lshrrev_b32 %s, 6, v0" % vr(t1))
    a("v_lshlrev_b32 %s, 2, %s" % (vr(t1), vr(t1)))
    a("ds_write_b32 %s, %s offset:256" % (vr(t1), vr(t0)))
    a("s_waitcnt lgkmcnt(0)")
    a("s_barrier")
    a("v_mov_b32 %s, 0" % vr(t1))
    a("ds_read_b128 %s, %s offset:256" % (vr(S[0][0], 4), vr(t1)))
    a("s_waitcnt lgkmcnt(0)")
    a("v_or_b32 %s, %s, %s" % (vr(t0), vr(S[0][0]), vr(S[0][0] + 1)))
    a("v_or3_b32 %s, %s, %s, %s" % (vr(t0), vr(t0), vr(S[0][0] + 2), vr(S[0][0] + 3)))
    a("v_readfirstlane_b32 %s, %s" % (sr(st + 10), vr(t0)))
    a("s_cmp_lg_u32 %s, 0" % sr(st + 10))
    a("s_cbranch_scc1 %s" % lfall)
    a.flush()
    a.label(lstore)
    a("v_bfe_u32 %s, v0, 5, 1" % vr(t0))
    a("v_lshl_add_u32 %s, %s, 3, %s" % (vr(vOa), vr(t0), vr(vOa)))
    a("s_mul_i32 %s, %s, 36" % (sr(st + 3), sr(s_head)))
    for qt in range(2):
        Ox = O[qt]
        a("v_mov_b32 %s, %s" % (vr(t1), vr(Ox + 10)))
        a("v_mov_b32 %s, %s" % (vr(t2), vr(Ox + 10)))
        a("v_permlane32_swap_b32 %s, %s" % (vr(t1), vr(t2)))
        a("v_rcp_f32 %s, %s" % (vr(t1), vr(t1)))
        for r in range(10):
            a("v_mul_f32 %s, %s, %s" % (vr(Ox + r), vr(t1), vr(Ox + r)))
        for p_ in range(5):
            a("v_cvt_pk_bf16_f32 %s, %s, %s" % (vr(Ox + p_), vr(Ox + 2 * p_), vr(Ox + 2 * p_ + 1)))
        a("buffer_store_dwordx2 %s, %s, %s, %s offen" % (vr(Ox, 2), vr(vOa), sr(sO, 4), sr(st + 3)))
        a("buffer_store_dwordx2 %s, %s, %s, %s offen offset:16" % (vr(Ox + 2, 2), vr(vOa), sr(sO, 4), sr(st + 3)))
        a("s_mov_b64 exec, %s" % sr(s_hm, 2))
        a("buffer_store_dword %s, %s, %s, %s offen offset:32" % (vr(Ox + 4), vr(vOa), sr(sO, 4), sr(st + 3)))
        a("s_mov_b64 exec, -1")
        a("s_add_u32 %s, %s, %d" % (sr(st + 3), sr(st + 3), 32 * 1152))
    tl_end(a)
    a("s_endpgm")
    a.label(lfall)
    lg = VmQ(a, "lgkmcnt")
    a("s_barrier")
    for qt in range(2):
        a("v_mov_b32 %s, 0" % vr(QB2[qt] + 1))
        a("v_mov_b32 %s, 0xff800000" % vr(O[qt]))
    a("s_mov_b32 %s, 0" % sr(s_goff))
    ld_chunk()
    wr_chunk(0)
    ld_chunk()
    a("s_waitcnt lgkmcnt(0)")
    lg.q = []
    a("s_barrier")
    rd_k(0, 0)
    rd_k(1, 1)
    a("s_mov_b32 %s, 0" % sr(s_cnt))
    lml = a.newlabel("AMAX")
    a.flush()
    a.label(lml)
    for t in range(16):
        par, kt, buf = t & 1, t % 4, (t // 4) % 4
        if kt == 0:
            wr_chunk((buf + 1) % 4)
            ld_chunk()
        lg.wait(("k", par))
        for qt in range(2):
            Sx = S[qt][0]
            a("v_mfma_f32_32x32x16_bf16 %s, %s, %s, 0" % (vr(Sx, 16), vr(KA1[par], 4), vr(QB1[qt], 4)))
            a("v_mfma_f32_32x32x16_bf16 %s, %s, %s, %s" % (vr(Sx, 16), vr(KA2[par], 4), vr(QB2[qt], 4), vr(Sx, 16)))
        for qt in range(2):
            Sx = S[qt][0]
            for r in range(0, 16, 2):
                a("v_max3_f32 %s, %s, %s, %s" % (vr(O[qt]), vr(O[qt]), vr(Sx + r), vr(Sx + r + 1)))
        rd_k(t + 2, par)
        if kt == 1:
            lg.wait("wr")
            a("s_barrier")
    a("s_add_u32 %s, %s, 1" % (sr(s_cnt), sr(s_cnt)))
    a("s_cmp_lt_u32 %s, 4" % sr(s_cnt))
    a.flush()
    a("s_cbranch_scc1 %s" % lml)
    a("s_waitcnt vmcnt(0) lgkmcnt(0)")
    for qt in range(2):
        a("v_mov_b32 %s, %s" % (vr(t0), vr(O[qt])))
        a("v_mov_b32 %s, %s" % (vr(t1), vr(O[qt])))
        a("v_permlane32_swap_b32 %s, %s" % (vr(t0), vr(t1)))
        a("v_max_f32 %s, %s, %s" % (vr(t0), vr(t0), vr(t1)))
        set_m(a, QB2[qt] + 1, t0, t1, t2, s_hm)
    a("s_mov_b32 %s, 1" % sr(s_mode))
    a("s_barrier")
    a.flush()
    a("s_branch %s" % lpass2)


def set_m(a, dst, vM, t1, t2, s_hm):
    a("v_cvt_pk_bf16_f32 %s, %s, %s" % (vr(t1), vr(vM), vr(vM)))
    a("v_lshlrev_b32 %s, 16, %s" % (vr(t1), vr(t1)))
    a("v_sub_f32 %s, %s, %s" % (vr(t2), vr(vM), vr(t1)))
    a("v_cvt_pk_bf16_f32 %s, -%s, -%s" % (vr(t2), vr(t1), vr(t2)))
    a("v_cndmask_b32 %s, 0, %s, %s" % (vr(dst), vr(t2), sr(s_hm, 2)))


def kernel_attn(a, name):
    a.raw(".globl %s" % name)
    a.raw(".p2align 8")
    a.raw(".type %s,@function" % name)
    a.label(name)
    lend = a.newlabel("END")
    a("s_cmp_ge_u32 s2, 256")
    a("s_cbranch_scc1 %s" % lend)
    a("s_load_dwordx2 s[24:25], s[0:1], 104")
    a("s_waitcnt lgkmcnt(0)")
    make_srd(a, 4, 24, 1728 * 4096, WS_QKVT)
    make_srd(a, 8, 24, 2048 * 1152, WS_O)
    a("s_and_b32 s26, s2, 7")
    a("s_lshr_b32 s27, s2, 3")
    a("s_and_b32 s27, s27, 3")
    a("s_lshl_b32 s27, s27, 3")
    a("s_add_u32 s26, s26, s27")
    a("s_lshr_b32 s27, s2, 5")
    a("s_lshl_b32 s27, s27, 8")
    c = dict(sW=4, sO=8, s_head=26, s_q0=27, s_tmp=28, prof=PROF)
    a("s_mul_i32 s30, s26, 18")
    a("s_add_u32 s30, s30, 576")
    attn_role(a, c)
    a.label(lend)
    a("s_endpgm")
    return dict(name=name, grid=256, lds=c["lds_bytes"], vgprs=c["vgprs"])


def prep_role(a, cfg):
    s_wg = cfg["s_wg"]
    a("s_load_dwordx2 s[20:21], s[0:1], 0")
    a("s_load_dwordx2 s[22:23], s[0:1], 80")
    a("s_load_dwordx2 s[24:25], s[0:1], 104")
    a("v_lshrrev_b32 v1, 6, v0")
    a("v_readfirstlane_b32 s26, v1")
    a("s_waitcnt lgkmcnt(0)")
    make_srd(a, 4, 20, 2048 * 1152)
    make_srd(a, 8, 24, 576 * 4096, WS_XT)
    make_srd(a, 12, 24, 8192, WS_G)
    a("s_mul_i32 s27, s26, 288")
    a("s_add_u32 s22, s22, s27")
    a("s_addc_u32 s23, s23, 0")
    for i in range(9):
        a("s_load_dwordx8 s[%d:%d], s[22:23], %d" % (28 + 8 * i, 35 + 8 * i, 32 * i))
    a("v_and_b32 v1, 63, v0")
    a("s_lshl_b32 s16, %s, 6" % sr(s_wg))
    a("v_add_u32 v1, s16, v1")
    a("v_mul_u32_u24 v2, 1152, v1")
    a("v_add_u32 v2, s27, v2")
    for i in range(18):
        a("buffer_load_dwordx4 v[%d:%d], v2, s[4:7], 0 offen offset:%d" % (16 + 4 * i, 19 + 4 * i, 16 * i))
    a("s_mul_i32 s17, s26, %d" % (144 * 4096))
    a("v_lshlrev_b32 v3, 1, v1")
    a("v_add_u32 v3, s17, v3")
    a("v_mov_b32 v4, 0")
    a("s_waitcnt lgkmcnt(0)")
    for r in range(72):
        if r % 4 == 0:
            a("s_waitcnt vmcnt(%d)" % (17 - r // 4))
        x = 16 + r
        a("s_mov_b32 s18, 0x%x" % (2 * r * 4096))
        a("buffer_store_short v%d, v3, s[8:11], s18 offen" % x)
        a("s_mov_b32 s19, 0x%x" % ((2 * r + 1) * 4096))
        a("buffer_store_short_d16_hi v%d, v3, s[8:11], s19 offen" % x)
        a("v_lshlrev_b32 v5, 16, v%d" % x)
        a("v_and_b32 v6, 0xffff0000, v%d" % x)
        a("s_lshl_b32 s18, s%d, 16" % (28 + r))
        a("s_and_b32 s19, s%d, 0xffff0000" % (28 + r))
        a("v_mul_f32 v5, s18, v5")
        a("v_mul_f32 v6, s19, v6")
        a("v_cvt_pk_bf16_f32 v7, v5, v6")
        a("v_lshlrev_b32 v5, 16, v7")
        a("v_and_b32 v6, 0xffff0000, v7")
        a("v_add_f32 v4, v4, v5")
        a("v_add_f32 v4, v4, v6")
    a("v_lshlrev_b32 v5, 2, v0")
    a("ds_write_b32 v5, v4")
    a("s_waitcnt lgkmcnt(0)")
    a("s_barrier")
    lskip = a.newlabel("PREPX")
    a("s_cmp_lg_u32 s26, 0")
    a("s_cbranch_scc1 %s" % lskip)
    a("ds_read_b32 v6, v5")
    a("ds_read_b32 v7, v5 offset:256")
    a("ds_read_b32 v8, v5 offset:512")
    a("ds_read_b32 v9, v5 offset:768")
    a("s_waitcnt lgkmcnt(0)")
    a("v_add_f32 v6, v6, v7")
    a("v_add_f32 v8, v8, v9")
    a("v_add_f32 v6, v6, v8")
    a("v_cvt_pk_bf16_f32 v6, v6, v6")
    a("v_and_b32 v6, 0xffff0000, v6")
    a("v_mul_f32 v6, 0xbfb8aa3b, v6")
    a("v_exp_f32 v6, v6")
    a("v_add_f32 v6, 1.0, v6")
    a("v_rcp_f32 v6, v6")
    a("v_cvt_pk_bf16_f32 v6, v6, v6")
    a("v_and_b32 v6, 0xffff0000, v6")
    a("v_lshlrev_b32 v7, 2, v1")
    a("buffer_store_dword v6, v7, s[12:15], 0 offen")
    a.label(lskip)
    a("s_waitcnt vmcnt(0)")
    cfg["vgprs"] = 88
    cfg["lds_bytes"] = 1024


def kernel_prep(a, name):
    a.raw(".globl %s" % name)
    a.raw(".p2align 8")
    a.raw(".type %s,@function" % name)
    a.label(name)
    lend = a.newlabel("END")
    a("s_cmp_ge_u32 s2, 32")
    a("s_cbranch_scc1 %s" % lend)
    c = dict(s_wg=2)
    prep_role(a, c)
    a.label(lend)
    a("s_endpgm")
    return dict(name=name, grid=32, lds=c["lds_bytes"], vgprs=c["vgprs"])


def hi_rows():
    rows = []
    for c in range(2):
        for r in range(8):
            rows.append(128 * c + r)
    for c in (2, 3):
        for r in (0, 2, 4, 6):
            rows.append(128 * c + r)
    for c in (4, 5, 6, 7):
        for r in (0, 4):
            rows.append(128 * c + r)
    for c in range(8, 16):
        rows.append(128 * c)
    rows.append(2048)
    while len(rows) < 48:
        rows.append(0)
    return rows


LOG2E = f32bits(1.4426950408889634)
INV2PI = f32bits(0.15915494309189535)


def kgen_role(a, cfg):
    s_wg = cfg["s_wg"]
    if os.environ.get("KPRIO"):
        a("s_setprio %s" % os.environ["KPRIO"])
    a("s_load_dwordx8 s[20:27], s[0:1], 32")
    a("s_load_dwordx2 s[28:29], s[0:1], 64")
    a("s_load_dwordx2 s[30:31], s[0:1], 104")
    a("v_lshrrev_b32 v3, 6, v0")
    a("v_readfirstlane_b32 s40, v3")
    a("s_lshl_b32 s41, %s, 2" % sr(s_wg))
    a("s_add_u32 s41, s41, s40")
    a("s_waitcnt lgkmcnt(0)")
    for i in range(4):
        make_srd(a, 4 + 4 * i, 20 + 2 * i, 576 * 256)
    a("s_lshr_b32 s32, s41, 1")
    a("s_lshl_b32 s32, s32, 2")
    a("s_load_dword s33, s[28:29], s32")
    a("v_and_b32 v1, 15, v0")
    a("v_bfe_u32 v2, v0, 4, 2")
    a("v_and_b32 v13, 63, v0")
    a("v_lshlrev_b32 v4, 2, v13")
    a("s_lshl_b32 s34, s41, 8")
    a("v_add_u32 v4, s34, v4")
    X, Y = 64, 80
    for i in range(4):
        a("buffer_load_dword v%d, v4, s[%d:%d], 0 offen" % (Y + i, 4 + 4 * i, 7 + 4 * i))
    a("v_lshrrev_b32 v5, 3, v1")
    a("v_lshlrev_b32 v5, 7, v5")
    a("v_and_b32 v6, 7, v1")
    a("v_add_u32 v5, v5, v6")
    a("v_cvt_f32_u32 v8, v5")
    a("v_lshrrev_b32 v5, 2, v1")
    a("v_add_u32 v5, 2, v5")
    a("v_lshlrev_b32 v5, 7, v5")
    a("v_and_b32 v6, 3, v1")
    a("v_lshl_add_u32 v5, v6, 1, v5")
    a("v_lshrrev_b32 v6, 1, v1")
    a("v_lshlrev_b32 v6, 7, v6")
    a("v_and_b32 v7, 1, v1")
    a("v_lshl_add_u32 v6, v7, 2, v6")
    a("v_cmp_gt_u32 vcc, 8, v1")
    a("v_cndmask_b32 v5, v6, v5, vcc")
    a("v_cvt_f32_u32 v9, v5")
    a("v_add_u32 v5, 8, v1")
    a("v_lshlrev_b32 v5, 7, v5")
    a("v_cmp_ge_u32 vcc, 8, v1")
    a("v_cndmask_b32 v5, 0, v5, vcc")
    a("v_cvt_f32_u32 v10, v5")
    a("v_lshlrev_b32 v5, 3, v1")
    a("v_cvt_f32_u32 v11, v5")
    for mt in range(3):
        for i in range(4):
            a("v_mov_b32 v%d, 0" % (48 + 4 * mt + i))
    a("s_waitcnt lgkmcnt(0)")
    a("s_and_b32 s35, s41, 1")
    a("s_lshl_b32 s36, s33, 16")
    a("s_and_b32 s37, s33, 0xffff0000")
    a("s_cmp_eq_u32 s35, 0")
    a("s_cselect_b32 s36, s36, s37")
    a("v_mov_b32 v12, 0x%x" % LOG2E)
    a("v_mul_f32 v12, s36, v12")
    a("v_exp_f32 v12, v12")
    a("v_cvt_pk_bf16_f32 v12, v12, v12")
    a("v_lshlrev_b32 v12, 16, v12")

    def cexp(p, o, P):
        a("v_mul_f32 v%d, v%d, %s" % (o, P, p))
        a("v_mul_f32 v%d, v%d, %s" % (o + 1, P + 1, p))
        a("v_exp_f32 v%d, v%d" % (o, o))
        a("v_fract_f32 v%d, v%d" % (o + 1, o + 1))
        a("v_sin_f32 v%d, v%d" % (o + 2, o + 1))
        a("v_cos_f32 v%d, v%d" % (o + 1, o + 1))

    a("s_waitcnt vmcnt(0)")
    for h in range(2):
        def unpack(dst, r):
            if h:
                a("v_and_b32 %s, 0xffff0000, v%d" % (dst, r))
            else:
                a("v_lshlrev_b32 %s, 16, v%d" % (dst, r))
        o = 64 + 4 * h
        unpack("v%d" % o, Y)
        unpack("v%d" % (o + 1), Y + 1)
        unpack("v%d" % (o + 2), Y + 2)
        unpack("v%d" % (o + 3), Y + 3)
        a("v_mul_f32 v%d, 0x%x, v%d" % (o, LOG2E, o))
        a("v_mul_f32 v%d, v%d, v12" % (o + 1, o + 1))
        a("v_exp_f32 v%d, v%d" % (o, o))
        a("v_mul_f32 v%d, 0x%x, v%d" % (o + 1, INV2PI, o + 1))
        a("v_mul_f32 v%d, v%d, v12" % (o + 2, o + 2))
        a("v_mul_f32 v%d, v%d, v12" % (o + 3, o + 3))
        a("v_cvt_pk_bf16_f32 v%d, v%d, v%d" % (o, o, o))
        a("v_lshlrev_b32 v%d, 16, v%d" % (o, o))
        a("v_mul_f32 v%d, v%d, v12" % (o, o))
        a("v_mul_f32 v%d, 0x%x, v%d" % (o, LOG2E | 0x80000000, o))
    a("s_lshl_b32 s43, s40, 11")
    a("s_add_u32 s43, s43, 12288")
    a("v_lshl_add_u32 v4, v13, 5, s43")
    a("ds_write_b128 v4, v[64:67]")
    a("ds_write_b128 v4, v[68:71] offset:16")
    a("v_lshl_add_u32 v4, v2, 9, s43")
    a("s_mov_b32 s43, 0")
    a("s_waitcnt lgkmcnt(0)")
    lk = a.newlabel("KLOOP")
    a.flush()
    a.label(lk)
    for i in range(8):
        a("ds_read_b128 v[%d:%d], v4 offset:%d" % (64 + 4 * i, 67 + 4 * i, 16 * i))
    a("v_add_u32 v4, 128, v4")
    a("s_add_u32 s43, s43, 16")
    for st_ in range(8):
        a("s_waitcnt lgkmcnt(%d)" % (7 - st_))
        P = 64 + 4 * st_
        cexp("v11", 32, P)
        for mt in range(3):
            cexp("v%d" % (8 + mt), 20 + 4 * mt, P)
        a("v_mul_f32 v44, v%d, v33" % (P + 2))
        a("v_fma_f32 v44, -v%d, v34, v44" % (P + 3))
        a("v_mul_f32 v44, v44, v32")
        a("v_mul_f32 v45, v%d, v34" % (P + 2))
        a("v_fma_f32 v45, v%d, v33, v45" % (P + 3))
        a("v_mul_f32 v45, -v45, v32")
        for mt in range(3):
            o = 20 + 4 * mt
            a("v_mul_f32 v%d, v%d, v%d" % (o + 1, o, o + 1))
            a("v_mul_f32 v%d, v%d, v%d" % (o + 2, o, o + 2))
        for mt in range(3):
            o = 20 + 4 * mt
            D = "v[%d:%d]" % (48 + 4 * mt, 51 + 4 * mt)
            a("v_mfma_f32_16x16x4_f32 %s, v%d, v44, %s" % (D, o + 1, D))
            a("v_mfma_f32_16x16x4_f32 %s, v%d, v45, %s" % (D, o + 2, D))
    a("s_cmp_lt_u32 s43, 64")
    a.flush()
    a("s_cbranch_scc1 %s" % lk)
    a("s_mul_i32 s42, s40, 3072")
    a("v_lshlrev_b32 v5, 8, v2")
    a("v_lshl_add_u32 v5, v1, 2, v5")
    a("v_add_u32 v5, s42, v5")
    for mt in range(3):
        for i in range(4):
            a("v_mul_f32 v%d, 2.0, v%d" % (48 + 4 * mt + i, 48 + 4 * mt + i))
            a("ds_write_b32 v5, v%d offset:%d" % (48 + 4 * mt + i, (16 * mt + i) * 64))
    a("v_and_b32 v13, 63, v0")
    a("v_lshlrev_b32 v5, 3, v13")
    a("v_sub_u32 v5, 2047, v5")
    make_srd(a, 4, 30, 576 * KR_STRIDE, WS_KR)
    a("s_mul_i32 s34, s41, %d" % KR_STRIDE)
    a("s_add_u32 s44, s34, 4096")
    a("v_lshlrev_b32 v14, 4, v13")
    a("s_waitcnt vmcnt(0) lgkmcnt(0)")
    le = a.newlabel("KEXP")
    a.flush()
    a.label(le)
    for e in range(8):
        a("v_subrev_u32 v20, %d, v5" % e)
        a("v_cvt_f32_u32 v20, v20")
        a("v_cvt_pk_bf16_f32 v20, v20, v20")
        a("v_lshlrev_b32 v20, 16, v20")
        a("v_cvt_u32_f32 v20, v20")
        a("v_or_b32 v23, 1, v20")
        a("v_ffbh_u32 v23, v23")
        a("v_sub_u32 v23, 24, v23")
        a("v_med3_i32 v23, v23, 0, 3")
        a("v_lshrrev_b32 v21, 7, v20")
        a("v_and_b32 v22, 7, v20")
        a("v_lshrrev_b32 v22, v23, v22")
        a("v_sub_u32 v24, 3, v23")
        a("v_lshlrev_b32 v21, v24, v21")
        a("v_lshl_add_u32 v21, v23, 3, v21")
        a("v_add_u32 v21, v21, v22")
        a("v_bfe_u32 v22, v20, 3, 4")
        a("v_lshl_add_u32 v21, v21, 4, v22")
        a("v_lshl_add_u32 v21, v21, 2, s42")
        a("ds_read_b32 v%d, v21" % (64 + e))
    a("v_subrev_u32 v5, 512, v5")
    a("s_waitcnt lgkmcnt(0)")
    for e in range(4):
        a("v_cvt_pk_bf16_f32 v%d, v%d, v%d" % (72 + e, 64 + 2 * e, 65 + 2 * e))
    a("buffer_store_dwordx4 v[72:75], v14, s[4:7], s34 offen")
    a("s_add_u32 s34, s34, 1024")
    a("s_cmp_lt_u32 s34, s44")
    a.flush()
    a("s_cbranch_scc1 %s" % le)
    a("v_mov_b32 v40, 0")
    a("v_mov_b32 v41, 0")
    a("v_mov_b32 v42, 0")
    a("v_mov_b32 v43, 0")
    a("v_cmp_gt_u32 vcc, 8, v13")
    a("s_and_saveexec_b64 s[38:39], vcc")
    a("buffer_store_dwordx4 v[40:43], v14, s[4:7], s34 offen")
    a("s_mov_b64 exec, s[38:39]")
    a("s_waitcnt vmcnt(0)")
    cfg["vgprs"] = 96
    cfg["lds_bytes"] = 20480


def kgen_role2(a, cfg):
    s_wg = cfg["s_wg"]
    a("s_load_dwordx8 s[20:27], s[0:1], 32")
    a("s_load_dwordx2 s[28:29], s[0:1], 64")
    a("s_load_dwordx2 s[30:31], s[0:1], 104")
    a("v_lshrrev_b32 v3, 6, v0")
    a("v_readfirstlane_b32 s40, v3")
    a("s_lshr_b32 s43, s40, 1")
    a("s_and_b32 s44, s40, 1")
    a("s_lshl_b32 s41, %s, 1" % sr(s_wg))
    a("s_add_u32 s41, s41, s43")
    a("s_waitcnt lgkmcnt(0)")
    for i in range(4):
        make_srd(a, 4 + 4 * i, 20 + 2 * i, 576 * 256)
    a("s_lshr_b32 s32, s41, 1")
    a("s_lshl_b32 s32, s32, 2")
    a("s_load_dword s33, s[28:29], s32")
    a("v_and_b32 v1, 15, v0")
    a("v_bfe_u32 v2, v0, 4, 2")
    a("v_lshlrev_b32 v4, 6, v2")
    a("s_lshl_b32 s34, s41, 8")
    a("s_lshl_b32 s45, s44, 5")
    a("s_add_u32 s34, s34, s45")
    a("v_add_u32 v4, s34, v4")
    IN = 64
    for q in range(2):
        for i in range(4):
            a("buffer_load_dwordx4 v[%d:%d], v4, s[%d:%d], 0 offen offset:%d" % (IN + 8 * i + 4 * q, IN + 8 * i + 4 * q + 3, 4 + 4 * i, 7 + 4 * i, 16 * q))
    a("v_lshrrev_b32 v5, 3, v1")
    a("v_lshlrev_b32 v5, 7, v5")
    a("v_and_b32 v6, 7, v1")
    a("v_add_u32 v5, v5, v6")
    a("v_cvt_f32_u32 v8, v5")
    a("v_lshrrev_b32 v5, 2, v1")
    a("v_add_u32 v5, 2, v5")
    a("v_lshlrev_b32 v5, 7, v5")
    a("v_and_b32 v6, 3, v1")
    a("v_lshl_add_u32 v5, v6, 1, v5")
    a("v_lshrrev_b32 v6, 1, v1")
    a("v_lshlrev_b32 v6, 7, v6")
    a("v_and_b32 v7, 1, v1")
    a("v_lshl_add_u32 v6, v7, 2, v6")
    a("v_cmp_gt_u32 vcc, 8, v1")
    a("v_cndmask_b32 v5, v6, v5, vcc")
    a("v_cvt_f32_u32 v9, v5")
    a("v_add_u32 v5, 8, v1")
    a("v_lshlrev_b32 v5, 7, v5")
    a("v_cmp_ge_u32 vcc, 8, v1")
    a("v_cndmask_b32 v5, 0, v5, vcc")
    a("v_cvt_f32_u32 v10, v5")
    a("v_lshlrev_b32 v5, 3, v1")
    a("v_cvt_f32_u32 v11, v5")
    for mt in range(3):
        for i in range(4):
            a("v_mov_b32 v%d, 0" % (48 + 4 * mt + i))
    a("s_waitcnt lgkmcnt(0)")
    a("s_and_b32 s35, s41, 1")
    a("s_lshl_b32 s36, s33, 16")
    a("s_and_b32 s37, s33, 0xffff0000")
    a("s_cmp_eq_u32 s35, 0")
    a("s_cselect_b32 s36, s36, s37")
    a("v_mov_b32 v12, 0x%x" % LOG2E)
    a("v_mul_f32 v12, s36, v12")
    a("v_exp_f32 v12, v12")
    a("v_cvt_pk_bf16_f32 v12, v12, v12")
    a("v_lshlrev_b32 v12, 16, v12")

    def cexp(p, o):
        a("v_mul_f32 v%d, v40, %s" % (o, p))
        a("v_mul_f32 v%d, v41, %s" % (o + 1, p))
        a("v_exp_f32 v%d, v%d" % (o, o))
        a("v_fract_f32 v%d, v%d" % (o + 1, o + 1))
        a("v_sin_f32 v%d, v%d" % (o + 2, o + 1))
        a("v_cos_f32 v%d, v%d" % (o + 1, o + 1))

    for st_ in range(16):
        if st_ % 8 == 0:
            a("s_waitcnt vmcnt(%d)" % (4 if st_ == 0 else 0))

        def unpack(dst, base):
            r = base + st_ // 2
            if st_ & 1:
                a("v_and_b32 %s, 0xffff0000, v%d" % (dst, r))
            else:
                a("v_lshlrev_b32 %s, 16, v%d" % (dst, r))
        unpack("v40", IN)
        unpack("v41", IN + 8)
        unpack("v42", IN + 16)
        unpack("v43", IN + 24)
        a("v_mul_f32 v40, 0x%x, v40" % LOG2E)
        a("v_mul_f32 v41, v41, v12")
        a("v_exp_f32 v40, v40")
        a("v_mul_f32 v41, 0x%x, v41" % INV2PI)
        a("v_mul_f32 v42, v42, v12")
        a("v_mul_f32 v43, v43, v12")
        a("v_cvt_pk_bf16_f32 v40, v40, v40")
        a("v_lshlrev_b32 v40, 16, v40")
        a("v_mul_f32 v40, v40, v12")
        a("v_mul_f32 v40, 0x%x, v40" % (LOG2E | 0x80000000))
        cexp("v11", 32)
        for mt in range(3):
            cexp("v%d" % (8 + mt), 20 + 4 * mt)
        a("v_mul_f32 v44, v42, v33")
        a("v_fma_f32 v44, -v43, v34, v44")
        a("v_mul_f32 v44, v44, v32")
        a("v_mul_f32 v45, v42, v34")
        a("v_fma_f32 v45, v43, v33, v45")
        a("v_mul_f32 v45, -v45, v32")
        for mt in range(3):
            o = 20 + 4 * mt
            a("v_mul_f32 v%d, v%d, v%d" % (o + 1, o, o + 1))
            a("v_mul_f32 v%d, v%d, v%d" % (o + 2, o, o + 2))
        for mt in range(3):
            o = 20 + 4 * mt
            D = "v[%d:%d]" % (48 + 4 * mt, 51 + 4 * mt)
            a("v_mfma_f32_16x16x4_f32 %s, v%d, v44, %s" % (D, o + 1, D))
            a("v_mfma_f32_16x16x4_f32 %s, v%d, v45, %s" % (D, o + 2, D))
    a("s_mul_i32 s42, s40, 3072")
    a("v_lshlrev_b32 v5, 8, v2")
    a("v_lshl_add_u32 v5, v1, 2, v5")
    a("v_add_u32 v6, s42, v5")
    for mt in range(3):
        for i in range(4):
            a("ds_write_b32 v6, v%d offset:%d" % (48 + 4 * mt + i, (16 * mt + i) * 64))
    a("v_and_b32 v13, 63, v0")
    a("v_lshlrev_b32 v7, 3, v13")
    a("s_lshl_b32 s45, s44, 10")
    a("v_sub_u32 v7, 2047, v7")
    a("v_subrev_u32 v7, s45, v7")
    make_srd(a, 4, 30, 576 * KR_STRIDE, WS_KR)
    a("s_mul_i32 s34, s41, %d" % KR_STRIDE)
    a("s_lshl_b32 s45, s44, 11")
    a("s_add_u32 s34, s34, s45")
    a("v_lshlrev_b32 v14, 4, v13")
    a("s_add_u32 s46, s42, %d" % (4 * 3072))
    for it in range(2):
        for e in range(8):
            a("v_subrev_u32 v20, %d, v7" % (e + 512 * it))
            a("v_cvt_f32_u32 v20, v20")
            a("v_cvt_pk_bf16_f32 v20, v20, v20")
            a("v_lshlrev_b32 v20, 16, v20")
            a("v_cvt_u32_f32 v20, v20")
            a("v_or_b32 v23, 1, v20")
            a("v_ffbh_u32 v23, v23")
            a("v_sub_u32 v23, 24, v23")
            a("v_med3_i32 v23, v23, 0, 3")
            a("v_lshrrev_b32 v21, 7, v20")
            a("v_and_b32 v22, 7, v20")
            a("v_lshrrev_b32 v22, v23, v22")
            a("v_sub_u32 v24, 3, v23")
            a("v_lshlrev_b32 v21, v24, v21")
            a("v_lshl_add_u32 v21, v23, 3, v21")
            a("v_add_u32 v21, v21, v22")
            a("v_bfe_u32 v22, v20, 3, 4")
            a("v_lshl_add_u32 v21, v21, 4, v22")
            a("v_lshl_add_u32 v%d, v21, 2, s46" % (96 + 8 * it + e))
    a("s_waitcnt lgkmcnt(0)")
    a("s_barrier")
    a("s_xor_b32 s47, s42, 3072")
    a("s_cmp_lt_u32 s40, 2")
    a("s_cselect_b32 s47, s47, s47")
    a("s_xor_b32 s48, s40, 1")
    a("s_mul_i32 s47, s48, 3072")
    a("v_add_u32 v6, s47, v5")
    for mt in range(3):
        for i in range(4):
            a("ds_read_b32 v%d, v6 offset:%d" % (64 + 4 * mt + i, (16 * mt + i) * 64))
    a("v_add_u32 v6, s46, v5")
    a("s_waitcnt lgkmcnt(0)")
    for mt in range(3):
        for i in range(4):
            a("v_add_f32 v%d, v%d, v%d" % (48 + 4 * mt + i, 48 + 4 * mt + i, 64 + 4 * mt + i))
            a("v_mul_f32 v%d, 2.0, v%d" % (48 + 4 * mt + i, 48 + 4 * mt + i))
            a("ds_write_b32 v6, v%d offset:%d" % (48 + 4 * mt + i, (16 * mt + i) * 64))
    a("s_waitcnt lgkmcnt(0)")
    for it in range(2):
        for e in range(8):
            a("ds_read_b32 v%d, v%d" % (64 + 8 * it + e, 96 + 8 * it + e))
    for it in range(2):
        a("s_waitcnt lgkmcnt(%d)" % (8 if it == 0 else 0))
        for e in range(4):
            a("v_cvt_pk_bf16_f32 v%d, v%d, v%d" % (112 + 4 * it + e, 64 + 8 * it + 2 * e, 65 + 8 * it + 2 * e))
        a("buffer_store_dwordx4 v[%d:%d], v14, s[4:7], s34 offen offset:%d" % (112 + 4 * it, 115 + 4 * it, 1024 * it))
    a("s_cmp_lg_u32 s44, 0")
    lsk = a.newlabel("KGSK")
    a("s_cbranch_scc1 %s" % lsk)
    a("v_mov_b32 v40, 0")
    a("v_mov_b32 v41, 0")
    a("v_mov_b32 v42, 0")
    a("v_mov_b32 v43, 0")
    a("s_add_u32 s34, s34, 4096")
    a("v_cmp_gt_u32 vcc, 8, v13")
    a("s_and_saveexec_b64 s[38:39], vcc")
    a("buffer_store_dwordx4 v[40:43], v14, s[4:7], s34 offen")
    a("s_mov_b64 exec, s[38:39]")
    a.flush()
    a.label(lsk)
    a("s_waitcnt vmcnt(0)")
    cfg["vgprs"] = 128
    cfg["lds_bytes"] = 8 * 3072


def kernel_kgen(a, name):
    a.raw(".globl %s" % name)
    a.raw(".p2align 8")
    a.raw(".type %s,@function" % name)
    a.label(name)
    lend = a.newlabel("END")
    a("s_cmp_ge_u32 s2, 144")
    a("s_cbranch_scc1 %s" % lend)
    c = dict(s_wg=2)
    kgen_role(a, c)
    a.label(lend)
    a("s_endpgm")
    return dict(name=name, grid=288, lds=c["lds_bytes"], vgprs=c["vgprs"])


CU_ROW = 144
CU_SZ = 33 * CU_ROW
KC = 1312
CW = CU_SZ + 8 * KC


def conv_role(a, cfg):
    s_wg = cfg["s_wg"]
    a("s_load_dwordx2 s[22:23], s[0:1], 72")
    a("s_load_dwordx2 s[24:25], s[0:1], 104")
    a("v_lshrrev_b32 v1, 6, v0")
    a("v_readfirstlane_b32 s26, v1")
    a("s_lshl_b32 s27, %s, 2" % sr(s_wg))
    a("s_add_u32 s27, s27, s26")
    a("s_waitcnt lgkmcnt(0)")
    make_srd(a, 4, 24, 576 * KR_STRIDE, WS_KR)
    make_srd(a, 8, 24, 576 * 4096, WS_XT)
    make_srd(a, 12, 24, 576 * 4096, WS_BT)
    a("s_lshr_b32 s28, s27, 1")
    a("s_lshl_b32 s28, s28, 2")
    a("s_load_dword s29, s[22:23], s28")
    a("s_mul_i32 s30, s27, %d" % KR_STRIDE)
    a("s_lshl_b32 s31, s27, 12")
    a("s_mul_i32 s32, s26, %d" % CW)
    a("v_and_b32 v2, 63, v0")
    a("v_lshlrev_b32 v3, 4, v2")
    SG = 120
    a("v_and_b32 v5, 7, v2")
    a("v_lshlrev_b32 v5, 4, v5")
    a("v_lshrrev_b32 v4, 3, v2")
    a("v_lshl_add_u32 v13, v4, 1, v5")
    a("v_mul_u32_u24 v14, %d, v4" % KC)
    a("v_add3_u32 v14, v14, v5, s32")

    def ld_win(w):
        a("s_add_u32 s33, s30, %d" % (2 * (1536 - 512 * w)))
        for k in range(9):
            a("buffer_load_dwordx4 %s, v13, s[4:7], s33 offen offset:%d" % (vr(SG + 4 * k, 4), 128 * k))

    def wr_win():
        for k in range(9):
            a("ds_write_b128 v14, %s offset:%d" % (vr(SG + 4 * k, 4), CU_SZ + 128 * k))

    for k in range(4):
        a("buffer_load_dwordx4 v[%d:%d], v3, s[8:11], s31 offen offset:%d" % (16 + 4 * k, 19 + 4 * k, 1024 * k))
    ld_win(0)
    a("v_cmp_gt_u32 vcc, 8, v2")
    a("s_mov_b64 s[34:35], vcc")
    a("v_mul_u32_u24 v4, %d, v4" % CU_ROW)
    a("v_add3_u32 v4, v4, v5, s32")
    for r in range(4):
        a("v_mov_b32 v%d, 0" % (56 + r))
    a("s_mov_b64 exec, s[34:35]")
    a("ds_write_b128 v4, v[56:59]")
    a("s_mov_b64 exec, -1")
    a("v_and_b32 v6, 31, v2")
    a("v_bfe_u32 v7, v2, 5, 1")
    a("v_and_b32 v8, 7, v6")
    a("v_sub_u32 v8, 7, v8")
    a("v_mul_u32_u24 v8, %d, v8" % KC)
    a("v_lshrrev_b32 v9, 3, v6")
    a("v_sub_u32 v9, v7, v9")
    a("v_lshl_add_u32 v8, v9, 4, v8")
    a("v_add_u32 v8, s32, v8")
    a("v_add_u32 v8, %d, v8" % (CU_SZ + 48))
    a("v_lshlrev_b32 v10, 4, v7")
    a("v_add_u32 v10, s32, v10")
    a("v_mul_u32_u24 v9, %d, v6" % CU_ROW)
    a("v_add_u32 v9, v9, v10")
    a("v_add_u32 v9, %d, v9" % CU_ROW)
    a("s_waitcnt vmcnt(9)")
    for k in range(4):
        a("ds_write_b128 v4, v[%d:%d] offset:%d" % (16 + 4 * k, 19 + 4 * k, CU_ROW + 8 * CU_ROW * k))
    a("s_waitcnt vmcnt(0)")
    wr_win()
    ld_win(1)
    RING = 10
    F0 = 16
    B0 = 56
    AC = 88
    lg = VmQ(a, "lgkmcnt")
    fr = lambda m: vr(F0 + 4 * (m % RING), 4)
    br = lambda par, s_: vr(B0 + 16 * par + 4 * s_, 4)

    def rd_delta(d):
        w = d // 8
        if d > 0:
            a("v_subrev_u32 v9, %d, v9" % CU_ROW)
        a("v_max_i32 v11, v9, v10")
        if d % 8 == 0 and d > 0:
            a("s_waitcnt vmcnt(0)")
            wr_win()
            if w < 3:
                ld_win(w + 1)
        for m in range(4 * d - 1 - (2 if d == 0 else 0), 4 * d + 3):
            a("ds_read_b128 %s, v8 offset:%d" % (fr(m), 960 - 32 * (m - 32 * w))); lg.push(d)
        for s_ in range(4):
            a("ds_read_b128 %s, v11 offset:%d" % (br(d & 1, s_), 32 * s_)); lg.push(d)

    a("s_waitcnt lgkmcnt(0)")
    rd_delta(0)
    for d in range(32):
        if d + 1 < 32:
            rd_delta(d + 1)
        if (d + 1) % 8 == 0 and d + 1 < 32:
            a("s_waitcnt lgkmcnt(15)")
            a("s_waitcnt lgkmcnt(8)")
            lg.q = [x for x in lg.q if x != d]
        else:
            lg.wait(d)
        for s_ in range(4):
            for t in range(2):
                c = "0" if (d == 0 and s_ == 0) else vr(AC + 16 * t, 16)
                a("v_mfma_f32_32x32x16_bf16 %s, %s, %s, %s" % (vr(AC + 16 * t, 16), fr(4 * d + 2 * t - s_), br(d & 1, s_), c))
    a("v_mul_u32_u24 v9, %d, v6" % CU_ROW)
    a("v_lshl_add_u32 v9, v7, 3, v9")
    a("v_add_u32 v9, s32, v9")
    for t in range(2):
        for q in range(4):
            k = 4 * t + q
            a("ds_read_b64 v[%d:%d], v9 offset:%d" % (16 + 2 * k, 17 + 2 * k, CU_ROW + 64 * t + 16 * q))
    a("v_lshlrev_b32 v12, 7, v6")
    a("v_lshl_add_u32 v12, v7, 3, v12")
    a("s_and_b32 s35, s27, 1")
    a("s_lshl_b32 s36, s29, 16")
    a("s_and_b32 s37, s29, 0xffff0000")
    a("s_cmp_eq_u32 s35, 0")
    a("s_cselect_b32 s36, s36, s37")
    a("s_waitcnt lgkmcnt(0)")
    for t in range(2):
        for q in range(4):
            k = 4 * t + q
            for pp in range(2):
                A = AC + 16 * t + 4 * q + 2 * pp
                U = 16 + 2 * k + pp
                a("v_cvt_pk_bf16_f32 v32, v%d, v%d" % (A, A + 1))
                a("v_lshlrev_b32 v33, 16, v%d" % U)
                a("v_and_b32 v34, 0xffff0000, v%d" % U)
                a("v_mul_f32 v33, s36, v33")
                a("v_mul_f32 v34, s36, v34")
                a("v_cvt_pk_bf16_f32 v33, v33, v34")
                a("v_lshlrev_b32 v34, 16, v32")
                a("v_and_b32 v32, 0xffff0000, v32")
                a("v_lshlrev_b32 v35, 16, v33")
                a("v_and_b32 v33, 0xffff0000, v33")
                a("v_add_f32 v34, v34, v35")
                a("v_add_f32 v32, v32, v33")
                a("v_cvt_pk_bf16_f32 v%d, v34, v32" % (A))
            A = AC + 16 * t + 4 * q
            a("v_mov_b32 v%d, v%d" % (A + 1, A + 2))
            a("buffer_store_dwordx2 v[%d:%d], v12, s[12:15], s31 offen offset:%d" % (A, A + 1, 64 * t + 16 * q))
    a("s_waitcnt vmcnt(0)")
    cfg["vgprs"] = 156
    cfg["lds_bytes"] = 4 * CW


def kernel_conv(a, name):
    a.raw(".globl %s" % name)
    a.raw(".p2align 8")
    a.raw(".type %s,@function" % name)
    a.label(name)
    lend = a.newlabel("END")
    a("s_cmp_ge_u32 s2, 144")
    a("s_cbranch_scc1 %s" % lend)
    c = dict(s_wg=2)
    conv_role(a, c)
    a.label(lend)
    a("s_endpgm")
    return dict(name=name, grid=288, lds=c["lds_bytes"], vgprs=c["vgprs"])


def gemm3_pre(a, ctx):
    cfg = ctx["cfg"]
    tm, tn, wn = ctx["tm"], ctx["tn"], ctx["wn"]
    vt0, vt1, vt2, vt3 = ctx["vt"]
    al = ctx["al"]
    s_m0, s_n0 = cfg["s_m0"], cfg["s_n0"]
    G = [[al.get(4, 4) for q in range(4)] for ti in range(tm)]
    Bv = [[[al.get(2, 2) for q in range(4)] for tj in range(tn)] for ti in range(tm)]
    vo = al.get()
    cfg["G"], cfg["Bv"], cfg["vo"] = G, Bv, vo
    a("v_lshrrev_b32 %s, 6, v0" % vr(vt0))
    if wn == 2:
        a("v_lshrrev_b32 %s, 1, %s" % (vr(vt1), vr(vt0)))
        a("v_and_b32 %s, 1, %s" % (vr(vt0), vr(vt0)))
    else:
        a("v_mov_b32 %s, %s" % (vr(vt1), vr(vt0)))
        a("v_mov_b32 %s, 0" % vr(vt0))
    a("v_mul_u32_u24 %s, %d, %s" % (vr(vt0), tn * 32, vr(vt0)))
    a("v_and_b32 %s, 31, v0" % vr(vt2))
    a("v_add3_u32 %s, %s, %s, %s" % (vr(vt0), vr(vt0), vr(vt2), sr(s_n0)))
    a("v_mul_u32_u24 %s, %d, %s" % (vr(vt1), tm * 32, vr(vt1)))
    a("v_bfe_u32 %s, v0, 5, 1" % vr(vt2))
    a("v_lshl_add_u32 %s, %s, 2, %s" % (vr(vt1), vr(vt2), vr(vt1)))
    a("v_add_u32 %s, %s, %s" % (vr(vt1), sr(s_m0), vr(vt1)))
    a("v_lshlrev_b32 %s, 2, %s" % (vr(vt2), vr(vt1)))
    for ti in range(tm):
        for q in range(4):
            a("buffer_load_dwordx4 %s, %s, %s, 0 offen offset:%d" % (vr(G[ti][q], 4), vr(vt2), sr(cfg["sG"], 4), (ti * 32 + 8 * q) * 4))
    a("v_lshlrev_b32 %s, 12, %s" % (vr(vt2), vr(vt0)))
    a("v_lshl_add_u32 %s, %s, 1, %s" % (vr(vt2), vr(vt1), vr(vt2)))
    for ti in range(tm):
        for tj in range(tn):
            a("s_mov_b32 %s, 0x%x" % (sr(cfg["s_tmp"]), tj * 32 * 4096))
            for q in range(4):
                a("buffer_load_dwordx2 %s, %s, %s, %s offen offset:%d" % (vr(Bv[ti][tj][q], 2), vr(vt2), sr(cfg["sBT"], 4), sr(cfg["s_tmp"]), (ti * 32 + 8 * q) * 2))
    a("v_mul_u32_u24 %s, 1152, %s" % (vr(vo), vr(vt1)))
    a("v_lshl_add_u32 %s, %s, 1, %s" % (vr(vo), vr(vt0), vr(vo)))


def gemm3_epi(a, ctx):
    cfg = ctx["cfg"]
    tm, tn = ctx["tm"], ctx["tn"]
    vt0, vt1, vt2, vt3 = ctx["vt"]
    acc = ctx["acc"]
    G, Bv, vo = cfg["G"], cfg["Bv"], cfg["vo"]
    sO = cfg["sO"]
    st = cfg["s_tmp"]
    for ti in range(tm):
        for tj in range(tn):
            A = acc[ti][tj]
            for q in range(4):
                for i in range(4):
                    r = A + 4 * q + i
                    g = G[ti][q] + i
                    b = Bv[ti][tj][q] + (i >> 1)
                    a("v_cvt_pk_bf16_f32 %s, %s, %s" % (vr(r), vr(r), vr(r)))
                    a("v_sub_f32 %s, 1.0, %s" % (vr(vt0), vr(g)))
                    a("v_and_b32 %s, 0xffff0000, %s" % (vr(r), vr(r)))
                    if i & 1:
                        a("v_and_b32 %s, 0xffff0000, %s" % (vr(vt1), vr(b)))
                    else:
                        a("v_lshlrev_b32 %s, 16, %s" % (vr(vt1), vr(b)))
                    a("v_cvt_pk_bf16_f32 %s, %s, %s" % (vr(vt0), vr(vt0), vr(vt0)))
                    a("v_mul_f32 %s, %s, %s" % (vr(r), vr(g), vr(r)))
                    a("v_and_b32 %s, 0xffff0000, %s" % (vr(vt0), vr(vt0)))
                    a("v_mul_f32 %s, %s, %s" % (vr(vt0), vr(vt0), vr(vt1)))
                    a("v_cvt_pk_bf16_f32 %s, %s, %s" % (vr(r), vr(r), vr(vt0)))
                    a("v_lshlrev_b32 %s, 16, %s" % (vr(vt0), vr(r)))
                    a("v_and_b32 %s, 0xffff0000, %s" % (vr(r), vr(r)))
                    a("v_add_f32 %s, %s, %s" % (vr(r), vr(r), vr(vt0)))
                    a("v_cvt_pk_bf16_f32 %s, %s, %s" % (vr(r), vr(r), vr(r)))
                    off = (ti * 32 + 8 * q + i) * 1152 + tj * 64
                    a("s_mov_b32 %s, 0x%x" % (sr(st + 1), off))
                    a("buffer_store_short %s, %s, %s, %s offen" % (vr(r), vr(vo), sr(sO, 4), sr(st + 1)))


def gemm3_role(a, cfg):
    s_wg = cfg["s_wg"]
    a("s_load_dwordx2 s[20:21], s[0:1], 16")
    a("s_load_dwordx2 s[22:23], s[0:1], 88")
    a("s_load_dwordx2 s[24:25], s[0:1], 104")
    a("s_waitcnt lgkmcnt(0)")
    make_srd(a, 4, 24, 2048 * 1152, WS_O)
    make_srd(a, 8, 20, 576 * 1152)
    make_srd(a, 12, 22, 2048 * 1152)
    make_srd(a, 16, 24, 8192, WS_G)
    make_srd(a, 36, 24, 576 * 4096, WS_BT)
    a("s_and_b32 s26, %s, 31" % sr(s_wg))
    a("s_lshl_b32 s26, s26, 6")
    a("s_lshr_b32 s27, %s, 5" % sr(s_wg))
    a("s_lshl_b32 s27, s27, 6")
    c = dict(wm=2, wn=2, tm=1, tn=1, lda=1152, ldb=1152, K=576, sA=4, sB=8, sO=12, sG=16, sBT=36, s_m0=26, s_n0=27, s_tmp=28,
             epi=gemm3_epi, pre=gemm3_pre, P=int(os.environ.get("GP3", "3")), KS=int(os.environ.get("KS3", "64")))
    gemm(a, c)
    a("s_waitcnt vmcnt(0)")
    cfg["vgprs"] = c["vgprs"]
    cfg["lds_bytes"] = c["lds_bytes"]


def kernel_gemm3(a, name):
    a.raw(".globl %s" % name)
    a.raw(".p2align 8")
    a.raw(".type %s,@function" % name)
    a.label(name)
    lend = a.newlabel("END")
    a("s_cmp_ge_u32 s2, 288")
    a("s_cbranch_scc1 %s" % lend)
    c = dict(s_wg=2)
    gemm3_role(a, c)
    a.label(lend)
    a("s_endpgm")
    return dict(name=name, grid=288, lds=c["lds_bytes"], vgprs=c["vgprs"])


TL = int(os.environ.get("TL", "0"))


def tl_start(a):
    if TL:
        a("s_memrealtime s[100:101]")


def tl_end(a):
    if TL:
        a("s_waitcnt vmcnt(0) lgkmcnt(0)")
        a("s_memrealtime s[98:99]")
        a("s_load_dwordx2 s[4:5], s[0:1], 104")
        a("s_waitcnt lgkmcnt(0)")
        a("s_add_u32 s4, s4, 0x4000000")
        a("s_addc_u32 s5, s5, 0")
        a("s_mov_b32 s6, 0x100000")
        a("s_mov_b32 s7, 0x00020000")
        a("v_mov_b32 v4, s100")
        a("v_mov_b32 v5, s98")
        a("v_mov_b32 v3, s2")
        a("v_lshlrev_b32 v3, 3, v3")
        a("v_cmp_eq_u32 vcc, 0, v0")
        a("s_and_saveexec_b64 s[8:9], vcc")
        a("buffer_store_dwordx2 v[4:5], v3, s[4:7], 0 offen")
        a("s_waitcnt vmcnt(0)")

def kstart(a, name):
    a.raw(".globl %s" % name)
    a.raw(".p2align 8")
    a.raw(".type %s,@function" % name)
    a.label(name)


def kernel_L1(a, name):
    kstart(a, name)
    tl_start(a)
    lend, lprep, lkg, lv = a.newlabel("END"), a.newlabel("PREP"), a.newlabel("KGEN"), a.newlabel("VPART")
    a("s_cmp_ge_u32 s2, 240")
    a("s_cbranch_scc1 %s" % lprep)
    a("s_load_dwordx4 s[20:23], s[0:1], 0")
    a("s_load_dwordx2 s[24:25], s[0:1], 104")
    a("s_waitcnt lgkmcnt(0)")
    make_srd(a, 4, 20, 2048 * 1152)
    make_srd(a, 8, 22, 576 * 3456)
    make_srd(a, 12, 24, 1728 * 4096, WS_QKVT)
    a("s_cmp_ge_u32 s2, 144")
    a("s_cbranch_scc1 %s" % lv)
    a("s_and_b32 s26, s2, 15")
    a("s_lshl_b32 s26, s26, 7")
    a("s_lshr_b32 s27, s2, 4")
    a("s_lshl_b32 s27, s27, 7")
    c1 = dict(wm=2, wn=2, tm=2, tn=2, lda=1152, ldb=3456, K=576, sA=4, sB=8, sO=12, s_m0=26, s_n0=27, s_tmp=28,
              epi=epi_gemm1("qk"))
    gemm(a, c1)
    tl_end(a)
    a("s_endpgm")
    a.label(lv)
    a("s_sub_u32 s27, s2, 144")
    a("s_and_b32 s26, s27, 15")
    a("s_lshl_b32 s26, s26, 7")
    a("s_lshr_b32 s27, s27, 4")
    a("s_mul_i32 s27, s27, 96")
    a("s_add_u32 s27, s27, 1152")
    c2 = dict(wm=4, wn=1, tm=1, tn=3, lda=1152, ldb=3456, K=576, sA=4, sB=8, sO=12, s_m0=26, s_n0=27, s_tmp=28,
              epi=epi_gemm1("v"))
    gemm(a, c2)
    tl_end(a)
    a("s_endpgm")
    a.label(lprep)
    a("s_cmp_ge_u32 s2, 272")
    a("s_cbranch_scc1 %s" % lkg)
    a("s_sub_u32 s3, s2, 240")
    c3 = dict(s_wg=3)
    prep_role(a, c3)
    tl_end(a)
    a("s_endpgm")
    a.label(lkg)
    a("s_cmp_ge_u32 s2, 416")
    a("s_cbranch_scc1 %s" % lend)
    a("s_sub_u32 s3, s2, 272")
    c4 = dict(s_wg=3)
    kgen_role(a, c4)
    tl_end(a)
    a.label(lend)
    a("s_endpgm")
    cs = (c1, c2, c3, c4)
    return dict(name=name, grid=416, lds=max(c["lds_bytes"] for c in cs), vgprs=max(c["vgprs"] for c in cs))


def kernel_L2(a, name):
    kstart(a, name)
    tl_start(a)
    lend, lcv = a.newlabel("END"), a.newlabel("CONV")
    a("s_cmp_ge_u32 s2, 256")
    a("s_cbranch_scc1 %s" % lcv)
    a("s_load_dwordx2 s[24:25], s[0:1], 104")
    a("s_waitcnt lgkmcnt(0)")
    make_srd(a, 4, 24, 1728 * 4096, WS_QKVT)
    make_srd(a, 8, 24, 2048 * 1152, WS_O)
    a("s_and_b32 s26, s2, 7")
    a("s_lshr_b32 s27, s2, 3")
    a("s_and_b32 s27, s27, 3")
    a("s_lshl_b32 s27, s27, 3")
    a("s_add_u32 s26, s26, s27")
    a("s_lshr_b32 s27, s2, 5")
    a("s_lshl_b32 s27, s27, 8")
    c = dict(sW=4, sO=8, s_head=26, s_q0=27, s_tmp=28, prof=PROF)
    a("s_mul_i32 s30, s26, 18")
    a("s_add_u32 s30, s30, 576")
    attn_role(a, c)
    tl_end(a)
    a("s_endpgm")
    a.label(lcv)
    a("s_cmp_ge_u32 s2, 400")
    a("s_cbranch_scc1 %s" % lend)
    a("s_sub_u32 s3, s2, 256")
    c2 = dict(s_wg=3)
    conv_role(a, c2)
    tl_end(a)
    a.label(lend)
    a("s_endpgm")
    return dict(name=name, grid=400, lds=max(c["lds_bytes"], c2["lds_bytes"]), vgprs=max(c["vgprs"], c2["vgprs"]))


HEADER = open("gated_mix__mha_block__ssm_conv_s4d__prompt.s.ref").read().split("; @launch")[0]


def build(kfuncs):
    a = Asm()
    infos = []
    body = Asm()
    for f, nm in kfuncs:
        infos.append(f(body, nm))
    out = HEADER
    for k in infos:
        out += "; @launch kernel=%s grid=(%d,1,1) block=(256,1,1) lds=%d\n" % (k["name"], k["grid"], k["lds"])
    out += '.amdgcn_target "amdgcn-amd-amdhsa--gfx950"\n.text\n'
    out += body.text()
    out += '.section .rodata,"a"\n'
    for k in infos:
        v = (k["vgprs"] + 3) // 4 * 4
        out += ".p2align 6\n.amdhsa_kernel %s\n" % k["name"]
        out += "  .amdhsa_next_free_vgpr %d\n  .amdhsa_next_free_sgpr 102\n  .amdhsa_accum_offset %d\n" % (v, v)
        out += "  .amdhsa_group_segment_fixed_size 0\n  .amdhsa_kernarg_size 112\n  .amdhsa_user_sgpr_count 2\n"
        out += "  .amdhsa_user_sgpr_kernarg_segment_ptr 1\n  .amdhsa_system_sgpr_workgroup_id_x 1\n.end_amdhsa_kernel\n"
    return out


if __name__ == "__main__":
    path = sys.argv[1]
    mode = sys.argv[2] if len(sys.argv) > 2 else "all"
    if mode == "gemm1":
        s = build([(kernel_gemm1, "gemm1_kernel")])
    elif mode == "prep":
        s = build([(kernel_prep, "prep_kernel")])
    elif mode == "kgen":
        s = build([(kernel_kgen, "kgen_kernel")])
    elif mode == "conv":
        s = build([(kernel_prep, "prep_kernel"), (kernel_kgen, "kgen_kernel"), (kernel_conv, "conv_kernel")])
    elif mode == "six":
        s = build([(kernel_gemm1, "gemm1_kernel"), (kernel_prep, "prep_kernel"), (kernel_kgen, "kgen_kernel"), (kernel_attn, "attn_kernel"), (kernel_conv, "conv_kernel"), (kernel_gemm3, "gemm3_kernel")])
    elif mode == "all":
        s = build([(kernel_L1, "l1_kernel"), (kernel_L2, "l2_kernel"), (kernel_gemm3, "l3_kernel")])
    elif mode == "attn":
        s = build([(kernel_gemm1, "gemm1_kernel"), (kernel_attn, "attn_kernel")])
    open(path, "w").write(s)
```

```python
import sys, os
sys.path.insert(0, os.path.dirname(os.path.abspath(__file__)))
from fw import Asm, vr, sr, Alloc

WS_QKVT = 0
WS_O = 8 << 20
WS_XT = 12 << 20
WS_G = 16 << 20
WS_KR = 17 << 20
WS_BT = 20 << 20
KR_STRIDE = 4224

PROF = int(os.environ.get("PROF", "0"))
QSCALE = 0x3EAE1A3D
import struct
def f32bits(x):
    return struct.unpack("<I", struct.pack("<f", x))[0]
QSCALE = f32bits((18 ** -0.5) * 1.4426950408889634)


class VmQ:
    def __init__(self, asm, name):
        self.q = []
        self.asm = asm
        self.name = name

    def push(self, tag):
        self.q.append(tag)

    def wait(self, tag):
        idx = max(i for i, t in enumerate(self.q) if t == tag) if tag in self.q else -1
        if idx < 0:
            return
        n = len(self.q) - 1 - idx
        self.asm("s_waitcnt %s(%d)" % (self.name, n))
        self.q = self.q[idx + 1:]

    def wait_all(self):
        self.asm("s_waitcnt %s(0)" % self.name)
        self.q = []


def make_srd(a, s, ptr_s, size, off=0):
    if off:
        a("s_add_u32 s%d, s%d, 0x%x" % (s, ptr_s, off))
        a("s_addc_u32 s%d, s%d, 0" % (s + 1, ptr_s + 1))
    else:
        a("s_mov_b32 s%d, s%d" % (s, ptr_s))
        a("s_mov_b32 s%d, s%d" % (s + 1, ptr_s + 1))
    a("s_mov_b32 s%d, 0x%x" % (s + 2, size))
    a("s_mov_b32 s%d, 0x00020000" % (s + 3))


def div_small(a, vq, vrem, vc, d, vtmp):
    m = -(-(1 << 16) // d)
    for c in range(0, 1024):
        assert (c * m) >> 16 == c // d
    a("v_mul_u32_u24 %s, %d, %s" % (vr(vq), m, vr(vc)))
    a("v_lshrrev_b32 %s, 16, %s" % (vr(vq), vr(vq)))
    a("v_mul_u32_u24 %s, %d, %s" % (vr(vtmp), d, vr(vq)))
    a("v_sub_u32 %s, %s, %s" % (vr(vrem), vr(vc), vr(vtmp)))


def gemm(a, cfg):
    wm, wn, tm, tn = cfg["wm"], cfg["wn"], cfg["tm"], cfg["tn"]
    Mt, Nt = wm * tm * 32, wn * tn * 32
    lda, ldb, K = cfg["lda"], cfg["ldb"], cfg["K"]
    sA, sB = cfg["sA"], cfg["sB"]
    s_m0, s_n0 = cfg["s_m0"], cfg["s_n0"]
    st = cfg["s_tmp"]
    s_boff, s_mask = st, st + 2
    assert s_mask % 2 == 0
    KS = cfg.get("KS", 32)
    nk = KS // 16
    csh = (KS // 8).bit_length() - 1
    nst = K // KS
    P = int(os.environ.get("GP", cfg.get("P", 4)))
    SA = 2 * KS + 16
    SB = {128: 320, 96: 192, 64: 192}[Nt]
    bufsz = Mt * SA + KS * SB
    LB = Mt * SA
    cfg["lds_bytes"] = 3 * bufsz
    nchA = Mt * KS // 8
    cprB = Nt // 8
    nchB = KS * cprB
    nA = -(-nchA // 256)
    nB = -(-nchB // 256)
    al = Alloc(cfg.get("v_start", 1), cfg.get("v_limit", 256))
    vAg = [al.get() for _ in range(nA)]
    vAl = [al.get() for _ in range(nA)]
    vBg = [al.get() for _ in range(nB)]
    vBl = [al.get() for _ in range(nB)]
    vAf = al.get()
    vBf = al.get()
    vt0, vt1, vt2, vt3 = [al.get() for _ in range(4)]
    FA = [[al.get(4, 4) for _ in range(tm)] for _ in range(2)]
    FB = [[al.get(4, 4) for _ in range(tn)] for _ in range(2)]
    acc = [[al.get(16, 4) for _ in range(tn)] for _ in range(tm)]
    stg = [([al.get(4, 4) for _ in range(nA)], [al.get(4, 4) for _ in range(nB)]) for _ in range(P)]
    cfg["vgprs"] = al.hi

    a.comment("gemm address setup Mt=%d Nt=%d" % (Mt, Nt))
    for i in range(nA):
        a("v_lshrrev_b32 %s, %d, v0" % (vr(vt0), csh))
        if i:
            a("v_add_u32 %s, %d, %s" % (vr(vt0), (256 >> csh) * i, vr(vt0)))
        a("v_and_b32 %s, %d, v0" % (vr(vt1), KS // 8 - 1))
        a("v_lshlrev_b32 %s, 4, %s" % (vr(vt1), vr(vt1)))
        a("v_mul_u32_u24 %s, %d, %s" % (vr(vAl[i]), SA, vr(vt0)))
        a("v_add_u32 %s, %s, %s" % (vr(vAl[i]), vr(vAl[i]), vr(vt1)))
        a("v_add_u32 %s, %s, %s" % (vr(vt0), sr(s_m0), vr(vt0)))
        a("v_mul_u32_u24 %s, %d, %s" % (vr(vAg[i]), lda, vr(vt0)))
        a("v_add_u32 %s, %s, %s" % (vr(vAg[i]), vr(vAg[i]), vr(vt1)))
    for i in range(nB):
        a("v_add_u32 %s, %d, v0" % (vr(vt2), 256 * i))
        if cprB & (cprB - 1) == 0:
            sh = cprB.bit_length() - 1
            a("v_lshrrev_b32 %s, %d, %s" % (vr(vt0), sh, vr(vt2)))
            a("v_and_b32 %s, %d, %s" % (vr(vt1), cprB - 1, vr(vt2)))
        else:
            div_small(a, vt0, vt1, vt2, cprB, vt3)
        a("v_lshlrev_b32 %s, 4, %s" % (vr(vt1), vr(vt1)))
        a("v_mul_u32_u24 %s, %d, %s" % (vr(vBl[i]), SB, vr(vt0)))
        a("v_add_u32 %s, %s, %s" % (vr(vBl[i]), vr(vBl[i]), vr(vt1)))
        a("v_mul_u32_u24 %s, %d, %s" % (vr(vBg[i]), ldb, vr(vt0)))
        a("v_add_u32 %s, %s, %s" % (vr(vBg[i]), vr(vBg[i]), vr(vt1)))
        a("v_add_u32 %s, %s, %s" % (vr(vBg[i]), sr(s_n0), vr(vBg[i])))
        a("v_add_u32 %s, %s, %s" % (vr(vBg[i]), sr(s_n0), vr(vBg[i])))
    partB = (nchB % 256) != 0
    if partB:
        a("v_cmp_gt_u32 vcc, %d, v0" % (nchB % 256))
        a("s_mov_b64 %s, vcc" % sr(s_mask, 2))
    a("v_lshrrev_b32 %s, 6, v0" % vr(vt0))
    if wn == 2:
        a("v_lshrrev_b32 %s, 1, %s" % (vr(vt1), vr(vt0)))
        a("v_and_b32 %s, 1, %s" % (vr(vt0), vr(vt0)))
    else:
        a("v_mov_b32 %s, %s" % (vr(vt1), vr(vt0)))
        a("v_mov_b32 %s, 0" % vr(vt0))
    a("v_mul_u32_u24 %s, %d, %s" % (vr(vt1), tm * 32, vr(vt1)))
    a("v_and_b32 %s, 31, v0" % vr(vt2))
    a("v_add_u32 %s, %s, %s" % (vr(vt1), vr(vt1), vr(vt2)))
    a("v_mul_u32_u24 %s, %d, %s" % (vr(vAf), SA, vr(vt1)))
    a("v_bfe_u32 %s, v0, 5, 1" % vr(vt2))
    a("v_lshl_add_u32 %s, %s, 4, %s" % (vr(vAf), vr(vt2), vr(vAf)))
    a("v_bfe_u32 %s, v0, 2, 2" % vr(vt1))
    a("v_lshl_add_u32 %s, %s, 3, %s" % (vr(vt1), vr(vt2), vr(vt1)))
    a("v_mul_u32_u24 %s, %d, %s" % (vr(vBf), SB, vr(vt1)))
    a("v_mul_u32_u24 %s, %d, %s" % (vr(vt0), tn * 64, vr(vt0)))
    a("v_add_u32 %s, %s, %s" % (vr(vBf), vr(vBf), vr(vt0)))
    a("v_bfe_u32 %s, v0, 4, 1" % vr(vt0))
    a("v_lshl_add_u32 %s, %s, 5, %s" % (vr(vBf), vr(vt0), vr(vBf)))
    a("v_and_b32 %s, 3, v0" % vr(vt0))
    a("v_lshl_add_u32 %s, %s, 3, %s" % (vr(vBf), vr(vt0), vr(vBf)))
    a("v_add_u32 %s, %d, %s" % (vr(vBf), LB, vr(vBf)))

    vm = VmQ(a, "vmcnt")
    lg = VmQ(a, "lgkmcnt")

    def issue_loads(s):
        A_, B_ = stg[s % P]
        for i in range(nA):
            a("buffer_load_dwordx4 %s, %s, %s, 0 offen offset:%d" % (vr(A_[i], 4), vr(vAg[i]), sr(sA, 4), 2 * KS * s))
            vm.push(("ld", s))
        a("s_mov_b32 %s, 0x%x" % (sr(s_boff), KS * s * ldb))
        for i in range(nB):
            last_part = partB and i == nB - 1
            if last_part:
                a("s_mov_b64 exec, %s" % sr(s_mask, 2))
            a("buffer_load_dwordx4 %s, %s, %s, %s offen" % (vr(B_[i], 4), vr(vBg[i]), sr(sB, 4), sr(s_boff)))
            vm.push(("ld", s))
            if last_part:
                a("s_mov_b64 exec, -1")

    def write_lds(s):
        A_, B_ = stg[s % P]
        base = (s % 3) * bufsz
        vm.wait(("ld", s))
        for i in range(nA):
            a("ds_write_b128 %s, %s offset:%d" % (vr(vAl[i]), vr(A_[i], 4), base))
            lg.push(("wr", s))
        for i in range(nB):
            last_part = partB and i == nB - 1
            if last_part:
                a("s_mov_b64 exec, %s" % sr(s_mask, 2))
            a("ds_write_b128 %s, %s offset:%d" % (vr(vBl[i]), vr(B_[i], 4), base + LB))
            lg.push(("wr", s))
            if last_part:
                a("s_mov_b64 exec, -1")

    def read_frags(s, kk):
        base = (s % 3) * bufsz
        for t in range(tm):
            a("ds_read_b128 %s, %s offset:%d" % (vr(FA[kk & 1][t], 4), vr(vAf), base + t * 32 * SA + kk * 32))
            lg.push(("fr", s, kk))
        for t in range(tn):
            for hf in range(2):
                a("ds_read_b64_tr_b16 %s, %s offset:%d" % (vr(FB[kk & 1][t] + 2 * hf, 2), vr(vBf),
                                                           base + (kk * 16 + 4 * hf) * SB + t * 64))
                lg.push(("fr", s, kk))

    def mfmas(s, kk):
        lg.wait(("fr", s, kk))
        for ti in range(tm):
            for tj in range(tn):
                c = "0" if (s == 0 and kk == 0) else vr(acc[ti][tj], 16)
                a("v_mfma_f32_32x32x16_bf16 %s, %s, %s, %s" % (vr(acc[ti][tj], 16), vr(FA[kk & 1][ti], 4), vr(FB[kk & 1][tj], 4), c))

    if PROF:
        a("s_memtime s[40:41]")
    if cfg.get("pre"):
        cfg["pre"](a, dict(cfg=cfg, vt=[vt0, vt1, vt2, vt3], tm=tm, tn=tn, wm=wm, wn=wn, al=al))
        cfg["vgprs"] = al.hi
    for s in range(P):
        issue_loads(s)
    write_lds(0)
    issue_loads(P) if P < nst else None
    lg.wait_all()
    a("s_barrier")
    if PROF:
        a("s_memtime s[42:43]")
    read_frags(0, 0)
    for s in range(nst):
        if s + 1 < nst:
            write_lds(s + 1)
            if s + 1 + P < nst:
                issue_loads(s + 1 + P)
        for kk in range(nk - 1):
            read_frags(s, kk + 1)
            mfmas(s, kk)
        if s + 1 < nst:
            lg.wait_all()
            a("s_barrier")
            read_frags(s + 1, 0)
        mfmas(s, nk - 1)
    if PROF:
        a("s_memtime s[44:45]")
    ctx = dict(cfg=cfg, acc=acc, vt=[vt0, vt1, vt2, vt3], tm=tm, tn=tn, wm=wm, wn=wn, al=al,
               free=[r for st_ in stg for r in st_[0] + st_[1]])
    cfg["epi"](a, ctx)
    if PROF:
        a("s_waitcnt vmcnt(0)")
        a("s_memtime s[46:47]")
        a("s_load_dwordx2 s[48:49], s[0:1], 96")
        a("s_waitcnt lgkmcnt(0)")
        a("s_mov_b32 s50, 256")
        a("s_mov_b32 s51, 0x00020000")
        a("v_lshlrev_b32 %s, 4, s2" % vr(vt1))
        a("v_cmp_eq_u32 vcc, 0, v0")
        a("s_and_saveexec_b64 s[52:53], vcc")
        for i, r in enumerate((40, 42, 44, 46)):
            a("v_mov_b32 %s, s%d" % (vr(vt0), r))
            a("buffer_store_dword %s, %s, s[48:51], 0 offen offset:%d" % (vr(vt0), vr(vt1), 4 * i))
        a("s_mov_b64 exec, s[52:53]")


def epi_gemm1(kind):
    def epi(a, ctx):
        cfg = ctx["cfg"]
        tm, tn, wn = ctx["tm"], ctx["tn"], ctx["wn"]
        vt0, vt1, vt2, vt3 = ctx["vt"]
        acc = ctx["acc"]
        sO = cfg["sO"]
        s_m0, s_n0 = cfg["s_m0"], cfg["s_n0"]
        st = cfg["s_tmp"]
        a("v_lshrrev_b32 %s, 6, v0" % vr(vt0))
        if wn == 2:
            a("v_lshrrev_b32 %s, 1, %s" % (vr(vt1), vr(vt0)))
            a("v_and_b32 %s, 1, %s" % (vr(vt0), vr(vt0)))
        else:
            a("v_mov_b32 %s, %s" % (vr(vt1), vr(vt0)))
            a("v_mov_b32 %s, 0" % vr(vt0))
        a("v_mul_u32_u24 %s, %d, %s" % (vr(vt0), tn * 32, vr(vt0)))
        a("v_and_b32 %s, 31, v0" % vr(vt2))
        a("v_add3_u32 %s, %s, %s, %s" % (vr(vt0), vr(vt0), vr(vt2), sr(s_n0)))
        if kind == "qk":
            a("v_readfirstlane_b32 %s, %s" % (sr(st), vr(vt0)))
            a("s_cmp_lt_u32 %s, 576" % sr(st))
            a("s_cselect_b32 %s, 0x%x, 1.0" % (sr(st), QSCALE))
        a("v_lshlrev_b32 %s, 12, %s" % (vr(vt0), vr(vt0)))
        a("v_mul_u32_u24 %s, %d, %s" % (vr(vt1), tm * 32, vr(vt1)))
        a("v_bfe_u32 %s, v0, 5, 1" % vr(vt2))
        a("v_lshl_add_u32 %s, %s, %d, %s" % (vr(vt1), vr(vt2), 2 if kind == "qk" else 3, vr(vt1)))
        a("v_add_u32 %s, %s, %s" % (vr(vt1), sr(s_m0), vr(vt1)))
        a("v_lshl_add_u32 %s, %s, 1, %s" % (vr(vt0), vr(vt1), vr(vt0)))
        for ti in range(tm):
            for tj in range(tn):
                A = acc[ti][tj]
                if kind == "qk":
                    for r in range(16):
                        a("v_mul_f32 %s, %s, %s" % (vr(A + r), sr(st), vr(A + r)))
                for p in range(8):
                    a("v_cvt_pk_bf16_f32 %s, %s, %s" % (vr(A + p), vr(A + 2 * p), vr(A + 2 * p + 1)))
                a("s_mov_b32 %s, 0x%x" % (sr(st + 1), tj * 32 * 4096))
                if kind == "qk":
                    for i in range(4):
                        a("buffer_store_dwordx2 %s, %s, %s, %s offen offset:%d" % (vr(A + 2 * i, 2), vr(vt0), sr(sO, 4), sr(st + 1), ti * 64 + 16 * i))
                else:
                    for m in range(2):
                        a("buffer_store_dwordx4 %s, %s, %s, %s offen offset:%d" % (vr(A + 4 * m, 4), vr(vt0), sr(sO, 4), sr(st + 1), ti * 64 + 32 * m))
    return epi


def kernel_gemm1(a, name):
    a.raw(".globl %s" % name)
    a.raw(".p2align 8")
    a.raw(".type %s,@function" % name)
    a.label(name)
    lend = a.newlabel("END")
    lv = a.newlabel("VPART")
    a("s_cmp_ge_u32 s2, 240")
    a("s_cbranch_scc1 %s" % lend)
    a("s_load_dwordx4 s[20:23], s[0:1], 0")
    a("s_load_dwordx2 s[24:25], s[0:1], 104")
    a("s_waitcnt lgkmcnt(0)")
    make_srd(a, 4, 20, 2048 * 1152)
    make_srd(a, 8, 22, 576 * 3456)
    make_srd(a, 12, 24, 1728 * 4096, WS_QKVT)
    a("s_cmp_ge_u32 s2, 144")
    a("s_cbranch_scc1 %s" % lv)
    a("s_and_b32 s26, s2, 15")
    a("s_lshl_b32 s26, s26, 7")
    a("s_lshr_b32 s27, s2, 4")
    a("s_lshl_b32 s27, s27, 7")
    c1 = dict(wm=2, wn=2, tm=2, tn=2, lda=1152, ldb=3456, K=576, sA=4, sB=8, sO=12, s_m0=26, s_n0=27, s_tmp=28,
              epi=epi_gemm1("qk"))
    gemm(a, c1)
    a("s_endpgm")
    a.label(lv)
    a("s_sub_u32 s27, s2, 144")
    a("s_and_b32 s26, s27, 15")
    a("s_lshl_b32 s26, s26, 7")
    a("s_lshr_b32 s27, s27, 4")
    a("s_mul_i32 s27, s27, 96")
    a("s_add_u32 s27, s27, 1152")
    c2 = dict(wm=4, wn=1, tm=1, tn=3, lda=1152, ldb=3456, K=576, sA=4, sB=8, sO=12, s_m0=26, s_n0=27, s_tmp=28,
              epi=epi_gemm1("v"))
    gemm(a, c2)
    a.label(lend)
    a("s_endpgm")
    return dict(name=name, grid=240, lds=max(c1["lds_bytes"], c2["lds_bytes"]), vgprs=max(c1["vgprs"], c2["vgprs"]))


SK, SV = 320, 272
K_IMG, V_IMG = 0, 20 * 320
ABUF = 20 * 320 + 20 * 272
ONES = 0x3F803F80


def attn_role(a, cfg):
    sW, sO = cfg["sW"], cfg["sO"]
    s_head, s_qb = cfg["s_head"], cfg["s_q0"]
    st = cfg["s_tmp"]
    s_goff, s_cnt, s_r0 = st, st + 1, st + 2
    s_hm = st + 4
    s_m16 = st + 6
    al = Alloc(1, 256)
    vK1, vK2, vV = al.get(), al.get(), al.get()
    sg = [al.get() for _ in range(3)]
    sl = [al.get() for _ in range(3)]
    vt = [al.get() for _ in range(6)]
    vOa = al.get()
    stg = [al.get(4, 4) for _ in range(3)]
    QB1 = [al.get(4, 4) for _ in range(2)]
    QB2 = [al.get(4, 4) for _ in range(2)]
    KA1 = [al.get(4, 4) for _ in range(2)]
    KA2 = [al.get(4, 4) for _ in range(2)]
    VF = [[al.get(4, 4) for _ in range(2)] for _ in range(2)]
    S = [[al.get(16, 4) for _ in range(2)] for _ in range(2)]
    Pp = [al.get(8, 4) for _ in range(2)]
    O = [al.get(16, 4) for _ in range(2)]
    cfg["vgprs"] = al.hi
    cfg["lds_bytes"] = 4 * ABUF
    t0, t1, t2, t3, t4, t5 = vt
    lg = VmQ(a, "lgkmcnt")

    a("v_lshrrev_b32 %s, 6, v0" % vr(t0))
    a("v_and_b32 %s, 1, %s" % (vr(t1), vr(t0)))
    a("v_lshrrev_b32 %s, 1, %s" % (vr(t2), vr(t0)))
    a("v_bfe_u32 %s, v0, 4, 2" % vr(t3))
    a("v_mad_u32_u24 %s, %s, 9, %s" % (vr(t3), vr(t1), vr(t3)))
    a("v_and_b32 %s, 15, v0" % vr(t4))
    a("v_lshlrev_b32 %s, 4, %s" % (vr(t4), vr(t4)))
    a("v_mul_u32_u24 %s, %d, %s" % (vr(t5), SK - SV, vr(t2)))
    a("v_sub_u32 %s, %d, %s" % (vr(t5), SK, vr(t5)))
    a("v_mul_u32_u24 %s, %d, %s" % (vr(t0), V_IMG, vr(t2)))
    a("v_add_u32 %s, %s, %s" % (vr(t0), vr(t0), vr(t4)))
    a("v_mul_u32_u24 %s, 576, %s" % (vr(t2), vr(t2)))
    a("v_add_u32 %s, %s, %s" % (vr(t2), sr(s_r0), vr(t2)))
    for i in range(3):
        a("v_add_u32 %s, %d, %s" % (vr(t1), 4 * i, vr(t3)))
        a("v_mul_u32_u24 %s, %s, %s" % (vr(sl[i]), vr(t1), vr(t5)))
        a("v_add_u32 %s, %s, %s" % (vr(sl[i]), vr(sl[i]), vr(t0)))
        a("v_add_u32 %s, %s, %s" % (vr(sg[i]), vr(t1), vr(t2)))
        a("v_lshlrev_b32 %s, 12, %s" % (vr(sg[i]), vr(sg[i])))
        a("v_add_u32 %s, %s, %s" % (vr(sg[i]), vr(sg[i]), vr(t4)))
    a("v_bfe_u32 %s, v0, 5, 1" % vr(t0))
    a("v_bfe_u32 %s, v0, 2, 2" % vr(t1))
    a("v_bfe_u32 %s, v0, 4, 1" % vr(t2))
    a("v_and_b32 %s, 3, v0" % vr(t3))
    a("v_lshlrev_b32 %s, 3, %s" % (vr(t3), vr(t3)))
    a("v_lshl_add_u32 %s, %s, 5, %s" % (vr(t3), vr(t2), vr(t3)))
    a("v_lshl_add_u32 %s, %s, 3, %s" % (vr(t4), vr(t0), vr(t1)))
    a("v_mul_u32_u24 %s, %d, %s" % (vr(vK1), SK, vr(t4)))
    a("v_add_u32 %s, %s, %s" % (vr(vK1), vr(vK1), vr(t3)))
    a("v_add_u32 %s, 16, %s" % (vr(t4), vr(t1)))
    a("v_mul_u32_u24 %s, %d, %s" % (vr(vK2), SK, vr(t4)))
    a("v_add_u32 %s, %s, %s" % (vr(vK2), vr(vK2), vr(t3)))
    a("v_and_b32 %s, 31, v0" % vr(t4))
    a("v_min_u32 %s, 19, %s" % (vr(t4), vr(t4)))
    a("v_mul_u32_u24 %s, %d, %s" % (vr(vV), SV, vr(t4)))
    a("v_lshl_add_u32 %s, %s, 4, %s" % (vr(vV), vr(t0), vr(vV)))
    a("v_add_u32 %s, %d, %s" % (vr(vV), V_IMG, vr(vV)))
    a("v_cmp_eq_u32 vcc, 0, %s" % vr(t0))
    a("s_mov_b64 %s, vcc" % sr(s_hm, 2))
    a("v_and_b32 %s, 63, v0" % vr(t1))
    a("v_cmp_gt_u32 vcc, 16, %s" % vr(t1))
    a("s_mov_b64 %s, vcc" % sr(s_m16, 2))

    def ld_chunk():
        for i in range(3):
            if i == 2:
                a("s_mov_b64 exec, %s" % sr(s_m16, 2))
            a("buffer_load_dwordx4 %s, %s, %s, %s offen" % (vr(stg[i], 4), vr(sg[i]), sr(sW, 4), sr(s_goff)))
            if i == 2:
                a("s_mov_b64 exec, -1")
        a("s_add_u32 %s, %s, 256" % (sr(s_goff), sr(s_goff)))

    def wr_chunk(buf):
        a("s_waitcnt vmcnt(0)")
        for i in range(3):
            if i == 2:
                a("s_mov_b64 exec, %s" % sr(s_m16, 2))
            a("ds_write_b128 %s, %s offset:%d" % (vr(sl[i]), vr(stg[i], 4), buf * ABUF))
            lg.push("wr")
            if i == 2:
                a("s_mov_b64 exec, -1")

    def rd_k(tile, par):
        buf, kt = (tile // 4) % 4, tile % 4
        off = buf * ABUF + K_IMG + kt * 64
        a("ds_read_b64_tr_b16 %s, %s offset:%d" % (vr(KA1[par], 2), vr(vK1), off)); lg.push(("k", par))
        a("ds_read_b64_tr_b16 %s, %s offset:%d" % (vr(KA1[par] + 2, 2), vr(vK1), off + 4 * SK)); lg.push(("k", par))
        a("ds_read_b64_tr_b16 %s, %s offset:%d" % (vr(KA2[par], 2), vr(vK2), off)); lg.push(("k", par))

    def rd_v(tile, par):
        buf, kt = (tile // 4) % 4, tile % 4
        off = buf * ABUF + kt * 64
        for m in range(2):
            a("ds_read_b128 %s, %s offset:%d" % (vr(VF[par][m], 4), vr(vV), off + 32 * m)); lg.push(("v", par))

    s_mode = st + 8
    lp1, lpass2, lfall, lstore, lskipm = [a.newlabel(x) for x in ("AP1", "APASS2", "AFALL", "ASTORE", "ASKIPM")]
    a("s_mov_b32 %s, 0" % sr(s_mode))
    a("s_mov_b32 %s, 0" % sr(s_goff))
    ld_chunk()
    a("v_lshrrev_b32 %s, 6, v0" % vr(t1))
    a("v_lshlrev_b32 %s, 6, %s" % (vr(t1), vr(t1)))
    a("v_and_b32 %s, 31, v0" % vr(t2))
    a("v_add3_u32 %s, %s, %s, %s" % (vr(t1), vr(t1), vr(t2), sr(s_qb)))
    a("v_mul_u32_u24 %s, 1152, %s" % (vr(vOa), vr(t1)))
    a("v_lshlrev_b32 %s, 1, %s" % (vr(t1), vr(t1)))
    a("v_lshl_add_u32 %s, %s, 15, %s" % (vr(t2), vr(t0), vr(t1)))
    a("s_sub_u32 %s, %s, 576" % (sr(s_cnt), sr(s_r0)))
    a("s_lshl_b32 %s, %s, 12" % (sr(s_cnt), sr(s_cnt)))
    QT = [S[0][1], S[1][1]]
    for qt in range(2):
        for j in range(8):
            a("s_add_u32 %s, %s, %d" % (sr(st + 3), sr(s_cnt), j * 4096 + qt * 64))
            a("buffer_load_ushort %s, %s, %s, %s offen" % (vr(QT[qt] + j), vr(t2), sr(sW, 4), sr(st + 3)))
        for j in range(2):
            a("s_add_u32 %s, %s, %d" % (sr(st + 3), sr(s_cnt), (16 + j) * 4096 + qt * 64))
            a("buffer_load_ushort %s, %s, %s, %s offen" % (vr(QT[qt] + 8 + j), vr(t1), sr(sW, 4), sr(st + 3)))
        for r in range(1, 4):
            a("v_mov_b32 %s, 0" % vr(QB2[qt] + r))
    for p_ in range(2):
        a("v_mov_b32 %s, 0" % vr(KA2[p_] + 2))
        a("v_mov_b32 %s, 0" % vr(KA2[p_] + 3))
    a("v_bfe_u32 %s, v0, 4, 2" % vr(t3))
    a("v_lshrrev_b32 %s, 1, %s" % (vr(t4), vr(t3)))
    a("v_and_b32 %s, 1, %s" % (vr(t3), vr(t3)))
    a("v_add_u32 %s, 18, %s" % (vr(t5), vr(t3)))
    a("v_mul_u32_u24 %s, %d, %s" % (vr(t2), SK, vr(t5)))
    a("v_mul_u32_u24 %s, %d, %s" % (vr(t5), SV, vr(t5)))
    a("v_add_u32 %s, %d, %s" % (vr(t5), V_IMG, vr(t5)))
    a("v_cmp_eq_u32 vcc, 1, %s" % vr(t4))
    a("v_cndmask_b32 %s, %s, %s, vcc" % (vr(t2), vr(t2), vr(t5)))
    a("v_and_b32 %s, 15, v0" % vr(t5))
    a("v_lshl_add_u32 %s, %s, 4, %s" % (vr(t2), vr(t5), vr(t2)))
    a("v_lshrrev_b32 %s, 6, v0" % vr(t5))
    a("v_mul_u32_u24 %s, %d, %s" % (vr(t5), ABUF, vr(t5)))
    a("v_add_u32 %s, %s, %s" % (vr(t2), vr(t2), vr(t5)))
    a("v_and_b32 %s, %s, %s" % (vr(t3), vr(t3), vr(t4)))
    a("v_cmp_eq_u32 vcc, 0, %s" % vr(t3))
    a("v_mov_b32 %s, 0x%x" % (vr(t3), ONES))
    a("v_cndmask_b32 %s, 0, %s, vcc" % (vr(t3), vr(t3)))
    a("v_mov_b32 %s, %s" % (vr(S[0][0]), vr(t3)))
    a("v_mov_b32 %s, %s" % (vr(S[0][0] + 1), vr(t3)))
    a("v_mov_b32 %s, %s" % (vr(S[0][0] + 2), vr(t3)))
    a("v_mov_b32 %s, %s" % (vr(S[0][0] + 3), vr(t3)))
    a("ds_write_b128 %s, %s" % (vr(t2), vr(S[0][0], 4)))
    wr_chunk(0)
    ld_chunk()
    for qt in range(2):
        for j in range(4):
            a("v_lshl_or_b32 %s, %s, 16, %s" % (vr(QB1[qt] + j), vr(QT[qt] + 2 * j + 1), vr(QT[qt] + 2 * j)))
        a("v_lshl_or_b32 %s, %s, 16, %s" % (vr(QB2[qt]), vr(QT[qt] + 9), vr(QT[qt] + 8)))
        a("v_cndmask_b32 %s, 0, %s, %s" % (vr(QB2[qt]), vr(QB2[qt]), sr(s_hm, 2)))
    a.flush()
    a("s_branch %s" % lp1)
    a.label(lpass2)
    a("s_mov_b32 %s, 0" % sr(s_goff))
    ld_chunk()
    wr_chunk(0)
    ld_chunk()
    a.label(lp1)
    a("s_waitcnt lgkmcnt(0)")
    lg.q = []
    a("s_barrier")
    rd_k(0, 0)
    rd_k(1, 1)
    lg.wait(("k", 0))
    a("s_cmp_lg_u32 %s, 0" % sr(s_mode))
    a("s_cbranch_scc1 %s" % lskipm)
    for qt in range(2):
        Sx = S[qt][0]
        a("v_mfma_f32_32x32x16_bf16 %s, %s, %s, 0" % (vr(Sx, 16), vr(KA1[0], 4), vr(QB1[qt], 4)))
        a("v_mfma_f32_32x32x16_bf16 %s, %s, %s, %s" % (vr(Sx, 16), vr(KA2[0], 4), vr(QB2[qt], 4), vr(Sx, 16)))
    for qt in range(2):
        Sx = S[qt][0]
        a("v_max3_f32 %s, %s, %s, %s" % (vr(t0), vr(Sx), vr(Sx + 1), vr(Sx + 2)))
        for r in range(3, 15, 2):
            a("v_max3_f32 %s, %s, %s, %s" % (vr(t0), vr(t0), vr(Sx + r), vr(Sx + r + 1)))
        a("v_max_f32 %s, %s, %s" % (vr(t0), vr(t0), vr(Sx + 15)))
        a("v_mov_b32 %s, %s" % (vr(t1), vr(t0)))
        a("v_permlane32_swap_b32 %s, %s" % (vr(t0), vr(t1)))
        a("v_max_f32 %s, %s, %s" % (vr(t0), vr(t0), vr(t1)))
        set_m(a, QB2[qt] + 1, t0, t1, t2, s_hm)
    a.flush()
    a.label(lskipm)
    for qt in range(2):
        Sx = S[qt][0]
        a("v_mfma_f32_32x32x16_bf16 %s, %s, %s, 0" % (vr(Sx, 16), vr(KA1[0], 4), vr(QB1[qt], 4)))
        a("v_mfma_f32_32x32x16_bf16 %s, %s, %s, %s" % (vr(Sx, 16), vr(KA2[0], 4), vr(QB2[qt], 4), vr(Sx, 16)))
    for qt in range(2):
        for r in range(16):
            a("v_mov_b32 %s, 0" % vr(O[qt] + r))
    for r in range(8):
        a("v_mov_b32 %s, 0" % vr(Pp[1] + r))
    for m in range(2):
        for r in range(4):
            a("v_mov_b32 %s, 0" % vr(VF[1][m] + r))
    a("s_mov_b32 %s, 0" % sr(s_cnt))
    assert lg.q == [("k", 1)] * 3, lg.q

    def half_e(Sb, r0, Pb, p0, mf):
        e = lambda r: a("v_exp_f32 %s, %s" % (vr(Sb + r), vr(Sb + r)))
        c = lambda k: a("v_cvt_pk_bf16_f32 %s, %s, %s" % (vr(Pb + p0 + k), vr(Sb + r0 + 2 * k), vr(Sb + r0 + 2 * k + 1)))
        VAR = os.environ.get("AVAR", "")
        if "m" in VAR:
            mf = ["s_nop 0", "s_nop 0"]
        if "e" in VAR:
            e = lambda r: None
        if "c" in VAR:
            c = lambda k: None
        a(mf[0])
        e(r0); e(r0 + 1); e(r0 + 2); e(r0 + 3); c(0)
        a(mf[1])
        e(r0 + 4); c(1); e(r0 + 5); e(r0 + 6); e(r0 + 7); c(2); c(3)

    if cfg.get("prof"):
        a("s_memtime s[40:41]")
        a("s_memrealtime s[50:51]")
        a("s_waitcnt lgkmcnt(0)")
    lloop = a.newlabel("ALOOP")
    a.flush()
    a.label(lloop)
    for t in range(16):
        par = t & 1
        kt = t % 4
        buf = (t // 4) % 4
        if kt == 0:
            wr_chunk((buf + 1) % 4)
            ld_chunk()
        rd_v(t, par)
        half_e(S[0][par], 0, Pp[0], 0,
               ["v_mfma_f32_32x32x16_bf16 %s, %s, %s, %s" % (vr(O[1], 16), vr(VF[1 - par][m], 4), vr(Pp[1] + 4 * m, 4), vr(O[1], 16)) for m in range(2)])
        lg.wait(("k", 1 - par))
        Sn = S[0][1 - par]
        half_e(S[0][par], 8, Pp[0], 4,
               ["v_mfma_f32_32x32x16_bf16 %s, %s, %s, 0" % (vr(Sn, 16), vr(KA1[1 - par], 4), vr(QB1[0], 4)),
                "v_mfma_f32_32x32x16_bf16 %s, %s, %s, %s" % (vr(Sn, 16), vr(KA2[1 - par], 4), vr(QB2[0], 4), vr(Sn, 16))])
        rd_k(t + 2, par)
        lg.wait(("v", par))
        half_e(S[1][par], 0, Pp[1], 0,
               ["v_mfma_f32_32x32x16_bf16 %s, %s, %s, %s" % (vr(O[0], 16), vr(VF[par][m], 4), vr(Pp[0] + 4 * m, 4), vr(O[0], 16)) for m in range(2)])
        Sn = S[1][1 - par]
        half_e(S[1][par], 8, Pp[1], 4,
               ["v_mfma_f32_32x32x16_bf16 %s, %s, %s, 0" % (vr(Sn, 16), vr(KA1[1 - par], 4), vr(QB1[1], 4)),
                "v_mfma_f32_32x32x16_bf16 %s, %s, %s, %s" % (vr(Sn, 16), vr(KA2[1 - par], 4), vr(QB2[1], 4), vr(Sn, 16))])
        if kt == 1:
            lg.wait("wr")
            a("s_barrier")
    assert lg.q == [("k", 1)] * 3, lg.q
    a("s_add_u32 %s, %s, 1" % (sr(s_cnt), sr(s_cnt)))
    a("s_cmp_lt_u32 %s, 4" % sr(s_cnt))
    a.flush()
    a("s_cbranch_scc1 %s" % lloop)
    if cfg.get("prof"):
        a("s_memtime s[42:43]")
        a("s_memrealtime s[52:53]")
        a("s_load_dwordx2 s[44:45], s[0:1], 96")
        a("s_waitcnt lgkmcnt(0)")
        a("s_sub_u32 s42, s42, s40")
        a("s_sub_u32 s52, s52, s50")
        a("s_mov_b32 s46, 256")
        a("s_mov_b32 s47, 0x00020000")
        a("v_mov_b32 %s, s42" % vr(t0))
        a("v_lshlrev_b32 %s, 2, s2" % vr(t1))
        a("v_cmp_eq_u32 vcc, 0, v0")
        a("s_and_saveexec_b64 s[48:49], vcc")
        a("buffer_store_dword %s, %s, s[44:47], 0 offen" % (vr(t0), vr(t1)))
        a("v_mov_b32 %s, s52" % vr(t0))
        a("buffer_store_dword %s, %s, s[44:47], 0 offen offset:128" % (vr(t0), vr(t1)))
        a("s_mov_b64 exec, s[48:49]")
    for m in range(2):
        a("v_mfma_f32_32x32x16_bf16 %s, %s, %s, %s" % (vr(O[1], 16), vr(VF[1][m], 4), vr(Pp[1] + 4 * m, 4), vr(O[1], 16)))
    a("s_waitcnt vmcnt(0) lgkmcnt(0)")
    a("s_cmp_lg_u32 %s, 0" % sr(s_mode))
    a("s_cbranch_scc1 %s" % lstore)
    a("s_mov_b64 %s, 0" % sr(st + 10, 2))
    for qt in range(2):
        Ox = O[qt]
        a("v_mul_f32 %s, 0, %s" % (vr(t0), vr(Ox)))
        for r in range(1, 11):
            a("v_fma_f32 %s, %s, 0, %s" % (vr(t0), vr(Ox + r), vr(t0)))
        a("v_cmp_eq_f32 vcc, 0, %s" % vr(t0))
        a("s_andn2_b64 %s, exec, vcc" % sr(st + 12, 2))
        a("s_or_b64 %s, %s, %s" % (sr(st + 10, 2), sr(st + 10, 2), sr(st + 12, 2)))
        a("v_mov_b32 %s, 0x%x" % (vr(t1), 0xff800000 if os.environ.get("AFORCE") else 0x71800000))
        a("v_cmp_lt_f32 vcc, %s, %s" % (vr(Ox + 10), vr(t1)))
        a("s_andn2_b64 %s, exec, vcc" % sr(st + 12, 2))
        a("s_or_b64 %s, %s, %s" % (sr(st + 10, 2), sr(st + 10, 2), sr(st + 12, 2)))
    a("s_cmp_lg_u64 %s, 0" % sr(st + 10, 2))
    a("s_cselect_b32 %s, 1, 0" % sr(st + 10))
    a("v_mov_b32 %s, %s" % (vr(t0), sr(st + 10)))
    a("v_lshrrev_b32 %s, 6, v0" % vr(t1))
    a("v_lshlrev_b32 %s, 2, %s" % (vr(t1), vr(t1)))
    a("ds_write_b32 %s, %s offset:256" % (vr(t1), vr(t0)))
    a("s_waitcnt lgkmcnt(0)")
    a("s_barrier")
    a("v_mov_b32 %s, 0" % vr(t1))
    a("ds_read_b128 %s, %s offset:256" % (vr(S[0][0], 4), vr(t1)))
    a("s_waitcnt lgkmcnt(0)")
    a("v_or_b32 %s, %s, %s" % (vr(t0), vr(S[0][0]), vr(S[0][0] + 1)))
    a("v_or3_b32 %s, %s, %s, %s" % (vr(t0), vr(t0), vr(S[0][0] + 2), vr(S[0][0] + 3)))
    a("v_readfirstlane_b32 %s, %s" % (sr(st + 10), vr(t0)))
    a("s_cmp_lg_u32 %s, 0" % sr(st + 10))
    a("s_cbranch_scc1 %s" % lfall)
    a.flush()
    a.label(lstore)
    a("v_bfe_u32 %s, v0, 5, 1" % vr(t0))
    a("v_lshl_add_u32 %s, %s, 3, %s" % (vr(vOa), vr(t0), vr(vOa)))
    a("s_mul_i32 %s, %s, 36" % (sr(st + 3), sr(s_head)))
    for qt in range(2):
        Ox = O[qt]
        a("v_mov_b32 %s, %s" % (vr(t1), vr(Ox + 10)))
        a("v_mov_b32 %s, %s" % (vr(t2), vr(Ox + 10)))
        a("v_permlane32_swap_b32 %s, %s" % (vr(t1), vr(t2)))
        a("v_rcp_f32 %s, %s" % (vr(t1), vr(t1)))
        for r in range(10):
            a("v_mul_f32 %s, %s, %s" % (vr(Ox + r), vr(t1), vr(Ox + r)))
        for p_ in range(5):
            a("v_cvt_pk_bf16_f32 %s, %s, %s" % (vr(Ox + p_), vr(Ox + 2 * p_), vr(Ox + 2 * p_ + 1)))
        a("buffer_store_dwordx2 %s, %s, %s, %s offen" % (vr(Ox, 2), vr(vOa), sr(sO, 4), sr(st + 3)))
        a("buffer_store_dwordx2 %s, %s, %s, %s offen offset:16" % (vr(Ox + 2, 2), vr(vOa), sr(sO, 4), sr(st + 3)))
        a("s_mov_b64 exec, %s" % sr(s_hm, 2))
        a("buffer_store_dword %s, %s, %s, %s offen offset:32" % (vr(Ox + 4), vr(vOa), sr(sO, 4), sr(st + 3)))
        a("s_mov_b64 exec, -1")
        a("s_add_u32 %s, %s, %d" % (sr(st + 3), sr(st + 3), 32 * 1152))
    tl_end(a)
    a("s_endpgm")
    a.label(lfall)
    lg = VmQ(a, "lgkmcnt")
    a("s_barrier")
    for qt in range(2):
        a("v_mov_b32 %s, 0" % vr(QB2[qt] + 1))
        a("v_mov_b32 %s, 0xff800000" % vr(O[qt]))
    a("s_mov_b32 %s, 0" % sr(s_goff))
    ld_chunk()
    wr_chunk(0)
    ld_chunk()
    a("s_waitcnt lgkmcnt(0)")
    lg.q = []
    a("s_barrier")
    rd_k(0, 0)
    rd_k(1, 1)
    a("s_mov_b32 %s, 0" % sr(s_cnt))
    lml = a.newlabel("AMAX")
    a.flush()
    a.label(lml)
    for t in range(16):
        par, kt, buf = t & 1, t % 4, (t // 4) % 4
        if kt == 0:
            wr_chunk((buf + 1) % 4)
            ld_chunk()
        lg.wait(("k", par))
        for qt in range(2):
            Sx = S[qt][0]
            a("v_mfma_f32_32x32x16_bf16 %s, %s, %s, 0" % (vr(Sx, 16), vr(KA1[par], 4), vr(QB1[qt], 4)))
            a("v_mfma_f32_32x32x16_bf16 %s, %s, %s, %s" % (vr(Sx, 16), vr(KA2[par], 4), vr(QB2[qt], 4), vr(Sx, 16)))
        for qt in range(2):
            Sx = S[qt][0]
            for r in range(0, 16, 2):
                a("v_max3_f32 %s, %s, %s, %s" % (vr(O[qt]), vr(O[qt]), vr(Sx + r), vr(Sx + r + 1)))
        rd_k(t + 2, par)
        if kt == 1:
            lg.wait("wr")
            a("s_barrier")
    a("s_add_u32 %s, %s, 1" % (sr(s_cnt), sr(s_cnt)))
    a("s_cmp_lt_u32 %s, 4" % sr(s_cnt))
    a.flush()
    a("s_cbranch_scc1 %s" % lml)
    a("s_waitcnt vmcnt(0) lgkmcnt(0)")
    for qt in range(2):
        a("v_mov_b32 %s, %s" % (vr(t0), vr(O[qt])))
        a("v_mov_b32 %s, %s" % (vr(t1), vr(O[qt])))
        a("v_permlane32_swap_b32 %s, %s" % (vr(t0), vr(t1)))
        a("v_max_f32 %s, %s, %s" % (vr(t0), vr(t0), vr(t1)))
        set_m(a, QB2[qt] + 1, t0, t1, t2, s_hm)
    a("s_mov_b32 %s, 1" % sr(s_mode))
    a("s_barrier")
    a.flush()
    a("s_branch %s" % lpass2)


def set_m(a, dst, vM, t1, t2, s_hm):
    a("v_cvt_pk_bf16_f32 %s, %s, %s" % (vr(t1), vr(vM), vr(vM)))
    a("v_lshlrev_b32 %s, 16, %s" % (vr(t1), vr(t1)))
    a("v_sub_f32 %s, %s, %s" % (vr(t2), vr(vM), vr(t1)))
    a("v_cvt_pk_bf16_f32 %s, -%s, -%s" % (vr(t2), vr(t1), vr(t2)))
    a("v_cndmask_b32 %s, 0, %s, %s" % (vr(dst), vr(t2), sr(s_hm, 2)))


def kernel_attn(a, name):
    a.raw(".globl %s" % name)
    a.raw(".p2align 8")
    a.raw(".type %s,@function" % name)
    a.label(name)
    lend = a.newlabel("END")
    a("s_cmp_ge_u32 s2, 256")
    a("s_cbranch_scc1 %s" % lend)
    a("s_load_dwordx2 s[24:25], s[0:1], 104")
    a("s_waitcnt lgkmcnt(0)")
    make_srd(a, 4, 24, 1728 * 4096, WS_QKVT)
    make_srd(a, 8, 24, 2048 * 1152, WS_O)
    a("s_and_b32 s26, s2, 7")
    a("s_lshr_b32 s27, s2, 3")
    a("s_and_b32 s27, s27, 3")
    a("s_lshl_b32 s27, s27, 3")
    a("s_add_u32 s26, s26, s27")
    a("s_lshr_b32 s27, s2, 5")
    a("s_lshl_b32 s27, s27, 8")
    c = dict(sW=4, sO=8, s_head=26, s_q0=27, s_tmp=28, prof=PROF)
    a("s_mul_i32 s30, s26, 18")
    a("s_add_u32 s30, s30, 576")
    attn_role(a, c)
    a.label(lend)
    a("s_endpgm")
    return dict(name=name, grid=256, lds=c["lds_bytes"], vgprs=c["vgprs"])


def prep_role(a, cfg):
    s_wg = cfg["s_wg"]
    a("s_load_dwordx2 s[20:21], s[0:1], 0")
    a("s_load_dwordx2 s[22:23], s[0:1], 80")
    a("s_load_dwordx2 s[24:25], s[0:1], 104")
    a("v_lshrrev_b32 v1, 6, v0")
    a("v_readfirstlane_b32 s26, v1")
    a("s_waitcnt lgkmcnt(0)")
    make_srd(a, 4, 20, 2048 * 1152)
    make_srd(a, 8, 24, 576 * 4096, WS_XT)
    make_srd(a, 12, 24, 8192, WS_G)
    a("s_mul_i32 s27, s26, 288")
    a("s_add_u32 s22, s22, s27")
    a("s_addc_u32 s23, s23, 0")
    for i in range(9):
        a("s_load_dwordx8 s[%d:%d], s[22:23], %d" % (28 + 8 * i, 35 + 8 * i, 32 * i))
    a("v_and_b32 v1, 63, v0")
    a("s_lshl_b32 s16, %s, 6" % sr(s_wg))
    a("v_add_u32 v1, s16, v1")
    a("v_mul_u32_u24 v2, 1152, v1")
    a("v_add_u32 v2, s27, v2")
    for i in range(18):
        a("buffer_load_dwordx4 v[%d:%d], v2, s[4:7], 0 offen offset:%d" % (16 + 4 * i, 19 + 4 * i, 16 * i))
    a("s_mul_i32 s17, s26, %d" % (144 * 4096))
    a("v_lshlrev_b32 v3, 1, v1")
    a("v_add_u32 v3, s17, v3")
    a("v_mov_b32 v4, 0")
    a("s_waitcnt lgkmcnt(0)")
    for r in range(72):
        if r % 4 == 0:
            a("s_waitcnt vmcnt(%d)" % (17 - r // 4))
        x = 16 + r
        a("s_mov_b32 s18, 0x%x" % (2 * r * 4096))
        a("buffer_store_short v%d, v3, s[8:11], s18 offen" % x)
        a("s_mov_b32 s19, 0x%x" % ((2 * r + 1) * 4096))
        a("buffer_store_short_d16_hi v%d, v3, s[8:11], s19 offen" % x)
        a("v_lshlrev_b32 v5, 16, v%d" % x)
        a("v_and_b32 v6, 0xffff0000, v%d" % x)
        a("s_lshl_b32 s18, s%d, 16" % (28 + r))
        a("s_and_b32 s19, s%d, 0xffff0000" % (28 + r))
        a("v_mul_f32 v5, s18, v5")
        a("v_mul_f32 v6, s19, v6")
        a("v_cvt_pk_bf16_f32 v7, v5, v6")
        a("v_lshlrev_b32 v5, 16, v7")
        a("v_and_b32 v6, 0xffff0000, v7")
        a("v_add_f32 v4, v4, v5")
        a("v_add_f32 v4, v4, v6")
    a("v_lshlrev_b32 v5, 2, v0")
    a("ds_write_b32 v5, v4")
    a("s_waitcnt lgkmcnt(0)")
    a("s_barrier")
    lskip = a.newlabel("PREPX")
    a("s_cmp_lg_u32 s26, 0")
    a("s_cbranch_scc1 %s" % lskip)
    a("ds_read_b32 v6, v5")
    a("ds_read_b32 v7, v5 offset:256")
    a("ds_read_b32 v8, v5 offset:512")
    a("ds_read_b32 v9, v5 offset:768")
    a("s_waitcnt lgkmcnt(0)")
    a("v_add_f32 v6, v6, v7")
    a("v_add_f32 v8, v8, v9")
    a("v_add_f32 v6, v6, v8")
    a("v_cvt_pk_bf16_f32 v6, v6, v6")
    a("v_and_b32 v6, 0xffff0000, v6")
    a("v_mul_f32 v6, 0xbfb8aa3b, v6")
    a("v_exp_f32 v6, v6")
    a("v_add_f32 v6, 1.0, v6")
    a("v_rcp_f32 v6, v6")
    a("v_cvt_pk_bf16_f32 v6, v6, v6")
    a("v_and_b32 v6, 0xffff0000, v6")
    a("v_lshlrev_b32 v7, 2, v1")
    a("buffer_store_dword v6, v7, s[12:15], 0 offen")
    a.label(lskip)
    a("s_waitcnt vmcnt(0)")
    cfg["vgprs"] = 88
    cfg["lds_bytes"] = 1024


def prep_role3(a, cfg):
    s_wg = cfg["s_wg"]
    a("s_load_dwordx2 s[20:21], s[0:1], 0")
    a("s_load_dwordx2 s[22:23], s[0:1], 80")
    a("s_load_dwordx2 s[24:25], s[0:1], 104")
    a("v_lshrrev_b32 v1, 6, v0")
    a("v_readfirstlane_b32 s26, v1")
    a("s_lshr_b32 s17, %s, 5" % sr(s_wg))
    a("s_and_b32 s16, %s, 31" % sr(s_wg))
    a("s_lshl_b32 s16, s16, 6")
    a("s_mul_i32 s27, s26, 96")
    a("s_mul_i32 s18, s17, 384")
    a("s_add_u32 s27, s27, s18")
    a("s_waitcnt lgkmcnt(0)")
    make_srd(a, 4, 20, 2048 * 1152)
    make_srd(a, 8, 24, 576 * 4096, WS_XT)
    make_srd(a, 12, 24, 3 * 8192, WS_G + 65536)
    a("s_add_u32 s22, s22, s27")
    a("s_addc_u32 s23, s23, 0")
    for i in range(3):
        a("s_load_dwordx8 s[%d:%d], s[22:23], %d" % (28 + 8 * i, 35 + 8 * i, 32 * i))
    a("v_and_b32 v1, 63, v0")
    a("v_add_u32 v1, s16, v1")
    a("v_mul_u32_u24 v2, 1152, v1")
    a("v_add_u32 v2, s27, v2")
    for i in range(6):
        a("buffer_load_dwordx4 v[%d:%d], v2, s[4:7], 0 offen offset:%d" % (16 + 4 * i, 19 + 4 * i, 16 * i))
    a("s_lshl_b32 s19, s27, 11")
    a("v_lshlrev_b32 v3, 1, v1")
    a("v_add_u32 v3, s19, v3")
    a("v_mov_b32 v4, 0")
    a("s_waitcnt lgkmcnt(0)")
    for r in range(24):
        if r % 4 == 0:
            a("s_waitcnt vmcnt(%d)" % (5 - r // 4))
        x = 16 + r
        a("s_mov_b32 s18, 0x%x" % (2 * r * 4096))
        a("buffer_store_short v%d, v3, s[8:11], s18 offen" % x)
        a("s_mov_b32 s19, 0x%x" % ((2 * r + 1) * 4096))
        a("buffer_store_short_d16_hi v%d, v3, s[8:11], s19 offen" % x)
        a("v_lshlrev_b32 v5, 16, v%d" % x)
        a("v_and_b32 v6, 0xffff0000, v%d" % x)
        a("s_lshl_b32 s18, s%d, 16" % (28 + r))
        a("s_and_b32 s19, s%d, 0xffff0000" % (28 + r))
        a("v_mul_f32 v5, s18, v5")
        a("v_mul_f32 v6, s19, v6")
        a("v_cvt_pk_bf16_f32 v7, v5, v6")
        a("v_lshlrev_b32 v5, 16, v7")
        a("v_and_b32 v6, 0xffff0000, v7")
        a("v_add_f32 v4, v4, v5")
        a("v_add_f32 v4, v4, v6")
    a("v_lshlrev_b32 v5, 2, v0")
    a("ds_write_b32 v5, v4")
    a("s_waitcnt lgkmcnt(0)")
    a("s_barrier")
    lskip = a.newlabel("PREPX")
    a("s_cmp_lg_u32 s26, 0")
    a("s_cbranch_scc1 %s" % lskip)
    a("ds_read_b32 v6, v5")
    a("ds_read_b32 v7, v5 offset:256")
    a("ds_read_b32 v8, v5 offset:512")
    a("ds_read_b32 v9, v5 offset:768")
    a("s_waitcnt lgkmcnt(0)")
    a("v_add_f32 v6, v6, v7")
    a("v_add_f32 v8, v8, v9")
    a("v_add_f32 v6, v6, v8")
    a("v_lshlrev_b32 v7, 2, v1")
    a("s_lshl_b32 s17, s17, 13")
    a("buffer_store_dword v6, v7, s[12:15], s17 offen")
    a.label(lskip)
    a("s_waitcnt vmcnt(0)")
    cfg["vgprs"] = 40
    cfg["lds_bytes"] = 1024


def gate_role(a, cfg):
    s_wg = cfg["s_wg"]
    a("s_load_dwordx2 s[24:25], s[0:1], 104")
    a("s_waitcnt lgkmcnt(0)")
    make_srd(a, 4, 24, 3 * 8192, WS_G + 65536)
    make_srd(a, 8, 24, 8192, WS_G)
    a("s_lshl_b32 s16, %s, 10" % sr(s_wg))
    a("v_lshl_add_u32 v1, v0, 2, s16")
    a("buffer_load_dword v6, v1, s[4:7], 0 offen")
    a("s_mov_b32 s17, 8192")
    a("buffer_load_dword v7, v1, s[4:7], s17 offen")
    a("s_mov_b32 s18, 16384")
    a("buffer_load_dword v8, v1, s[4:7], s18 offen")
    a("s_waitcnt vmcnt(0)")
    a("v_add_f32 v6, v6, v7")
    a("v_add_f32 v6, v6, v8")
    a("v_cvt_pk_bf16_f32 v6, v6, v6")
    a("v_and_b32 v6, 0xffff0000, v6")
    a("v_mul_f32 v6, 0xbfb8aa3b, v6")
    a("v_exp_f32 v6, v6")
    a("v_add_f32 v6, 1.0, v6")
    a("v_rcp_f32 v6, v6")
    a("v_cvt_pk_bf16_f32 v6, v6, v6")
    a("v_and_b32 v6, 0xffff0000, v6")
    a("buffer_store_dword v6, v1, s[8:11], 0 offen")
    a("s_waitcnt vmcnt(0)")


def kernel_prep(a, name):
    a.raw(".globl %s" % name)
    a.raw(".p2align 8")
    a.raw(".type %s,@function" % name)
    a.label(name)
    lend = a.newlabel("END")
    a("s_cmp_ge_u32 s2, 32")
    a("s_cbranch_scc1 %s" % lend)
    c = dict(s_wg=2)
    prep_role(a, c)
    a.label(lend)
    a("s_endpgm")
    return dict(name=name, grid=32, lds=c["lds_bytes"], vgprs=c["vgprs"])


def hi_rows():
    rows = []
    for c in range(2):
        for r in range(8):
            rows.append(128 * c + r)
    for c in (2, 3):
        for r in (0, 2, 4, 6):
            rows.append(128 * c + r)
    for c in (4, 5, 6, 7):
        for r in (0, 4):
            rows.append(128 * c + r)
    for c in range(8, 16):
        rows.append(128 * c)
    rows.append(2048)
    while len(rows) < 48:
        rows.append(0)
    return rows


LOG2E = f32bits(1.4426950408889634)
INV2PI = f32bits(0.15915494309189535)


def kgen_role(a, cfg):
    s_wg = cfg["s_wg"]
    if os.environ.get("KPRIO"):
        a("s_setprio %s" % os.environ["KPRIO"])
    a("s_load_dwordx8 s[20:27], s[0:1], 32")
    a("s_load_dwordx2 s[28:29], s[0:1], 64")
    a("s_load_dwordx2 s[30:31], s[0:1], 104")
    a("v_lshrrev_b32 v3, 6, v0")
    a("v_readfirstlane_b32 s40, v3")
    a("s_lshl_b32 s41, %s, 2" % sr(s_wg))
    a("s_add_u32 s41, s41, s40")
    a("s_waitcnt lgkmcnt(0)")
    for i in range(4):
        make_srd(a, 4 + 4 * i, 20 + 2 * i, 576 * 256)
    a("s_lshr_b32 s32, s41, 1")
    a("s_lshl_b32 s32, s32, 2")
    a("s_load_dword s33, s[28:29], s32")
    a("v_and_b32 v1, 15, v0")
    a("v_bfe_u32 v2, v0, 4, 2")
    a("v_and_b32 v13, 63, v0")
    a("v_lshlrev_b32 v4, 2, v13")
    a("s_lshl_b32 s34, s41, 8")
    a("v_add_u32 v4, s34, v4")
    X, Y = 64, 80
    for i in range(4):
        a("buffer_load_dword v%d, v4, s[%d:%d], 0 offen" % (Y + i, 4 + 4 * i, 7 + 4 * i))
    a("v_lshrrev_b32 v5, 3, v1")
    a("v_lshlrev_b32 v5, 7, v5")
    a("v_and_b32 v6, 7, v1")
    a("v_add_u32 v5, v5, v6")
    a("v_cvt_f32_u32 v8, v5")
    a("v_lshrrev_b32 v5, 2, v1")
    a("v_add_u32 v5, 2, v5")
    a("v_lshlrev_b32 v5, 7, v5")
    a("v_and_b32 v6, 3, v1")
    a("v_lshl_add_u32 v5, v6, 1, v5")
    a("v_lshrrev_b32 v6, 1, v1")
    a("v_lshlrev_b32 v6, 7, v6")
    a("v_and_b32 v7, 1, v1")
    a("v_lshl_add_u32 v6, v7, 2, v6")
    a("v_cmp_gt_u32 vcc, 8, v1")
    a("v_cndmask_b32 v5, v6, v5, vcc")
    a("v_cvt_f32_u32 v9, v5")
    a("v_add_u32 v5, 8, v1")
    a("v_lshlrev_b32 v5, 7, v5")
    a("v_cmp_ge_u32 vcc, 8, v1")
    a("v_cndmask_b32 v5, 0, v5, vcc")
    a("v_cvt_f32_u32 v10, v5")
    a("v_lshlrev_b32 v5, 3, v1")
    a("v_cvt_f32_u32 v11, v5")
    for mt in range(3):
        for i in range(4):
            a("v_mov_b32 v%d, 0" % (48 + 4 * mt + i))
    a("s_waitcnt lgkmcnt(0)")
    a("s_and_b32 s35, s41, 1")
    a("s_lshl_b32 s36, s33, 16")
    a("s_and_b32 s37, s33, 0xffff0000")
    a("s_cmp_eq_u32 s35, 0")
    a("s_cselect_b32 s36, s36, s37")
    a("v_mov_b32 v12, 0x%x" % LOG2E)
    a("v_mul_f32 v12, s36, v12")
    a("v_exp_f32 v12, v12")
    a("v_cvt_pk_bf16_f32 v12, v12, v12")
    a("v_lshlrev_b32 v12, 16, v12")

    def cexp(p, o, P):
        a("v_mul_f32 v%d, v%d, %s" % (o, P, p))
        a("v_mul_f32 v%d, v%d, %s" % (o + 1, P + 1, p))
        a("v_exp_f32 v%d, v%d" % (o, o))
        a("v_fract_f32 v%d, v%d" % (o + 1, o + 1))
        a("v_sin_f32 v%d, v%d" % (o + 2, o + 1))
        a("v_cos_f32 v%d, v%d" % (o + 1, o + 1))

    a("s_waitcnt vmcnt(0)")
    for h in range(2):
        def unpack(dst, r):
            if h:
                a("v_and_b32 %s, 0xffff0000, v%d" % (dst, r))
            else:
                a("v_lshlrev_b32 %s, 16, v%d" % (dst, r))
        o = 64 + 4 * h
        unpack("v%d" % o, Y)
        unpack("v%d" % (o + 1), Y + 1)
        unpack("v%d" % (o + 2), Y + 2)
        unpack("v%d" % (o + 3), Y + 3)
        a("v_mul_f32 v%d, 0x%x, v%d" % (o, LOG2E, o))
        a("v_mul_f32 v%d, v%d, v12" % (o + 1, o + 1))
        a("v_exp_f32 v%d, v%d" % (o, o))
        a("v_mul_f32 v%d, 0x%x, v%d" % (o + 1, INV2PI, o + 1))
        a("v_mul_f32 v%d, v%d, v12" % (o + 2, o + 2))
        a("v_mul_f32 v%d, v%d, v12" % (o + 3, o + 3))
        a("v_cvt_pk_bf16_f32 v%d, v%d, v%d" % (o, o, o))
        a("v_lshlrev_b32 v%d, 16, v%d" % (o, o))
        a("v_mul_f32 v%d, v%d, v12" % (o, o))
        a("v_mul_f32 v%d, 0x%x, v%d" % (o, LOG2E | 0x80000000, o))
    a("s_lshl_b32 s43, s40, 11")
    a("s_add_u32 s43, s43, 12288")
    a("v_lshl_add_u32 v4, v13, 5, s43")
    a("ds_write_b128 v4, v[64:67]")
    a("ds_write_b128 v4, v[68:71] offset:16")
    a("v_lshl_add_u32 v4, v2, 9, s43")
    a("s_mov_b32 s43, 0")
    a("s_waitcnt lgkmcnt(0)")
    lk = a.newlabel("KLOOP")
    a.flush()
    a.label(lk)
    for i in range(8):
        a("ds_read_b128 v[%d:%d], v4 offset:%d" % (64 + 4 * i, 67 + 4 * i, 16 * i))
    a("v_add_u32 v4, 128, v4")
    a("s_add_u32 s43, s43, 16")
    for st_ in range(8):
        a("s_waitcnt lgkmcnt(%d)" % (7 - st_))
        P = 64 + 4 * st_
        cexp("v11", 32, P)
        for mt in range(3):
            cexp("v%d" % (8 + mt), 20 + 4 * mt, P)
        a("v_mul_f32 v44, v%d, v33" % (P + 2))
        a("v_fma_f32 v44, -v%d, v34, v44" % (P + 3))
        a("v_mul_f32 v44, v44, v32")
        a("v_mul_f32 v45, v%d, v34" % (P + 2))
        a("v_fma_f32 v45, v%d, v33, v45" % (P + 3))
        a("v_mul_f32 v45, -v45, v32")
        for mt in range(3):
            o = 20 + 4 * mt
            a("v_mul_f32 v%d, v%d, v%d" % (o + 1, o, o + 1))
            a("v_mul_f32 v%d, v%d, v%d" % (o + 2, o, o + 2))
        for mt in range(3):
            o = 20 + 4 * mt
            D = "v[%d:%d]" % (48 + 4 * mt, 51 + 4 * mt)
            a("v_mfma_f32_16x16x4_f32 %s, v%d, v44, %s" % (D, o + 1, D))
            a("v_mfma_f32_16x16x4_f32 %s, v%d, v45, %s" % (D, o + 2, D))
    a("s_cmp_lt_u32 s43, 64")
    a.flush()
    a("s_cbranch_scc1 %s" % lk)
    a("s_mul_i32 s42, s40, 3072")
    a("v_lshlrev_b32 v5, 8, v2")
    a("v_lshl_add_u32 v5, v1, 2, v5")
    a("v_add_u32 v5, s42, v5")
    for mt in range(3):
        for i in range(4):
            a("v_mul_f32 v%d, 2.0, v%d" % (48 + 4 * mt + i, 48 + 4 * mt + i))
            a("ds_write_b32 v5, v%d offset:%d" % (48 + 4 * mt + i, (16 * mt + i) * 64))
    a("v_and_b32 v13, 63, v0")
    a("v_lshlrev_b32 v5, 3, v13")
    a("v_sub_u32 v5, 2047, v5")
    make_srd(a, 4, 30, 576 * KR_STRIDE, WS_KR)
    a("s_mul_i32 s34, s41, %d" % KR_STRIDE)
    a("s_add_u32 s44, s34, 4096")
    a("v_lshlrev_b32 v14, 4, v13")
    a("s_waitcnt vmcnt(0) lgkmcnt(0)")
    le = a.newlabel("KEXP")
    a.flush()
    a.label(le)
    for e in range(8):
        a("v_subrev_u32 v20, %d, v5" % e)
        a("v_cvt_f32_u32 v20, v20")
        a("v_cvt_pk_bf16_f32 v20, v20, v20")
        a("v_lshlrev_b32 v20, 16, v20")
        a("v_cvt_u32_f32 v20, v20")
        a("v_or_b32 v23, 1, v20")
        a("v_ffbh_u32 v23, v23")
        a("v_sub_u32 v23, 24, v23")
        a("v_med3_i32 v23, v23, 0, 3")
        a("v_lshrrev_b32 v21, 7, v20")
        a("v_and_b32 v22, 7, v20")
        a("v_lshrrev_b32 v22, v23, v22")
        a("v_sub_u32 v24, 3, v23")
        a("v_lshlrev_b32 v21, v24, v21")
        a("v_lshl_add_u32 v21, v23, 3, v21")
        a("v_add_u32 v21, v21, v22")
        a("v_bfe_u32 v22, v20, 3, 4")
        a("v_lshl_add_u32 v21, v21, 4, v22")
        a("v_lshl_add_u32 v21, v21, 2, s42")
        a("ds_read_b32 v%d, v21" % (64 + e))
    a("v_subrev_u32 v5, 512, v5")
    a("s_waitcnt lgkmcnt(0)")
    for e in range(4):
        a("v_cvt_pk_bf16_f32 v%d, v%d, v%d" % (72 + e, 64 + 2 * e, 65 + 2 * e))
    a("buffer_store_dwordx4 v[72:75], v14, s[4:7], s34 offen")
    a("s_add_u32 s34, s34, 1024")
    a("s_cmp_lt_u32 s34, s44")
    a.flush()
    a("s_cbranch_scc1 %s" % le)
    a("v_mov_b32 v40, 0")
    a("v_mov_b32 v41, 0")
    a("v_mov_b32 v42, 0")
    a("v_mov_b32 v43, 0")
    a("v_cmp_gt_u32 vcc, 8, v13")
    a("s_and_saveexec_b64 s[38:39], vcc")
    a("buffer_store_dwordx4 v[40:43], v14, s[4:7], s34 offen")
    a("s_mov_b64 exec, s[38:39]")
    a("s_waitcnt vmcnt(0)")
    cfg["vgprs"] = 96
    cfg["lds_bytes"] = 20480


def kgen_role2(a, cfg):
    s_wg = cfg["s_wg"]
    a("s_load_dwordx8 s[20:27], s[0:1], 32")
    a("s_load_dwordx2 s[28:29], s[0:1], 64")
    a("s_load_dwordx2 s[30:31], s[0:1], 104")
    a("v_lshrrev_b32 v3, 6, v0")
    a("v_readfirstlane_b32 s40, v3")
    a("s_lshr_b32 s43, s40, 1")
    a("s_and_b32 s44, s40, 1")
    a("s_lshl_b32 s41, %s, 1" % sr(s_wg))
    a("s_add_u32 s41, s41, s43")
    a("s_waitcnt lgkmcnt(0)")
    for i in range(4):
        make_srd(a, 4 + 4 * i, 20 + 2 * i, 576 * 256)
    a("s_lshr_b32 s32, s41, 1")
    a("s_lshl_b32 s32, s32, 2")
    a("s_load_dword s33, s[28:29], s32")
    a("v_and_b32 v1, 15, v0")
    a("v_bfe_u32 v2, v0, 4, 2")
    a("v_lshlrev_b32 v4, 6, v2")
    a("s_lshl_b32 s34, s41, 8")
    a("s_lshl_b32 s45, s44, 5")
    a("s_add_u32 s34, s34, s45")
    a("v_add_u32 v4, s34, v4")
    IN = 64
    for q in range(2):
        for i in range(4):
            a("buffer_load_dwordx4 v[%d:%d], v4, s[%d:%d], 0 offen offset:%d" % (IN + 8 * i + 4 * q, IN + 8 * i + 4 * q + 3, 4 + 4 * i, 7 + 4 * i, 16 * q))
    a("v_lshrrev_b32 v5, 3, v1")
    a("v_lshlrev_b32 v5, 7, v5")
    a("v_and_b32 v6, 7, v1")
    a("v_add_u32 v5, v5, v6")
    a("v_cvt_f32_u32 v8, v5")
    a("v_lshrrev_b32 v5, 2, v1")
    a("v_add_u32 v5, 2, v5")
    a("v_lshlrev_b32 v5, 7, v5")
    a("v_and_b32 v6, 3, v1")
    a("v_lshl_add_u32 v5, v6, 1, v5")
    a("v_lshrrev_b32 v6, 1, v1")
    a("v_lshlrev_b32 v6, 7, v6")
    a("v_and_b32 v7, 1, v1")
    a("v_lshl_add_u32 v6, v7, 2, v6")
    a("v_cmp_gt_u32 vcc, 8, v1")
    a("v_cndmask_b32 v5, v6, v5, vcc")
    a("v_cvt_f32_u32 v9, v5")
    a("v_add_u32 v5, 8, v1")
    a("v_lshlrev_b32 v5, 7, v5")
    a("v_cmp_ge_u32 vcc, 8, v1")
    a("v_cndmask_b32 v5, 0, v5, vcc")
    a("v_cvt_f32_u32 v10, v5")
    a("v_lshlrev_b32 v5, 3, v1")
    a("v_cvt_f32_u32 v11, v5")
    for mt in range(3):
        for i in range(4):
            a("v_mov_b32 v%d, 0" % (48 + 4 * mt + i))
    a("s_waitcnt lgkmcnt(0)")
    a("s_and_b32 s35, s41, 1")
    a("s_lshl_b32 s36, s33, 16")
    a("s_and_b32 s37, s33, 0xffff0000")
    a("s_cmp_eq_u32 s35, 0")
    a("s_cselect_b32 s36, s36, s37")
    a("v_mov_b32 v12, 0x%x" % LOG2E)
    a("v_mul_f32 v12, s36, v12")
    a("v_exp_f32 v12, v12")
    a("v_cvt_pk_bf16_f32 v12, v12, v12")
    a("v_lshlrev_b32 v12, 16, v12")

    def cexp(p, o):
        a("v_mul_f32 v%d, v40, %s" % (o, p))
        a("v_mul_f32 v%d, v41, %s" % (o + 1, p))
        a("v_exp_f32 v%d, v%d" % (o, o))
        a("v_fract_f32 v%d, v%d" % (o + 1, o + 1))
        a("v_sin_f32 v%d, v%d" % (o + 2, o + 1))
        a("v_cos_f32 v%d, v%d" % (o + 1, o + 1))

    for st_ in range(16):
        if st_ % 8 == 0:
            a("s_waitcnt vmcnt(%d)" % (4 if st_ == 0 else 0))

        def unpack(dst, base):
            r = base + st_ // 2
            if st_ & 1:
                a("v_and_b32 %s, 0xffff0000, v%d" % (dst, r))
            else:
                a("v_lshlrev_b32 %s, 16, v%d" % (dst, r))
        unpack("v40", IN)
        unpack("v41", IN + 8)
        unpack("v42", IN + 16)
        unpack("v43", IN + 24)
        a("v_mul_f32 v40, 0x%x, v40" % LOG2E)
        a("v_mul_f32 v41, v41, v12")
        a("v_exp_f32 v40, v40")
        a("v_mul_f32 v41, 0x%x, v41" % INV2PI)
        a("v_mul_f32 v42, v42, v12")
        a("v_mul_f32 v43, v43, v12")
        a("v_cvt_pk_bf16_f32 v40, v40, v40")
        a("v_lshlrev_b32 v40, 16, v40")
        a("v_mul_f32 v40, v40, v12")
        a("v_mul_f32 v40, 0x%x, v40" % (LOG2E | 0x80000000))
        cexp("v11", 32)
        for mt in range(3):
            cexp("v%d" % (8 + mt), 20 + 4 * mt)
        a("v_mul_f32 v44, v42, v33")
        a("v_fma_f32 v44, -v43, v34, v44")
        a("v_mul_f32 v44, v44, v32")
        a("v_mul_f32 v45, v42, v34")
        a("v_fma_f32 v45, v43, v33, v45")
        a("v_mul_f32 v45, -v45, v32")
        for mt in range(3):
            o = 20 + 4 * mt
            a("v_mul_f32 v%d, v%d, v%d" % (o + 1, o, o + 1))
            a("v_mul_f32 v%d, v%d, v%d" % (o + 2, o, o + 2))
        for mt in range(3):
            o = 20 + 4 * mt
            D = "v[%d:%d]" % (48 + 4 * mt, 51 + 4 * mt)
            a("v_mfma_f32_16x16x4_f32 %s, v%d, v44, %s" % (D, o + 1, D))
            a("v_mfma_f32_16x16x4_f32 %s, v%d, v45, %s" % (D, o + 2, D))
    a("s_mul_i32 s42, s40, 3072")
    a("v_lshlrev_b32 v5, 8, v2")
    a("v_lshl_add_u32 v5, v1, 2, v5")
    a("v_add_u32 v6, s42, v5")
    for mt in range(3):
        for i in range(4):
            a("ds_write_b32 v6, v%d offset:%d" % (48 + 4 * mt + i, (16 * mt + i) * 64))
    a("v_and_b32 v13, 63, v0")
    a("v_lshlrev_b32 v7, 3, v13")
    a("s_lshl_b32 s45, s44, 10")
    a("v_sub_u32 v7, 2047, v7")
    a("v_subrev_u32 v7, s45, v7")
    make_srd(a, 4, 30, 576 * KR_STRIDE, WS_KR)
    a("s_mul_i32 s34, s41, %d" % KR_STRIDE)
    a("s_lshl_b32 s45, s44, 11")
    a("s_add_u32 s34, s34, s45")
    a("v_lshlrev_b32 v14, 4, v13")
    a("s_add_u32 s46, s42, %d" % (4 * 3072))
    for it in range(2):
        for e in range(8):
            a("v_subrev_u32 v20, %d, v7" % (e + 512 * it))
            a("v_cvt_f32_u32 v20, v20")
            a("v_cvt_pk_bf16_f32 v20, v20, v20")
            a("v_lshlrev_b32 v20, 16, v20")
            a("v_cvt_u32_f32 v20, v20")
            a("v_or_b32 v23, 1, v20")
            a("v_ffbh_u32 v23, v23")
            a("v_sub_u32 v23, 24, v23")
            a("v_med3_i32 v23, v23, 0, 3")
            a("v_lshrrev_b32 v21, 7, v20")
            a("v_and_b32 v22, 7, v20")
            a("v_lshrrev_b32 v22, v23, v22")
            a("v_sub_u32 v24, 3, v23")
            a("v_lshlrev_b32 v21, v24, v21")
            a("v_lshl_add_u32 v21, v23, 3, v21")
            a("v_add_u32 v21, v21, v22")
            a("v_bfe_u32 v22, v20, 3, 4")
            a("v_lshl_add_u32 v21, v21, 4, v22")
            a("v_lshl_add_u32 v%d, v21, 2, s46" % (96 + 8 * it + e))
    a("s_waitcnt lgkmcnt(0)")
    a("s_barrier")
    a("s_xor_b32 s47, s42, 3072")
    a("s_cmp_lt_u32 s40, 2")
    a("s_cselect_b32 s47, s47, s47")
    a("s_xor_b32 s48, s40, 1")
    a("s_mul_i32 s47, s48, 3072")
    a("v_add_u32 v6, s47, v5")
    for mt in range(3):
        for i in range(4):
            a("ds_read_b32 v%d, v6 offset:%d" % (64 + 4 * mt + i, (16 * mt + i) * 64))
    a("v_add_u32 v6, s46, v5")
    a("s_waitcnt lgkmcnt(0)")
    for mt in range(3):
        for i in range(4):
            a("v_add_f32 v%d, v%d, v%d" % (48 + 4 * mt + i, 48 + 4 * mt + i, 64 + 4 * mt + i))
            a("v_mul_f32 v%d, 2.0, v%d" % (48 + 4 * mt + i, 48 + 4 * mt + i))
            a("ds_write_b32 v6, v%d offset:%d" % (48 + 4 * mt + i, (16 * mt + i) * 64))
    a("s_waitcnt lgkmcnt(0)")
    for it in range(2):
        for e in range(8):
            a("ds_read_b32 v%d, v%d" % (64 + 8 * it + e, 96 + 8 * it + e))
    for it in range(2):
        a("s_waitcnt lgkmcnt(%d)" % (8 if it == 0 else 0))
        for e in range(4):
            a("v_cvt_pk_bf16_f32 v%d, v%d, v%d" % (112 + 4 * it + e, 64 + 8 * it + 2 * e, 65 + 8 * it + 2 * e))
        a("buffer_store_dwordx4 v[%d:%d], v14, s[4:7], s34 offen offset:%d" % (112 + 4 * it, 115 + 4 * it, 1024 * it))
    a("s_cmp_lg_u32 s44, 0")
    lsk = a.newlabel("KGSK")
    a("s_cbranch_scc1 %s" % lsk)
    a("v_mov_b32 v40, 0")
    a("v_mov_b32 v41, 0")
    a("v_mov_b32 v42, 0")
    a("v_mov_b32 v43, 0")
    a("s_add_u32 s34, s34, 4096")
    a("v_cmp_gt_u32 vcc, 8, v13")
    a("s_and_saveexec_b64 s[38:39], vcc")
    a("buffer_store_dwordx4 v[40:43], v14, s[4:7], s34 offen")
    a("s_mov_b64 exec, s[38:39]")
    a.flush()
    a.label(lsk)
    a("s_waitcnt vmcnt(0)")
    cfg["vgprs"] = 128
    cfg["lds_bytes"] = 8 * 3072


def kernel_kgen(a, name):
    a.raw(".globl %s" % name)
    a.raw(".p2align 8")
    a.raw(".type %s,@function" % name)
    a.label(name)
    lend = a.newlabel("END")
    a("s_cmp_ge_u32 s2, 144")
    a("s_cbranch_scc1 %s" % lend)
    c = dict(s_wg=2)
    kgen_role(a, c)
    a.label(lend)
    a("s_endpgm")
    return dict(name=name, grid=288, lds=c["lds_bytes"], vgprs=c["vgprs"])


CU_ROW = 144
CU_SZ = 33 * CU_ROW
KC = 1312
CW = CU_SZ + 8 * KC


def conv_role(a, cfg):
    s_wg = cfg["s_wg"]
    a("s_load_dwordx2 s[22:23], s[0:1], 72")
    a("s_load_dwordx2 s[24:25], s[0:1], 104")
    a("v_lshrrev_b32 v1, 6, v0")
    a("v_readfirstlane_b32 s26, v1")
    a("s_lshl_b32 s27, %s, 2" % sr(s_wg))
    a("s_add_u32 s27, s27, s26")
    a("s_waitcnt lgkmcnt(0)")
    make_srd(a, 4, 24, 576 * KR_STRIDE, WS_KR)
    make_srd(a, 8, 24, 576 * 4096, WS_XT)
    make_srd(a, 12, 24, 576 * 4096, WS_BT)
    a("s_lshr_b32 s28, s27, 1")
    a("s_lshl_b32 s28, s28, 2")
    a("s_load_dword s29, s[22:23], s28")
    a("s_mul_i32 s30, s27, %d" % KR_STRIDE)
    a("s_lshl_b32 s31, s27, 12")
    a("s_mul_i32 s32, s26, %d" % CW)
    a("v_and_b32 v2, 63, v0")
    a("v_lshlrev_b32 v3, 4, v2")
    SG = 120
    a("v_and_b32 v5, 7, v2")
    a("v_lshlrev_b32 v5, 4, v5")
    a("v_lshrrev_b32 v4, 3, v2")
    a("v_lshl_add_u32 v13, v4, 1, v5")
    a("v_mul_u32_u24 v14, %d, v4" % KC)
    a("v_add3_u32 v14, v14, v5, s32")

    def ld_win(w):
        a("s_add_u32 s33, s30, %d" % (2 * (1536 - 512 * w)))
        for k in range(9):
            a("buffer_load_dwordx4 %s, v13, s[4:7], s33 offen offset:%d" % (vr(SG + 4 * k, 4), 128 * k))

    def wr_win():
        for k in range(9):
            a("ds_write_b128 v14, %s offset:%d" % (vr(SG + 4 * k, 4), CU_SZ + 128 * k))

    for k in range(4):
        a("buffer_load_dwordx4 v[%d:%d], v3, s[8:11], s31 offen offset:%d" % (16 + 4 * k, 19 + 4 * k, 1024 * k))
    ld_win(0)
    a("v_cmp_gt_u32 vcc, 8, v2")
    a("s_mov_b64 s[34:35], vcc")
    a("v_mul_u32_u24 v4, %d, v4" % CU_ROW)
    a("v_add3_u32 v4, v4, v5, s32")
    for r in range(4):
        a("v_mov_b32 v%d, 0" % (56 + r))
    a("s_mov_b64 exec, s[34:35]")
    a("ds_write_b128 v4, v[56:59]")
    a("s_mov_b64 exec, -1")
    a("v_and_b32 v6, 31, v2")
    a("v_bfe_u32 v7, v2, 5, 1")
    a("v_and_b32 v8, 7, v6")
    a("v_sub_u32 v8, 7, v8")
    a("v_mul_u32_u24 v8, %d, v8" % KC)
    a("v_lshrrev_b32 v9, 3, v6")
    a("v_sub_u32 v9, v7, v9")
    a("v_lshl_add_u32 v8, v9, 4, v8")
    a("v_add_u32 v8, s32, v8")
    a("v_add_u32 v8, %d, v8" % (CU_SZ + 48))
    a("v_lshlrev_b32 v10, 4, v7")
    a("v_add_u32 v10, s32, v10")
    a("v_mul_u32_u24 v9, %d, v6" % CU_ROW)
    a("v_add_u32 v9, v9, v10")
    a("v_add_u32 v9, %d, v9" % CU_ROW)
    a("s_waitcnt vmcnt(9)")
    for k in range(4):
        a("ds_write_b128 v4, v[%d:%d] offset:%d" % (16 + 4 * k, 19 + 4 * k, CU_ROW + 8 * CU_ROW * k))
    a("s_waitcnt vmcnt(0)")
    wr_win()
    ld_win(1)
    RING = 10
    F0 = 16
    B0 = 56
    AC = 88
    lg = VmQ(a, "lgkmcnt")
    fr = lambda m: vr(F0 + 4 * (m % RING), 4)
    br = lambda par, s_: vr(B0 + 16 * par + 4 * s_, 4)

    def rd_delta(d):
        w = d // 8
        if d > 0:
            a("v_subrev_u32 v9, %d, v9" % CU_ROW)
        a("v_max_i32 v11, v9, v10")
        if d % 8 == 0 and d > 0:
            a("s_waitcnt vmcnt(0)")
            wr_win()
            if w < 3:
                ld_win(w + 1)
        for m in range(4 * d - 1 - (2 if d == 0 else 0), 4 * d + 3):
            a("ds_read_b128 %s, v8 offset:%d" % (fr(m), 960 - 32 * (m - 32 * w))); lg.push(d)
        for s_ in range(4):
            a("ds_read_b128 %s, v11 offset:%d" % (br(d & 1, s_), 32 * s_)); lg.push(d)

    a("s_waitcnt lgkmcnt(0)")
    rd_delta(0)
    for d in range(32):
        if d + 1 < 32:
            rd_delta(d + 1)
        if (d + 1) % 8 == 0 and d + 1 < 32:
            a("s_waitcnt lgkmcnt(15)")
            a("s_waitcnt lgkmcnt(8)")
            lg.q = [x for x in lg.q if x != d]
        else:
            lg.wait(d)
        for s_ in range(4):
            for t in range(2):
                c = "0" if (d == 0 and s_ == 0) else vr(AC + 16 * t, 16)
                a("v_mfma_f32_32x32x16_bf16 %s, %s, %s, %s" % (vr(AC + 16 * t, 16), fr(4 * d + 2 * t - s_), br(d & 1, s_), c))
    a("v_mul_u32_u24 v9, %d, v6" % CU_ROW)
    a("v_lshl_add_u32 v9, v7, 3, v9")
    a("v_add_u32 v9, s32, v9")
    for t in range(2):
        for q in range(4):
            k = 4 * t + q
            a("ds_read_b64 v[%d:%d], v9 offset:%d" % (16 + 2 * k, 17 + 2 * k, CU_ROW + 64 * t + 16 * q))
    a("v_lshlrev_b32 v12, 7, v6")
    a("v_lshl_add_u32 v12, v7, 3, v12")
    a("s_and_b32 s35, s27, 1")
    a("s_lshl_b32 s36, s29, 16")
    a("s_and_b32 s37, s29, 0xffff0000")
    a("s_cmp_eq_u32 s35, 0")
    a("s_cselect_b32 s36, s36, s37")
    a("s_waitcnt lgkmcnt(0)")
    for t in range(2):
        for q in range(4):
            k = 4 * t + q
            for pp in range(2):
                A = AC + 16 * t + 4 * q + 2 * pp
                U = 16 + 2 * k + pp
                a("v_cvt_pk_bf16_f32 v32, v%d, v%d" % (A, A + 1))
                a("v_lshlrev_b32 v33, 16, v%d" % U)
                a("v_and_b32 v34, 0xffff0000, v%d" % U)
                a("v_mul_f32 v33, s36, v33")
                a("v_mul_f32 v34, s36, v34")
                a("v_cvt_pk_bf16_f32 v33, v33, v34")
                a("v_lshlrev_b32 v34, 16, v32")
                a("v_and_b32 v32, 0xffff0000, v32")
                a("v_lshlrev_b32 v35, 16, v33")
                a("v_and_b32 v33, 0xffff0000, v33")
                a("v_add_f32 v34, v34, v35")
                a("v_add_f32 v32, v32, v33")
                a("v_cvt_pk_bf16_f32 v%d, v34, v32" % (A))
            A = AC + 16 * t + 4 * q
            a("v_mov_b32 v%d, v%d" % (A + 1, A + 2))
            a("buffer_store_dwordx2 v[%d:%d], v12, s[12:15], s31 offen offset:%d" % (A, A + 1, 64 * t + 16 * q))
    a("s_waitcnt vmcnt(0)")
    cfg["vgprs"] = 156
    cfg["lds_bytes"] = 4 * CW


def kernel_conv(a, name):
    a.raw(".globl %s" % name)
    a.raw(".p2align 8")
    a.raw(".type %s,@function" % name)
    a.label(name)
    lend = a.newlabel("END")
    a("s_cmp_ge_u32 s2, 144")
    a("s_cbranch_scc1 %s" % lend)
    c = dict(s_wg=2)
    conv_role(a, c)
    a.label(lend)
    a("s_endpgm")
    return dict(name=name, grid=288, lds=c["lds_bytes"], vgprs=c["vgprs"])


def gemm3_pre(a, ctx):
    cfg = ctx["cfg"]
    tm, tn, wn = ctx["tm"], ctx["tn"], ctx["wn"]
    vt0, vt1, vt2, vt3 = ctx["vt"]
    al = ctx["al"]
    s_m0, s_n0 = cfg["s_m0"], cfg["s_n0"]
    G = [[al.get(4, 4) for q in range(4)] for ti in range(tm)]
    Bv = [[[al.get(2, 2) for q in range(4)] for tj in range(tn)] for ti in range(tm)]
    vo = al.get()
    cfg["G"], cfg["Bv"], cfg["vo"] = G, Bv, vo
    a("v_lshrrev_b32 %s, 6, v0" % vr(vt0))
    if wn == 2:
        a("v_lshrrev_b32 %s, 1, %s" % (vr(vt1), vr(vt0)))
        a("v_and_b32 %s, 1, %s" % (vr(vt0), vr(vt0)))
    else:
        a("v_mov_b32 %s, %s" % (vr(vt1), vr(vt0)))
        a("v_mov_b32 %s, 0" % vr(vt0))
    a("v_mul_u32_u24 %s, %d, %s" % (vr(vt0), tn * 32, vr(vt0)))
    a("v_and_b32 %s, 31, v0" % vr(vt2))
    a("v_add3_u32 %s, %s, %s, %s" % (vr(vt0), vr(vt0), vr(vt2), sr(s_n0)))
    a("v_mul_u32_u24 %s, %d, %s" % (vr(vt1), tm * 32, vr(vt1)))
    a("v_bfe_u32 %s, v0, 5, 1" % vr(vt2))
    a("v_lshl_add_u32 %s, %s, 2, %s" % (vr(vt1), vr(vt2), vr(vt1)))
    a("v_add_u32 %s, %s, %s" % (vr(vt1), sr(s_m0), vr(vt1)))
    a("v_lshlrev_b32 %s, 2, %s" % (vr(vt2), vr(vt1)))
    for ti in range(tm):
        for q in range(4):
            a("buffer_load_dwordx4 %s, %s, %s, 0 offen offset:%d" % (vr(G[ti][q], 4), vr(vt2), sr(cfg["sG"], 4), (ti * 32 + 8 * q) * 4))
    a("v_lshlrev_b32 %s, 12, %s" % (vr(vt2), vr(vt0)))
    a("v_lshl_add_u32 %s, %s, 1, %s" % (vr(vt2), vr(vt1), vr(vt2)))
    for ti in range(tm):
        for tj in range(tn):
            a("s_mov_b32 %s, 0x%x" % (sr(cfg["s_tmp"]), tj * 32 * 4096))
            for q in range(4):
                a("buffer_load_dwordx2 %s, %s, %s, %s offen offset:%d" % (vr(Bv[ti][tj][q], 2), vr(vt2), sr(cfg["sBT"], 4), sr(cfg["s_tmp"]), (ti * 32 + 8 * q) * 2))
    a("v_mul_u32_u24 %s, 1152, %s" % (vr(vo), vr(vt1)))
    a("v_lshl_add_u32 %s, %s, 1, %s" % (vr(vo), vr(vt0), vr(vo)))


def gemm3_epi(a, ctx):
    cfg = ctx["cfg"]
    tm, tn = ctx["tm"], ctx["tn"]
    vt0, vt1, vt2, vt3 = ctx["vt"]
    acc = ctx["acc"]
    G, Bv, vo = cfg["G"], cfg["Bv"], cfg["vo"]
    sO = cfg["sO"]
    st = cfg["s_tmp"]
    for ti in range(tm):
        for tj in range(tn):
            A = acc[ti][tj]
            for q in range(4):
                for i in range(4):
                    r = A + 4 * q + i
                    g = G[ti][q] + i
                    b = Bv[ti][tj][q] + (i >> 1)
                    a("v_cvt_pk_bf16_f32 %s, %s, %s" % (vr(r), vr(r), vr(r)))
                    a("v_sub_f32 %s, 1.0, %s" % (vr(vt0), vr(g)))
                    a("v_and_b32 %s, 0xffff0000, %s" % (vr(r), vr(r)))
                    if i & 1:
                        a("v_and_b32 %s, 0xffff0000, %s" % (vr(vt1), vr(b)))
                    else:
                        a("v_lshlrev_b32 %s, 16, %s" % (vr(vt1), vr(b)))
                    a("v_cvt_pk_bf16_f32 %s, %s, %s" % (vr(vt0), vr(vt0), vr(vt0)))
                    a("v_mul_f32 %s, %s, %s" % (vr(r), vr(g), vr(r)))
                    a("v_and_b32 %s, 0xffff0000, %s" % (vr(vt0), vr(vt0)))
                    a("v_mul_f32 %s, %s, %s" % (vr(vt0), vr(vt0), vr(vt1)))
                    a("v_cvt_pk_bf16_f32 %s, %s, %s" % (vr(r), vr(r), vr(vt0)))
                    a("v_lshlrev_b32 %s, 16, %s" % (vr(vt0), vr(r)))
                    a("v_and_b32 %s, 0xffff0000, %s" % (vr(r), vr(r)))
                    a("v_add_f32 %s, %s, %s" % (vr(r), vr(r), vr(vt0)))
                    a("v_cvt_pk_bf16_f32 %s, %s, %s" % (vr(r), vr(r), vr(r)))
                    off = (ti * 32 + 8 * q + i) * 1152 + tj * 64
                    a("s_mov_b32 %s, 0x%x" % (sr(st + 1), off))
                    a("buffer_store_short %s, %s, %s, %s offen" % (vr(r), vr(vo), sr(sO, 4), sr(st + 1)))


def gemm3_role(a, cfg):
    s_wg = cfg["s_wg"]
    a("s_load_dwordx2 s[20:21], s[0:1], 16")
    a("s_load_dwordx2 s[22:23], s[0:1], 88")
    a("s_load_dwordx2 s[24:25], s[0:1], 104")
    a("s_waitcnt lgkmcnt(0)")
    make_srd(a, 4, 24, 2048 * 1152, WS_O)
    make_srd(a, 8, 20, 576 * 1152)
    make_srd(a, 12, 22, 2048 * 1152)
    make_srd(a, 16, 24, 8192, WS_G)
    make_srd(a, 36, 24, 576 * 4096, WS_BT)
    a("s_and_b32 s26, %s, 31" % sr(s_wg))
    a("s_lshl_b32 s26, s26, 6")
    a("s_lshr_b32 s27, %s, 5" % sr(s_wg))
    a("s_lshl_b32 s27, s27, 6")
    c = dict(wm=2, wn=2, tm=1, tn=1, lda=1152, ldb=1152, K=576, sA=4, sB=8, sO=12, sG=16, sBT=36, s_m0=26, s_n0=27, s_tmp=28,
             epi=gemm3_epi, pre=gemm3_pre, P=int(os.environ.get("GP3", "3")), KS=int(os.environ.get("KS3", "64")))
    gemm(a, c)
    a("s_waitcnt vmcnt(0)")
    cfg["vgprs"] = c["vgprs"]
    cfg["lds_bytes"] = c["lds_bytes"]


def kernel_gemm3(a, name):
    a.raw(".globl %s" % name)
    a.raw(".p2align 8")
    a.raw(".type %s,@function" % name)
    a.label(name)
    lend = a.newlabel("END")
    a("s_cmp_ge_u32 s2, 288")
    a("s_cbranch_scc1 %s" % lend)
    c = dict(s_wg=2)
    gemm3_role(a, c)
    a.label(lend)
    a("s_endpgm")
    return dict(name=name, grid=288, lds=c["lds_bytes"], vgprs=c["vgprs"])


TL = int(os.environ.get("TL", "0"))


def tl_start(a):
    if TL:
        a("s_memrealtime s[100:101]")


def tl_end(a):
    if TL:
        a("s_waitcnt vmcnt(0) lgkmcnt(0)")
        a("s_memrealtime s[98:99]")
        a("s_load_dwordx2 s[4:5], s[0:1], 104")
        a("s_waitcnt lgkmcnt(0)")
        a("s_add_u32 s4, s4, 0x4000000")
        a("s_addc_u32 s5, s5, 0")
        a("s_mov_b32 s6, 0x100000")
        a("s_mov_b32 s7, 0x00020000")
        a("v_mov_b32 v4, s100")
        a("v_mov_b32 v5, s98")
        a("v_mov_b32 v3, s2")
        a("v_lshlrev_b32 v3, 3, v3")
        a("v_cmp_eq_u32 vcc, 0, v0")
        a("s_and_saveexec_b64 s[8:9], vcc")
        a("buffer_store_dwordx2 v[4:5], v3, s[4:7], 0 offen")
        a("s_waitcnt vmcnt(0)")

def kstart(a, name):
    a.raw(".globl %s" % name)
    a.raw(".p2align 8")
    a.raw(".type %s,@function" % name)
    a.label(name)


def kernel_L1(a, name):
    kstart(a, name)
    tl_start(a)
    lend, lprep, lkg, lv = a.newlabel("END"), a.newlabel("PREP"), a.newlabel("KGEN"), a.newlabel("VPART")
    a("s_cmp_ge_u32 s2, 240")
    a("s_cbranch_scc1 %s" % lprep)
    a("s_load_dwordx4 s[20:23], s[0:1], 0")
    a("s_load_dwordx2 s[24:25], s[0:1], 104")
    a("s_waitcnt lgkmcnt(0)")
    make_srd(a, 4, 20, 2048 * 1152)
    make_srd(a, 8, 22, 576 * 3456)
    make_srd(a, 12, 24, 1728 * 4096, WS_QKVT)
    a("s_cmp_ge_u32 s2, 144")
    a("s_cbranch_scc1 %s" % lv)
    a("s_and_b32 s26, s2, 15")
    a("s_lshl_b32 s26, s26, 7")
    a("s_lshr_b32 s27, s2, 4")
    a("s_lshl_b32 s27, s27, 7")
    c1 = dict(wm=2, wn=2, tm=2, tn=2, lda=1152, ldb=3456, K=576, sA=4, sB=8, sO=12, s_m0=26, s_n0=27, s_tmp=28,
              epi=epi_gemm1("qk"))
    gemm(a, c1)
    tl_end(a)
    a("s_endpgm")
    a.label(lv)
    a("s_sub_u32 s27, s2, 144")
    a("s_and_b32 s26, s27, 15")
    a("s_lshl_b32 s26, s26, 7")
    a("s_lshr_b32 s27, s27, 4")
    a("s_mul_i32 s27, s27, 96")
    a("s_add_u32 s27, s27, 1152")
    c2 = dict(wm=4, wn=1, tm=1, tn=3, lda=1152, ldb=3456, K=576, sA=4, sB=8, sO=12, s_m0=26, s_n0=27, s_tmp=28,
              epi=epi_gemm1("v"))
    gemm(a, c2)
    tl_end(a)
    a("s_endpgm")
    a.label(lprep)
    a("s_cmp_ge_u32 s2, 336")
    a("s_cbranch_scc1 %s" % lkg)
    a("s_sub_u32 s3, s2, 240")
    c3 = dict(s_wg=3)
    prep_role3(a, c3)
    tl_end(a)
    a("s_endpgm")
    a.label(lkg)
    a("s_cmp_ge_u32 s2, 480")
    a("s_cbranch_scc1 %s" % lend)
    a("s_sub_u32 s3, s2, 336")
    c4 = dict(s_wg=3)
    kgen_role(a, c4)
    tl_end(a)
    a.label(lend)
    a("s_endpgm")
    cs = (c1, c2, c3, c4)
    return dict(name=name, grid=480, lds=max(c["lds_bytes"] for c in cs), vgprs=max(c["vgprs"] for c in cs))


def kernel_L2(a, name):
    kstart(a, name)
    tl_start(a)
    lend, lcv = a.newlabel("END"), a.newlabel("CONV")
    a("s_cmp_ge_u32 s2, 256")
    a("s_cbranch_scc1 %s" % lcv)
    a("s_load_dwordx2 s[24:25], s[0:1], 104")
    a("s_waitcnt lgkmcnt(0)")
    make_srd(a, 4, 24, 1728 * 4096, WS_QKVT)
    make_srd(a, 8, 24, 2048 * 1152, WS_O)
    a("s_and_b32 s26, s2, 7")
    a("s_lshr_b32 s27, s2, 3")
    a("s_and_b32 s27, s27, 3")
    a("s_lshl_b32 s27, s27, 3")
    a("s_add_u32 s26, s26, s27")
    a("s_lshr_b32 s27, s2, 5")
    a("s_lshl_b32 s27, s27, 8")
    c = dict(sW=4, sO=8, s_head=26, s_q0=27, s_tmp=28, prof=PROF)
    a("s_mul_i32 s30, s26, 18")
    a("s_add_u32 s30, s30, 576")
    attn_role(a, c)
    tl_end(a)
    a("s_endpgm")
    a.label(lcv)
    lg = a.newlabel("GATE")
    a("s_cmp_ge_u32 s2, 400")
    a("s_cbranch_scc1 %s" % lg)
    a("s_sub_u32 s3, s2, 256")
    c2 = dict(s_wg=3)
    conv_role(a, c2)
    tl_end(a)
    a("s_endpgm")
    a.label(lg)
    a("s_cmp_ge_u32 s2, 408")
    a("s_cbranch_scc1 %s" % lend)
    a("s_sub_u32 s3, s2, 400")
    gate_role(a, dict(s_wg=3))
    a.label(lend)
    a("s_endpgm")
    return dict(name=name, grid=408, lds=max(c["lds_bytes"], c2["lds_bytes"]), vgprs=max(c["vgprs"], c2["vgprs"]))


HEADER = open("gated_mix__mha_block__ssm_conv_s4d__prompt.s.ref").read().split("; @launch")[0]


def build(kfuncs):
    a = Asm()
    infos = []
    body = Asm()
    for f, nm in kfuncs:
        infos.append(f(body, nm))
    out = HEADER
    for k in infos:
        out += "; @launch kernel=%s grid=(%d,1,1) block=(256,1,1) lds=%d\n" % (k["name"], k["grid"], k["lds"])
    out += '.amdgcn_target "amdgcn-amd-amdhsa--gfx950"\n.text\n'
    out += body.text()
    out += '.section .rodata,"a"\n'
    for k in infos:
        v = (k["vgprs"] + 3) // 4 * 4
        out += ".p2align 6\n.amdhsa_kernel %s\n" % k["name"]
        out += "  .amdhsa_next_free_vgpr %d\n  .amdhsa_next_free_sgpr 102\n  .amdhsa_accum_offset %d\n" % (v, v)
        out += "  .amdhsa_group_segment_fixed_size 0\n  .amdhsa_kernarg_size 112\n  .amdhsa_user_sgpr_count 2\n"
        out += "  .amdhsa_user_sgpr_kernarg_segment_ptr 1\n  .amdhsa_system_sgpr_workgroup_id_x 1\n.end_amdhsa_kernel\n"
    return out


if __name__ == "__main__":
    path = sys.argv[1]
    mode = sys.argv[2] if len(sys.argv) > 2 else "all"
    if mode == "gemm1":
        s = build([(kernel_gemm1, "gemm1_kernel")])
    elif mode == "prep":
        s = build([(kernel_prep, "prep_kernel")])
    elif mode == "kgen":
        s = build([(kernel_kgen, "kgen_kernel")])
    elif mode == "conv":
        s = build([(kernel_prep, "prep_kernel"), (kernel_kgen, "kgen_kernel"), (kernel_conv, "conv_kernel")])
    elif mode == "six":
        s = build([(kernel_gemm1, "gemm1_kernel"), (kernel_prep, "prep_kernel"), (kernel_kgen, "kgen_kernel"), (kernel_attn, "attn_kernel"), (kernel_conv, "conv_kernel"), (kernel_gemm3, "gemm3_kernel")])
    elif mode == "all":
        s = build([(kernel_L1, "l1_kernel"), (kernel_L2, "l2_kernel"), (kernel_gemm3, "l3_kernel")])
    elif mode == "attn":
        s = build([(kernel_gemm1, "gemm1_kernel"), (kernel_attn, "attn_kernel")])
    open(path, "w").write(s)
```
